```python
import torch

def _softmax(x, axis=-1):
    return torch.softmax(x, dim=axis)
def _gelu(x):
    return torch.nn.functional.gelu(x, approximate="tanh")
def _silu(x):
    return torch.nn.functional.silu(x)
def _sigmoid(x):
    return torch.sigmoid(x)
def _layernorm(x, axis=-1, eps=1e-5):
    m = x.mean(dim=axis, keepdim=True)
    v = x.var(dim=axis, keepdim=True, unbiased=False)
    return (x - m) / torch.sqrt(v + eps)
def _scatter_add(tgt, idx, src, axis=0):
    return tgt.clone().index_add_(axis, idx, src)
def _segment_sum(src, seg, n):
    out = torch.zeros((n,) + src.shape[1:], dtype=src.dtype)
    return out.index_add_(0, seg, src)
def _pad(x, pw):
    flat = tuple(v for pair in reversed(pw) for v in pair)
    return torch.nn.functional.pad(x, flat)

kernel_name = 'gated_mix__linear_kernel_hedgehog__glu_gated_swiglu__prompt'

def setup_inputs():

    _w = (lambda a: (lambda t: t.to(torch.bfloat16) if t.is_floating_point() else t)(torch.as_tensor(a)))
    def _A_setup():
        B, S, D, H = 1, 2048, 576, 32
        Dh = D // H
        return {
            "x": _w((lambda *s: torch.randn(*s, dtype=torch.bfloat16) * 0.05)(B, S, D)),
            "wqkv": _w((lambda *s: torch.randn(*s, dtype=torch.bfloat16) * 0.8)(D, 3 * D)),
            "w_phi": _w((lambda *s: torch.randn(*s, dtype=torch.bfloat16) * 0.8)(H, Dh, Dh) * (Dh ** -0.5)),
            "wo": _w((lambda *s: torch.randn(*s, dtype=torch.bfloat16) * 0.05)(D, D)),
        }
    _A_in = _A_setup()

    def _B_setup():
        B, S, D, F = 1, 2048, 576, 4608
        return {
            "x": _w((lambda *s: torch.randn(*s, dtype=torch.bfloat16) * 0.05)(B, S, D)),
            "w1": _w((lambda *s: torch.randn(*s, dtype=torch.bfloat16) * 1.6)(D, F) * (2.0 / D) ** 0.5),
            "w3": _w((lambda *s: torch.randn(*s, dtype=torch.bfloat16) * 1.6)(D, F) * (2.0 / D) ** 0.5),
            "w2": _w((lambda *s: torch.randn(*s, dtype=torch.bfloat16) * 1.6)(F, D) * (2.0 / F) ** 0.5),
        }
    _B_in = _B_setup()

    return {
        "A_x": _A_in["x"],
        "A_wqkv": _A_in["wqkv"],
        "A_w_phi": _A_in["w_phi"],
        "A_wo": _A_in["wo"],
        "B_x": _B_in["x"],
        "B_w1": _B_in["w1"],
        "B_w3": _B_in["w3"],
        "B_w2": _B_in["w2"],
        "gate_w": _w((lambda *s: torch.randn(*s, dtype=torch.bfloat16) * 0.05)(576) * 16.0),
    }

def reference(A_x, A_wqkv, A_w_phi, A_wo, B_x, B_w1, B_w3, B_w2, gate_w):
    def _A_ref(x, wqkv, w_phi, wo):
        B, S, D = x.shape
        H = 32; Dh = D // H
        qkv = (lambda x, *d: x.permute(*d))((x @ wqkv).reshape(B, S, 3, H, Dh), 2, 0, 3, 1, 4)
        q, k, v = qkv[0], qkv[1], qkv[2]
        pq = torch.einsum("bhsd,hdf->bhsf", q, w_phi)
        pk = torch.einsum("bhsd,hdf->bhsf", k, w_phi)
        phi_q = torch.concatenate([_softmax(pq, axis=-1), _softmax(-pq, axis=-1)], axis=-1)
        phi_k = torch.concatenate([_softmax(pk, axis=-1), _softmax(-pk, axis=-1)], axis=-1)
        kv = torch.einsum("bhsf,bhsd->bhfd", phi_k, v)
        z  = torch.einsum("bhsf->bhf", phi_k)
        num = torch.einsum("bhqf,bhfd->bhqd", phi_q, kv)
        den = torch.einsum("bhqf,bhf->bhq", phi_q, z)[..., None] + 1e-6
        o = num / den
        return (lambda x, *d: x.permute(*d))(o, 0, 2, 1, 3).reshape(B, S, D) @ wo

    def _B_ref(x, w1, w3, w2):
        gate = torch.einsum("bsd,df->bsf", x, w1)
        up = torch.einsum("bsd,df->bsf", x, w3)
        h = _silu(gate) * up
        out = torch.einsum("bsf,fd->bsd", h, w2)
        return out

    x = A_x
    g = _sigmoid((x * gate_w).sum(-1, keepdims=True))
    a = _A_ref(x, A_wqkv, A_w_phi, A_wo)
    b = _B_ref(x, B_w1, B_w3, B_w2)
    return g * a + (1 - g) * b
```

```python
import re

def R(kind, a, n=1):
    return {(kind, a + i) for i in range(n)}
def V(a, n=1): return R('v', a, n)
def A_(a, n=1): return R('a', a, n)
def S(a, n=1): return R('s', a, n)
def rs(kind, a, n):
    return f"{kind}{a}" if n == 1 else f"{kind}[{a}:{a+n-1}]"
class Reg:
    def __init__(s, kind, a, n=1): s.k, s.a, s.n = kind, a, n
    def __str__(s): return rs(s.k, s.a, s.n)
    def set(s): return R(s.k, s.a, s.n)
    def sub(s, off, n=1):
        assert off + n <= s.n
        return Reg(s.k, s.a + off, n)
    def __getitem__(s, i): return s.sub(i, 1)
def v(a, n=1): return Reg('v', a, n)
def a(a_, n=1): return Reg('a', a_, n)
def s(a_, n=1): return Reg('s', a_, n)

class I:
    __slots__ = ('t', 'k', 'rd', 'wr', 'cost', 'tag', 'srcc', 'dep', 'wide')
    def __init__(x, t, k, rd=(), wr=(), cost=1, tag=None, srcc=None, dep=None, wide=False):
        x.t, x.k, x.cost, x.tag, x.dep, x.wide = t, k, cost, tag, dep, wide
        x.rd = set().union(*[r.set() if isinstance(r, Reg) else r for r in rd]) if rd else set()
        x.wr = set().union(*[r.set() if isinstance(r, Reg) else r for r in wr]) if wr else set()
        x.srcc = srcc

TRANS = ('v_exp_f32', 'v_rcp_f32', 'v_log_f32', 'v_rsq_f32', 'v_sqrt_f32')
def _regs(ops): return [o for o in ops if isinstance(o, Reg)]
def valu(op, dst, *src, mods=''):
    k = 'trans' if op in TRANS else 'valu'
    rd = _regs(src); wr = [dst] if isinstance(dst, Reg) else []
    txt = f"{op} {dst}, " + ", ".join(str(x) for x in src) + (" " + mods if mods else "")
    if op.startswith('v_fmac') : rd = rd + [dst]
    extra_rd = set(); extra_wr = set()
    if 'vcc' in [str(x) for x in src]: extra_rd = {('s', 'vcc')}
    if str(dst) == 'vcc': extra_wr = {('s', 'vcc')}
    return I(txt, k, rd + [extra_rd], wr + [extra_wr], cost=2 if k == 'trans' else 1)
class Neg:
    def __init__(s, r): s.r = r
def vneg(op, dst, *src):
    rd = []; t = []
    for x in src:
        if isinstance(x, tuple): rd.append(x[0]); t.append(f"-{x[0]}")
        else:
            if isinstance(x, Reg): rd.append(x)
            t.append(str(x))
    k = 'trans' if op in TRANS else 'valu'
    return I(f"{op} {dst}, " + ", ".join(t), k, rd, [dst], cost=2 if k == 'trans' else 1)
def perm(op, x, y): return I(f"{op} {x}, {y}", 'perm', [x, y], [x, y])
def salu(op, dst, *src):
    wr = [dst] if isinstance(dst, Reg) else ([{('s', 'm0')}] if dst == 'm0' else ([{('s','exec')}] if dst == 'exec' else []))
    return I(f"{op} {dst}, " + ", ".join(str(x) for x in src), 'salu', _regs(src), wr)
def scmp(op, x, y): return I(f"{op} {x}, {y}", 'salu', _regs([x, y]), [])
def mfma(d, A, B, c=None):
    cc = d if c is None else c
    rd = [A, B] + ([cc] if isinstance(cc, Reg) else [])
    return I(f"v_mfma_f32_16x16x32_bf16 {d}, {A}, {B}, {cc}", 'mfma', rd, [d], cost=2, srcc=(cc if isinstance(cc, Reg) else None))
def dsr(op, dst, addr, off=0):
    assert 0 <= off < 65536, off
    return I(f"{op} {dst}, {addr}" + (f" offset:{off}" if off else ""), 'dsr', [addr], [dst])
def dsw(op, addr, data, off=0):
    assert 0 <= off < 65536, off
    return I(f"{op} {addr}, {data}" + (f" offset:{off}" if off else ""), 'dsw', [addr, data], [])
def dsw2(addr, d0, d1, o0, o1):
    return I(f"ds_write2_b32 {addr}, {d0}, {d1} offset0:{o0} offset1:{o1}", 'dsw', [addr, d0, d1], [])
def dma(voff, srd, soff, off=0, tag=None):
    assert 0 <= off < 4096
    return I(f"buffer_load_dwordx4 {voff}, {srd}, {soff} offen" + (f" offset:{off}" if off else "") + " lds", 'dma',
             _regs([voff, srd, soff]) + [{('s', 'm0')}], [], tag=tag)
def vload(op, dst, voff, srd, soff=0, off=0, mods='', tag=None, rmw=False):
    assert 0 <= off < 4096
    return I(f"{op} {dst}, {voff}, {srd}, {soff} offen" + (f" offset:{off}" if off else "") + (" " + mods if mods else ""), 'vld',
             _regs([voff, srd, soff]) + ([dst] if rmw else []), [dst], tag=tag)
def vstore(op, data, voff, srd, soff=0, off=0, mods='', tag=None):
    assert 0 <= off < 4096
    return I(f"{op} {data}, {voff}, {srd}, {soff} offen" + (f" offset:{off}" if off else "") + (" " + mods if mods else ""), 'vst',
             _regs([data, voff, srd, soff]), [], tag=tag, wide=(data.n >= 3), dep=data.set())
def wait_vm(*tags): return I('', 'wvm', dep=tags, cost=1)
def wait_ds(): return I('', 'wds', cost=1)
def wait_dsall(): return I('s_waitcnt lgkmcnt(0)', 'wdsall', cost=1)
def barrier(): return I('s_barrier', 'bar', cost=1)
def raw(t, k='salu', rd=(), wr=(), cost=1): return I(t, k, rd, wr, cost)
def glue(*xs):
    y = I("\n".join(x.t for x in xs), 'salu', [set().union(*[x.rd for x in xs])], [set().union(*[x.wr for x in xs])], cost=sum(x.cost for x in xs))
    return y
def label(n): return I(n + ':', 'label', cost=0)
def comment(t): return I('; ' + t, 'label', cost=0)

def weave(mf, fixed_after, fixed_before, streams, cap=2):
    n = len(mf)
    after = {i: list(fixed_after.get(i, [])) for i in range(n)}
    used = [sum(x.cost for x in after[i]) + sum(x.cost for x in fixed_before.get(i + 1, [])) for i in range(n)]
    for insts, lo, hi in streams:
        hi = min(hi, n)
        tot = sum(x.cost for x in insts)
        if tot == 0 and not insts: continue
        L = cap
        free = lambda L: sum(max(0.0, L - used[i]) for i in range(lo, hi))
        if free(L) < tot:
            while free(L) < tot: L += 0.125
            w = [max(0.0, L - used[i]) for i in range(lo, hi)]
        else:
            f = free(L); w = [max(0.0, L - used[i]) * tot / f for i in range(lo, hi)]
        acc = 0.0; done = 0.0; q = list(insts);
        for g in range(lo, hi):
            acc += w[g - lo]
            while q and (done + q[0].cost * 0.5 <= acc + 1e-9 or g == hi - 1):
                x = q.pop(0); after[g].append(x); done += x.cost; used[g] += x.cost
    out = []
    for i in range(n):
        out += fixed_before.get(i, [])
        out.append(mf[i]); out += after[i]
    return out

def finalize(prog, ds_slack=7, report=None):
    out = []
    vm = []
    ds = []
    hist = []
    pos = 0
    nn = 0; nw = 0
    def emit(x, states=1):
        nonlocal pos
        out.append(x); hist.append((x, states)); pos += x.cost if x.k != 'label' else 0
        if len(hist) > 40: hist.pop(0)
    def dist_need(x):
        need = 0; d = 0
        for (p, st) in reversed(hist):
            if p.k == 'label': continue
            req = 0
            k, pk = x.k, p.k
            isv = lambda z: z in ('valu', 'trans', 'perm')
            if pk == 'mfma':
                if k == 'mfma':
                    if x.srcc is not None and (x.srcc.set() & p.wr):
                        if not (x.srcc.set() == p.wr): req = max(req, 6)
                    ab = x.rd - (x.srcc.set() if x.srcc is not None else set())
                    if ab & p.wr: req = max(req, 8)
                    if (x.wr & p.wr) and not (x.srcc is not None and x.srcc.set() == p.wr): req = max(req, 8)
                else:
                    if (x.rd | x.wr) & p.wr: req = max(req, 8)
                    if isv(k) and p.srcc is not None and (x.wr & p.srcc.set()): req = max(req, 3)
            if isv(pk):
                vw = {r for r in p.wr if r[0] != 's'}; sw = {r for r in p.wr if r[0] == 's'}
                if k == 'mfma' and (x.rd & vw): req = max(req, 2)
                if k == 'perm' and (x.rd & vw): req = max(req, 2)
                if pk == 'trans' and isv(k) and (x.rd & vw): req = max(req, 1)
                if 'readfirstlane' in x.t or 'readlane' in x.t:
                    if x.rd & vw: req = max(req, 1)
                if 'dpp' in x.t and (x.rd & vw): req = max(req, 2)
                if isv(k) and (x.rd & sw): req = max(req, 2)
                if k in ('dma', 'vld', 'vst') and (x.rd & sw): req = max(req, 5)
                if k == 'salu' and (x.rd & sw): req = max(req, 4)
            if pk == 'salu' and ('s', 'm0') in p.wr and k == 'dma': req = max(req, 1)
            if pk == 'vst' and p.wide and (x.wr & p.dep): req = max(req, 2)
            if pk == 'dsw' and isv(k) and False: pass
            if req > d: need = max(need, req - d)
            d += st
            if d >= 12: break
        return need
    for x in prog:
        nvm = None; nds = None
        if x.k == 'wvm':
            idx = [i for i, o in enumerate(vm) if o.tag in x.dep]
            if idx: nvm = len(vm) - 1 - max(idx)
        elif x.k == 'wds':
            idx = [i for i, (o, p) in enumerate(ds) if o.k == 'dsw']
            if idx: nds = len(ds) - 1 - max(idx)
        elif x.k == 'wdsall':
            if ds: nds = 0
        else:
            touch = x.rd | x.wr
            idx = [i for i, o in enumerate(vm) if o.k == 'vld' and (o.wr & touch)]
            if idx: nvm = len(vm) - 1 - max(idx)
            idx = [i for i, (o, p) in enumerate(ds) if o.k == 'dsr' and (o.wr & touch)]
            if idx:
                m = max(idx)
                while m + 1 < len(ds) and pos - ds[m + 1][1] >= ds_slack * 4: m += 1
                nds = len(ds) - 1 - m
        if nvm is not None or nds is not None:
            t = 's_waitcnt'
            if nvm is not None:
                nvm = min(nvm, 63); t += f' vmcnt({nvm})'; vm = vm[len(vm) - nvm:] if nvm else []
            if nds is not None:
                nds = min(nds, 15); t += f' lgkmcnt({nds})'; ds = ds[len(ds) - nds:] if nds else []
            emit(I(t, 'wait')); nw += 1
        if x.k in ('wvm', 'wds', 'wdsall'): continue
        if x.k != 'label':
            need = dist_need(x)
            if need:
                emit(I(f's_nop {need-1}', 'nop'), need); nn += need
        emit(x)
        if x.k in ('dma', 'vld', 'vst'):
            vm.append(x); assert len(vm) <= 63, "vmcnt overflow"
        if x.k in ('dsr', 'dsw'): ds.append((x, pos))
        if x.k == 'drain': vm = []; ds = []
    if report is not None: report.update(nops=nn, waits=nw, n=len(out))
    return out

def text(prog): return "\n".join(x.t for x in prog)

def kernel_text(name, body, vgpr=256, agpr=0, sgpr=102):
    acc = (vgpr + 3) // 4 * 4
    nfv = acc + agpr if agpr else vgpr
    return f""".text
.globl {name}
.p2align 8
.type {name},@function
{name}:
{body}
s_endpgm
.section .rodata,"a"
.p2align 6
.amdhsa_kernel {name}
  .amdhsa_next_free_vgpr {nfv}
  .amdhsa_next_free_sgpr {sgpr}
  .amdhsa_accum_offset {acc}
  .amdhsa_group_segment_fixed_size 0
  .amdhsa_kernarg_size 96
  .amdhsa_user_sgpr_count 2
  .amdhsa_user_sgpr_kernarg_segment_ptr 1
  .amdhsa_system_sgpr_workgroup_id_x 1
  .amdhsa_float_denorm_mode_32 3
.end_amdhsa_kernel
"""
```

```python
import sys
from asmlib import *
KN = "gated_mix__linear_kernel_hedgehog__glu_gated_swiglu__prompt"
H0 = 0; RING = 73728; MISC = 139264; PHIQ = MISC; LOGIT = MISC + 20480; DUMMY = MISC + 20992; KVE = MISC + 21248; KVM = 135168; GA = MISC
PHIK = 32768; VV = PHIK + 20480
S0 = 90112; ST = [S0, 0, 45056]; WST = 11264
WS_PART = 0; WS_SC = 37748736; WS_KV = WS_SC + 8192; WS_KV_BYTES = 16*2*3*16384; WS_STAMP = 48 << 20
LOG2E = 0x3fb8aa3b; NLOG2E = 0xbfb8aa3b
OOB = 0x7ff00000
sX, sQ, sQ2, sW1, sW3, sWH, sW2, sWO, sPART, sKV, sDBG, sMI = [s(28 + 4*i, 4) for i in range(12)]
sJ, sM, sW, sR, sC = s(76), s(77), s(78), s(79), s(80)
sOff, sColF, sColH, sMb, sT0, sT1, sNL, sL, sOffX, sMx, sT2, sRowF, sRowH = [s(81 + i) for i in range(13)]
sMask = s(94, 2); sStamp = s(96, 2); sT3 = s(98); sT4 = s(99)
vLane, vDmaF, vRdF0, vRdF1, vHw = v(0), v(1), v(2), v(3), v(4)
vJ = [v(5), v(6), v(7)]
vPhiA = [v(8, 4), v(12, 4)]
vE = [v(16 + i) for i in range(8)]
vHf = [v(24, 4), v(28, 4)]
T = 32; WF = 64; ACC = [128, 192]
def xf(ks, tb):
    i = ks*4 + tb
    return a(4*i, 4) if i < 64 else v(96 + 4*(i - 64), 4)
def slot(G): return ((G + 7) % 8) * 8192
def srd(P, d, lo, nbytes, add=0):
    if add >= 0: P += [glue(salu('s_add_u32', d[0], s(lo), add), salu('s_addc_u32', d[1], s(lo+1), 0))]
    else: P += [glue(salu('s_sub_u32', d[0], s(lo), -add), salu('s_subb_u32', d[1], s(lo+1), 0))]
    P += [salu('s_mov_b32', d[2], nbytes), salu('s_mov_b32', d[3], '0x20000')]

class G:
    def __init__(g, stamps=False, dump=None, pf=True):
        g.stamps = stamps; g.dump = dump; g.ns = 0; g.pf = pf
    def stamp(g):
        if not g.stamps: return []
        i = g.ns; g.ns += 1
        return [raw(f"s_memtime {sStamp}", 'salu', [], [sStamp]), raw(f"s_memrealtime s[100:101]", 'salu'), raw("s_waitcnt lgkmcnt(0)", 'wait'),
                valu('v_mov_b32', v(6), sStamp[0]), valu('v_mov_b32', v(7), s(100)), valu('v_mov_b32', v(5), sT4),
                vstore('buffer_store_dwordx2', v(6, 2), v(5), sPART, 0, off=8*i)]
    def prologue(g):
        P = []
        P += [scmp('s_cmp_ge_u32', s(2), 256), raw('s_cbranch_scc1 L_end')]
        P += [raw('s_load_dwordx16 s[4:19], s[0:1], 0'), raw('s_load_dwordx8 s[20:27], s[0:1], 64')]
        t0, t1, t2, t3, t4 = [v(T + 16 + i) for i in range(5)]
        P += [valu('v_lshrrev_b32', t0, 6, v(0)), valu('v_and_b32', vLane, 63, v(0))]
        P += [valu('v_readfirstlane_b32', sW, t0)]
        P += [salu('s_and_b32', sJ, s(2), 7), salu('s_lshl_b32', sJ, sJ, 1), salu('s_bfe_u32', sT0, s(2), '0x10003'), salu('s_add_u32', sJ, sJ, sT0),
              salu('s_lshr_b32', sM, s(2), 4), salu('s_lshr_b32', sR, sW, 1), salu('s_and_b32', sC, sW, 1)]
        P += [salu('s_mov_b32', sNL, hex(NLOG2E)), salu('s_mov_b32', sL, hex(LOG2E))]
        P += [salu('s_mul_i32', sT0, sJ, 288), salu('s_and_b32', sT1, sJ, 1), salu('s_lshl_b32', sT2, sT1, 5), salu('s_add_u32', sRowF, sT0, sT2),
              salu('s_lshl_b32', sT2, sT1, 8), salu('s_add_u32', sRowH, sT0, 256), salu('s_sub_u32', sRowH, sRowH, sT2),
              salu('s_lshl_b32', sColF, sRowF, 1), salu('s_lshl_b32', sColH, sRowH, 1)]
        P += [salu('s_lshl_b32', sMb, sW, 11), salu('s_add_u32', sMb, sMb, RING), salu('s_lshl_b32', sMx, sW, 12)]
        if g.stamps: P += [salu('s_lshl_b32', sT4, s(2), 10), salu('s_lshl_b32', sT0, sW, 8), salu('s_add_u32', sT4, sT4, sT0), salu('s_add_u32', sT4, sT4, WS_STAMP)]
        P += [valu('v_lshrrev_b32', t0, 3, vLane), salu('s_lshl_b32', sT0, sW, 3), valu('v_add_u32', t0, sT0, t0), valu('v_mul_u32_u24', t0, 9216, t0),
              valu('v_bfe_u32', t1, vLane, 4, 1), salu('s_lshl_b32', sT1, sC, 1), valu('v_or_b32', t1, sT1, t1), valu('v_bfe_u32', t2, vLane, 1, 2),
              valu('v_xor_b32', t1, t1, t2), valu('v_lshlrev_b32', t1, 5, t1), valu('v_and_b32', t2, 1, vLane), valu('v_lshlrev_b32', t2, 4, t2),
              valu('v_add3_u32', vDmaF, t0, t1, t2)]
        dX0, dX1, rX0, rX1 = [v(T + i) for i in range(4)]
        P += [salu('s_lshl_b32', sT0, sM, 7), salu('s_lshl_b32', sT1, sW, 5), salu('s_add_u32', sT0, sT0, sT1), valu('v_lshrrev_b32', t0, 3, vLane),
              valu('v_add_u32', t0, sT0, t0), valu('v_mul_u32_u24', t0, 1152, t0), valu('v_lshrrev_b32', t1, 4, vLane), valu('v_and_b32', t2, 7, vLane),
              valu('v_xor_b32', t1, t1, t2), valu('v_lshlrev_b32', t1, 4, t1), valu('v_add_u32', dX0, t0, t1), valu('v_xor_b32', t1, 64, t1), valu('v_add_u32', dX1, t0, t1)]
        P += [raw('s_waitcnt lgkmcnt(0)', 'wait')]
        srd(P, sX, 4, 2048*1152); srd(P, sW1, 14, 576*9216); srd(P, sW3, 16, 576*9216 + 1024, -1024)
        if g.pf: P += g.prefetch13(0)
        for d in range(4):
            P += g.dmaX(d)
            for Gk in (2*d, 2*d + 1):
                if Gk <= 6: P += g.dmaW(Gk)
        if g.pf: P += g.prefetch13(1)
        srd(P, sQ, 6, 576*3456); srd(P, sQ2, 6, 576*3456 - 12800, 12800); srd(P, sW2, 18, 4608*1152); srd(P, sWO, 10, 576*1152 + 2048, -2048)
        srd(P, sPART, 26, 64 << 20); srd(P, sKV, 26, WS_KV_BYTES, WS_KV); srd(P, sDBG, 24, 256); srd(P, sMI, 20, 1152)
        P += [scmp('s_cmp_ge_u32', sW, 2), salu('s_cselect_b32', sWH[0], s(16), s(14)), salu('s_cselect_b32', sWH[1], s(17), s(15)),
              salu('s_mov_b32', sWH[2], 576*9216), salu('s_mov_b32', sWH[3], '0x20000')]
        gv = [v(T + 8 + i) for i in range(3)]
        P += [salu('s_lshl_b32', sT0, sW, 7), valu('v_lshlrev_b32', t0, 1, vLane), valu('v_add_u32', t0, sT0, t0)]
        for i in range(3): P += [vload('buffer_load_ushort', gv[i], t0, sMI, 0, off=512*i)]
        P += [valu('v_lshrrev_b32', t0, 4, vLane), valu('v_bfe_u32', t1, vLane, 2, 2), valu('v_lshlrev_b32', t2, 11, t0), valu('v_lshl_add_u32', t2, t1, 7, t2),
              valu('v_and_b32', t3, 3, vLane), valu('v_lshl_add_u32', t2, t3, 3, t2), valu('v_lshrrev_b32', t1, 1, t1), valu('v_and_b32', t0, 1, t0),
              valu('v_lshl_or_b32', t1, t0, 1, t1), salu('s_lshl_b32', sT1, sC, 1), valu('v_xor_b32', t1, sT1, t1), valu('v_lshlrev_b32', t1, 5, t1),
              valu('v_add_u32', t2, RING, t2), valu('v_add_u32', vRdF0, t2, t1), valu('v_xor_b32', t1, 32, t1), valu('v_add_u32', vRdF1, t2, t1)]
        P += [valu('v_and_b32', t0, 15, vLane), valu('v_lshrrev_b32', t1, 1, t0), valu('v_lshrrev_b32', t2, 4, vLane), valu('v_xor_b32', t1, t1, t2),
              valu('v_lshlrev_b32', t1, 4, t1), salu('s_lshl_b32', sT0, sR, 13), valu('v_lshlrev_b32', t0, 7, t0), valu('v_add_u32', t0, sT0, t0),
              valu('v_add_u32', rX0, t0, t1), valu('v_xor_b32', t1, 64, t1), valu('v_add_u32', rX1, t0, t1)]
        P += [salu('s_lshl_b32', sT0, sR, 12), salu('s_lshl_b32', sT1, sC, 13), salu('s_add_u32', sT0, sT0, sT1), valu('v_lshlrev_b32', t0, 4, vLane), valu('v_add_u32', vHw, sT0, t0)]
        P += g.qkv_addrs()
        P += [salu('s_lshl_b32', sT0, sW, 8), valu('v_lshrrev_b32', t0, 5, vLane), valu('v_lshlrev_b32', t0, 7, t0), valu('v_bfe_u32', t1, vLane, 3, 2),
              valu('v_lshl_add_u32', t0, t1, 5, t0), valu('v_bfe_u32', t1, vLane, 2, 1), valu('v_lshl_add_u32', t0, t1, 10, t0), valu('v_and_b32', t1, 3, vLane),
              valu('v_lshl_add_u32', t0, t1, 3, t0), salu('s_add_u32', sT0, sT0, GA), valu('v_add_u32', t0, sT0, t0)]
        g.gate_late = []
        for i in range(3):
            d = v(T + 12, 2)
            g.gate_late += [valu('v_lshl_or_b32', d[0], gv[i], 16, gv[i]), valu('v_mov_b32', d[1], d[0]), dsw('ds_write_b64', t0, d, off=2048*i)]
        return P
    def prefetch13(g, ch):
        t0 = v(T + 21); d = v(T + 22)
        P = [salu('s_mul_i32', sT0, sM, 36), salu('s_mul_i32', sT1, sW, 9), salu('s_add_u32', sT0, sT0, sT1), valu('v_min_u32', t0, 8, vLane),
             valu('v_add_u32', t0, sT0, t0), valu('v_mul_u32_u24', t0, 9216, t0)]
        if ch < 4: P += [salu('s_add_u32', sT0, sColF, 128*ch)]
        else: P += [salu('s_mov_b32', sT0, sColH)]
        P += [vload('buffer_load_dword', d, t0, sW1, sT0, tag='pf'), vload('buffer_load_dword', d, t0, sW3, sT0, off=1024, tag='pf')]
        return P
    def prefetchQ(g):
        t0 = v(T + 21); t1 = v(T + 23); d = v(T + 22)
        P = [salu('s_mul_i32', sT0, sM, 36), salu('s_mul_i32', sT1, sW, 9), salu('s_add_u32', sT0, sT0, sT1), valu('v_min_u32', t0, 53, vLane),
             valu('v_mul_u32_u24', t1, 43, t0), valu('v_lshrrev_b32', t1, 8, t1), valu('v_mul_u32_u24', d, 6, t1), valu('v_sub_u32', t0, t0, d),
             valu('v_add_u32', t1, sT0, t1), valu('v_mul_u32_u24', t1, 3456, t1), valu('v_lshrrev_b32', d, 1, t0), valu('v_mul_u32_u24', d, 1152, d), valu('v_add_u32', t1, t1, d),
             valu('v_and_b32', t0, 1, t0), valu('v_mul_u32_u24', t0, 68, t0), valu('v_add_u32', t1, t1, t0), salu('s_mul_i32', sT0, sJ, 72),
             vload('buffer_load_dword', d, t1, sQ, sT0, tag='pf')]
        return P
    def prefetch2(g, t0, t1, d):
        P = [salu('s_mul_i32', sT0, sM, 162), salu('s_mul_i32', sT1, sW, 41), salu('s_add_u32', sT0, sT0, sT1), valu('v_min_u32', t0, 40, vLane),
             valu('v_add_u32', t0, sT0, t0), valu('v_lshlrev_b32', t0, 7, t0), salu('s_mul_i32', sT0, sJ, 331776),
             vload('buffer_load_dword', d, t0, sW2, sT0, tag='pf'),
             salu('s_mul_i32', sT0, sM, 21), salu('s_mul_i32', sT1, sW, 6), salu('s_add_u32', sT0, sT0, sT1), valu('v_min_u32', t1, 5, vLane),
             valu('v_add_u32', t1, sT0, t1), valu('v_lshlrev_b32', t1, 7, t1), salu('s_mul_i32', sT0, sJ, 41472),
             vload('buffer_load_dword', d, t1, sWO, sT0, off=2048, tag='pf')]
        return P
    def qkv_addrs(g):
        t0, t1, t2, t3, t4 = [v(T + 16 + i) for i in range(5)]
        g.dQ = v(T + 24); g.rQ = [v(T + 25), v(T + 26), v(T + 27), v(T + 30)]; g.rQ3b = v(T + 28); g.isG = v(T + 29)
        P = []
        P += [valu('v_lshrrev_b32', t0, 4, vLane), salu('s_lshl_b32', sT1, sC, 2), valu('v_or_b32', t1, sT1, t0), valu('v_lshlrev_b32', t1, 1, t1),
              valu('v_and_b32', t2, 15, vLane), valu('v_xor_b32', t1, t1, t2),
              salu('s_lshl_b32', sT0, sW, 3), valu('v_add_u32', t0, sT0, t0), valu('v_mul_u32_u24', t0, 3456, t0),
              valu('v_cmp_le_u32', 'vcc', 6, t1), valu('v_cndmask_b32', t2, 0, v(T+31), 'vcc') ]
        P.insert(0, valu('v_mov_b32', v(T+31), 1))
        P += [valu('v_cmp_le_u32', 'vcc', 11, t1), valu('v_cndmask_b32', t3, 0, v(T+31), 'vcc'),
              valu('v_mul_u32_u24', t4, 6, t2), valu('v_sub_u32', t1, t1, t4), valu('v_mul_u32_u24', t4, 5, t3), valu('v_sub_u32', t1, t1, t4),
              valu('v_min_u32', t1, 4, t1), valu('v_add_u32', t2, t2, t3), valu('v_mul_u32_u24', t2, 1152, t2), valu('v_add_u32', t0, t0, t2),
              valu('v_lshrrev_b32', t3, 2, t1), valu('v_lshlrev_b32', t1, 4, t1), valu('v_lshlrev_b32', t3, 3, t3), valu('v_sub_u32', t1, t1, t3),
              salu('s_mul_i32', sT0, sJ, 72), valu('v_add3_u32', g.dQ, t0, t1, sT0)]
        def B(seg, n, c):
            b = 32*c + 8*n
            if b >= 64: b += 8
            return [0, 96, 176][seg] + b
        tabs = [[(0, i) for i in range(4)], [(0, 4), (2, 0), (2, 1), (2, 2)], [(1, i) for i in range(4)], [(1, 4), (2, 3), (2, 4), (2, 4)]]
        P += [valu('v_lshrrev_b32', t0, 4, vLane), valu('v_bfe_u32', t1, vLane, 2, 2), valu('v_lshlrev_b32', t2, 11, t0), valu('v_lshl_add_u32', t2, t1, 8, t2),
              valu('v_add_u32', t2, RING, t2), valu('v_and_b32', t0, 1, t0), valu('v_lshl_or_b32', t0, t0, 2, t1), valu('v_lshlrev_b32', t0, 5, t0),
              valu('v_and_b32', t1, 3, vLane), valu('v_lshlrev_b32', t1, 3, t1), scmp('s_cmp_eq_u32', sC, 0)]
        for b in range(4):
            pk = [sum(B(sg, n, c) << (8*i) for i, (sg, n) in enumerate(tabs[b])) for c in range(2)]
            dst = g.rQ[b] if b < 3 else g.rQ3b
            P += [salu('s_cselect_b32', sT0, hex(pk[0]), hex(pk[1]) ) ] if False else [salu('s_mov_b32', sT0, hex(pk[1])), salu('s_cselect_b32', sT0, hex(pk[0]), sT0)]
            P += [valu('v_lshrrev_b32', t3, t1, sT0) if False else valu('v_bfe_u32', t3, sT0, t1, 8), valu('v_xor_b32', t3, t3, t0), valu('v_add_u32', dst, t2, t3)]
        P += [valu('v_and_b32', t1, 3, vLane), valu('v_cmp_eq_u32', 'vcc', 3, t1), valu('v_lshrrev_b32', t3, 2, vLane), valu('v_lshlrev_b32', t3, 3, t3),
              valu('v_add_u32', t3, GA, t3), valu('v_cndmask_b32', g.rQ3b, g.rQ3b, t3, 'vcc'), valu('v_cndmask_b32', g.isG, 0, v(T+31), 'vcc')]
        return P
    def dmaX(g, d):
        dX = [v(T), v(T + 1)]
        P = [salu('s_add_u32', 'm0', sMx, (d % 4)*16384)]
        for aa in range(4):
            P += [salu('s_mov_b32', sOffX, d*128 + aa*8192), dma(dX[aa & 1], sX, sOffX, off=aa*1024, tag=('x', d))]
        return P
    def dmaW(g, Gk):
        ph, ks = divmod(Gk, 18)
        m0 = salu('s_add_u32', 'm0', sMb, slot(Gk))
        if Gk >= 90:
            i = Gk - 90
            return [m0, salu('s_add_u32', sOff, sColH, 2*i*32*9216), dma(g.dH0, sWH, sOff, tag=('w', Gk)), dma(g.dH1, sWH, sOff, off=1024, tag=('w', Gk))]
        if ph == 2:
            return [m0, salu('s_mov_b32', sOff, ks*32*3456), dma(g.dQ, sQ, sOff, tag=('w', Gk)), dma(g.dQ, sQ2, sOff, off=1024, tag=('w', Gk))]
        ch = [0, 1, None, 2, 3][ph]
        return [m0, salu('s_add_u32', sOff, sColF, ks*32*9216 + ch*128), dma(vDmaF, sW1, sOff, tag=('w', Gk)), dma(vDmaF, sW3, sOff, off=1024, tag=('w', Gk))]
    def wfrag(g, Gk, fi): return v(WF + (Gk % 2)*16 + fi*4, 4)
    def readsW(g, Gk):
        ph = Gk // 18; R_ = []
        for fi in range(4):
            f = g.wfrag(Gk, fi); pre = []
            if Gk >= 90: ad = g.rH; o = slot(Gk) + (fi >> 1)*1024 + (fi & 1)*4096; zo = 256
            elif ph == 2:
                ad = g.rQ[fi]; o = slot(Gk); zo = 1024
                if fi == 3:
                    ks = Gk - 36; c = (ks >> 3)*2048 + (ks & 7)*128 - slot(Gk)
                    pre = [salu('s_mov_b32', sT3, c), valu('v_mad_i32_i24', ad, g.isG, sT3, g.rQ3b)]
            else: ad = [vRdF0, vRdF1][fi >> 1]; o = slot(Gk) + (fi & 1)*1024; zo = 512
            R_.append((pre, dsr('ds_read_b64_tr_b16', f.sub(0, 2), ad, o), dsr('ds_read_b64_tr_b16', f.sub(2, 2), ad, o + zo)))
        return R_
    def readsX(g, ks):
        return [dsr('ds_read_b128', xf(ks, tb), v(T + 2 + (ks & 1)), ((ks >> 1) % 4)*16384 + tb*2048) for tb in range(4)]
    def accq(g, st, fi, tb): return v(ACC[st] + (fi*4 + tb)*4, 4)
    def phase1(g, ph):
        G0 = ph*18; nk = 9 if ph == 5 else 18; st = ph % 2
        mf = []; af = {}; bf = {}
        ad = lambda dct, i, x: dct.setdefault(i, []).extend(x)
        for k in range(nk):
            Gk = G0 + k; b = 16*k
            for fi in range(4):
                for q in range(4):
                    tb = q if fi % 2 == 0 else 3 - q
                    if ph == 5: ks = 2*k + (fi >> 1); d = g.accq(st, fi & 1, tb); first = (k == 0 and fi < 2)
                    else: ks = k; d = g.accq(st, fi, tb); first = (k == 0)
                    mf.append(mfma(d, g.wfrag(Gk, fi), xf(ks, tb), 0 if first else None))
            if Gk % 2 == 1:
                tags = [('w', Gk + 1), ('w', Gk + 2)]
                if ph == 0 and Gk + 1 < 18: tags.append(('x', (Gk + 1)//2))
                ad(bf, b, [wait_vm(*tags), barrier()])
            if Gk + 1 <= 98:
                for fi, (pre, r0, r1) in enumerate(g.readsW(Gk + 1)):
                    ad(af, b + 4*fi, pre); ad(af, b + 4*fi + 1, [r0]); ad(af, b + 4*fi + 3, [r1])
            if Gk >= 1 and Gk + 6 <= 98:
                m0, so, d0, d1 = g.dmaW(Gk + 6)
                ad(af, b + 0, [m0]); ad(af, b + 2, [so]); ad(af, b + 4, [d0]); ad(af, b + 8, [d1])
            if ph == 0:
                if k + 1 < 18:
                    for tb, x in enumerate(g.readsX(k + 1)): ad(af, b + 4*tb + 2, [x])
                if k % 2 == 1 and k >= 3 and (k + 5)//2 <= 8:
                    D = g.dmaX((k + 5)//2)
                    ad(af, b + 10, D[0:3]); ad(af, b + 12, D[3:5]); ad(af, b + 14, D[5:7]); ad(af, b + 15, D[7:9])
        return mf, af, bf
    def silu(g, st, ch):
        P = []; n = 0
        half = (ch == 4)
        for tb in range(4):
            hf = vHf[tb % 2]
            for e in range(1 if half else 2):
                gq = g.accq(st, 2*e, tb); uq = g.accq(st, 2*e + 1, tb); t = vE[4*(n % 2):4*(n % 2) + 4]; n += 1
                P += [valu('v_mul_f32', t[i], sNL, gq[i]) for i in range(4)]
                P += [valu('v_exp_f32', t[0], t[0]), valu('v_mul_f32', gq[0], gq[0], uq[0]), valu('v_exp_f32', t[1], t[1]), valu('v_mul_f32', gq[1], gq[1], uq[1]),
                      valu('v_exp_f32', t[2], t[2]), valu('v_mul_f32', gq[2], gq[2], uq[2]), valu('v_exp_f32', t[3], t[3]), valu('v_mul_f32', gq[3], gq[3], uq[3])]
                P += [valu('v_add_f32', t[i], 1.0, t[i]) for i in range(4)]
                P += [valu('v_rcp_f32', t[i], t[i]) for i in range(4)]
                P += [valu('v_mul_f32', gq[i], gq[i], t[i]) for i in range(4)]
                P += [valu('v_cvt_pk_bf16_f32', hf[2*e], gq[0], gq[1]), valu('v_cvt_pk_bf16_f32', hf[2*e + 1], gq[2], gq[3])]
            if half: P += [dsw('ds_write_b64', g.vHh, hf.sub(0, 2), tb*1024)]
            else: P += [dsw('ds_write_b128', vHw, hf, ch*16384 + tb*1024)]
        return P
    def phiA_loads(g):
        t0, t1, t2 = vJ
        P = []; srd(P, sMI, 8, 32*648)
        P += [salu('s_lshl_b32', sT0, sJ, 1), salu('s_add_u32', sT0, sT0, sC), salu('s_mul_i32', sT0, sT0, 648), salu('s_mul_i32', sT1, sC, 72), salu('s_sub_u32', sT0, sT0, sT1),
              salu('s_mov_b32', sT2, OOB)]
        for ob in range(2):
            F = vPhiA[ob]
            P += [valu('v_and_b32', t2, 15, vLane)]
            if ob == 1: P += [valu('v_and_b32', t0, 11, t2), valu('v_cmp_eq_u32', 'vcc', 0, t0), valu('v_lshrrev_b32', t2, 2, t2), valu('v_add_u32', t2, 16, t2),
                              valu('v_mov_b32', t0, sT2), valu('v_lshlrev_b32', t2, 1, t2), valu('v_cndmask_b32', t2, t0, t2, 'vcc')]
            else: P += [valu('v_lshlrev_b32', t2, 1, t2)]
            P += [valu('v_add_u32', t2, sT0, t2), valu('v_lshrrev_b32', t0, 4, vLane), valu('v_cmp_eq_u32', 'vcc', 0, t0), valu('v_mul_u32_u24', t0, 144, t0),
                  valu('v_add_u32', t0, t0, t2), valu('v_mov_b32', t1, sT2), valu('v_add_u32', t2, 576, t2), valu('v_cndmask_b32', t1, t1, t2, 'vcc')]
            gl = glue(scmp('s_cmp_eq_u32', sC, 1), salu('s_cselect_b64', sMask, 'vcc', 0)); gl.rd |= {('s', 'vcc')}
            P += [gl, valu('v_mov_b32', t2, sT2), valu('v_cndmask_b32', t2, t0, t2, sMask)]
            for e in range(4): P += [vload('buffer_load_ushort', v(T + 8*ob + e), t2 if e < 2 else t0, sMI, 0, off=36*e)]
            P += [glue(scmp('s_cmp_eq_u32', sC, 0), salu('s_cselect_b32', sT1, sT2, 0)), valu('v_max_u32', t0, sT1, t1)]
            for e in range(4): P += [vload('buffer_load_ushort', v(T + 8*ob + 4 + e), t1 if e < 2 else t0, sMI, 0, off=36*e)]
        pk = [valu('v_lshl_or_b32', vPhiA[i >> 2][i & 3], v(T + 2*i + 1), 16, v(T + 2*i)) for i in range(8)]
        return P, pk
    def softmax(g, x, tmp, outq, mx, mn, s0, s1):
        P = []
        P += [valu('v_max3_f32', mx, x[0], x[1], x[2]), valu('v_min3_f32', mn, x[0], x[1], x[2])]
        for i in range(3, 17, 2): P += [valu('v_max3_f32', mx, mx, x[i], x[i+1]), valu('v_min3_f32', mn, mn, x[i], x[i+1])]
        P += [valu('v_max_f32', mx, mx, x[17]), valu('v_min_f32', mn, mn, x[17]), valu('v_mul_f32', mx, sNL, mx), valu('v_mul_f32', mn, sL, mn)]
        for i in range(18): P += [valu('v_fma_f32', tmp[i], x[i], sNL, mn), valu('v_fma_f32', x[i], x[i], sL, mx)]
        for i in range(18):
            P += [valu('v_exp_f32', x[i], x[i]), valu('v_exp_f32', tmp[i], tmp[i])]
            if i == 2: P += [valu('v_add_f32', s0, x[0], x[1]), valu('v_add_f32', s1, tmp[0], tmp[1])]
            if i > 2: P += [valu('v_add_f32', s0, s0, x[i-1]), valu('v_add_f32', s1, s1, tmp[i-1])]
        P += [valu('v_add_f32', s0, s0, x[17]), valu('v_add_f32', s1, s1, tmp[17]), valu('v_rcp_f32', s0, s0), valu('v_rcp_f32', s1, s1)]
        for i in range(18): P += [valu('v_mul_f32', x[i], x[i], s0), valu('v_mul_f32', tmp[i], tmp[i], s1)]
        P += [valu('v_cvt_pk_bf16_f32', outq[8], x[16], x[17])]
        for i in range(8): P += [valu('v_cvt_pk_bf16_f32', outq[i], x[2*i], x[2*i+1])]
        for i in range(9): P += [valu('v_cvt_pk_bf16_f32', outq[9 + i], tmp[2*i], tmp[2*i+1])]
        return P
    def attn_post(g):
        t0, t1, t2 = vJ; A = []
        blk = lambda b, tb: g.accq(0, b, tb)
        A += [salu('s_lshl_b32', sT0, sR, 8), salu('s_add_u32', sT0, sT0, LOGIT - 192), valu('v_lshlrev_b32', t0, 2, vLane), valu('v_add_u32', t0, sT0, t0),
              valu('v_mov_b32', t1, DUMMY), valu('v_cmp_le_u32', 'vcc', 48, vLane), valu('v_cndmask_b32', t0, t1, t0, 'vcc')]
        A += [dsw('ds_write_b32', t0, blk(3, tb)[0], 64*tb) for tb in range(4)]
        Pq = [v(T + 8*tb, 4) for tb in range(4)]; Pk = [v(T + 8*tb + 4, 4) for tb in range(4)]
        A += [salu('s_lshl_b32', sT0, sC, 13), salu('s_lshl_b32', sT1, sR, 12), salu('s_add_u32', sT0, sT0, sT1), salu('s_add_u32', sT0, sT0, VV),
              salu('s_lshl_b32', sT1, sC, 2), salu('s_sub_u32', sT1, sT0, sT1),
              valu('v_and_b32', t0, 15, vLane), valu('v_lshlrev_b32', t0, 6, t0), valu('v_lshrrev_b32', t1, 4, vLane), valu('v_lshl_add_u32', t1, t1, 3, t0),
              valu('v_add_u32', t1, sT1, t1), valu('v_add_u32', t0, sT0, t0), valu('v_add_u32', t2, 24, t1), valu('v_add_u32', vE[0], 48, t0),
              valu('v_cmp_gt_u32', 'vcc', 16, vLane), valu('v_cndmask_b32', t1, t1, vE[0], 'vcc'), valu('v_cndmask_b32', t2, t2, vE[0], 'vcc'),
              valu('v_cmp_le_u32', 'vcc', 48, vLane), valu('v_mov_b32', vE[1], '0x3f80'), valu('v_cndmask_b32', t2, t2, vE[0], 'vcc')]
        for tb in range(4):
            for b in range(4):
                d = (Pq if b < 2 else Pk)[tb]; q = blk(b, tb)
                A += [valu('v_cvt_pk_bf16_f32', d[2*(b & 1)], q[0], q[1]), valu('v_cvt_pk_bf16_f32', d[2*(b & 1) + 1], q[2], q[3])]
            if tb > 0: A += [valu('v_add_u32', t1, 1024, t1), valu('v_add_u32', t2, 1024, t2)]
            A += [dsw2(t1, Pq[tb][2], Pq[tb][3], 0, 1), dsw2(t2, Pk[tb][2], Pk[tb][3], 0, 1), dsw('ds_write_b32', t0, vE[1], 1024*tb + 44)]
            A += [mfma(blk(2, tb), vPhiA[0], Pk[tb], 0), mfma(blk(3, tb), vPhiA[1], Pk[tb], 0), mfma(blk(0, tb), vPhiA[0], Pq[tb], 0), mfma(blk(1, tb), vPhiA[1], Pq[tb], 0)]
        def transp(b, r):
            R_ = [blk(b, tb)[r] for tb in range(4)]
            return [perm('v_permlane32_swap_b32', R_[0], R_[2]), perm('v_permlane32_swap_b32', R_[1], R_[3]), perm('v_permlane16_swap_b32', R_[0], R_[1]), perm('v_permlane16_swap_b32', R_[2], R_[3])]
        segs = []
        for (b0, base, who) in ((2, PHIK, 'k'), (0, PHIQ, 'q')):
            Sg = []
            tr = [transp(b0, r) for r in range(4)] + [transp(b0 + 1, 0)]
            for i in range(4):
                for x in tr: Sg.append(x[i])
            x = [blk(b0, i >> 2)[i & 3] for i in range(16)] + [blk(b0 + 1, 0)[0], blk(b0 + 1, 1)[0]]
            tmp = [v(T + i) for i in range(18)]
            oq = [blk(b0 + 1, 2), blk(b0 + 1, 3), v(T + 20, 4), blk(b0 + 1, 0), blk(b0 + 1, 1)]
            outq = [oq[i >> 2][i & 3] for i in range(18)]
            Sg += g.softmax(x, tmp, outq, vE[0], vE[1], vE[2], vE[3])
            Sg += [salu('s_mul_i32', sT0, sW if who == 'q' else sC, 5120 if who == 'q' else 10240), salu('s_mul_i32', sT1, sR, 0 if who == 'q' else 5120),
                   salu('s_add_u32', sT0, sT0, sT1), salu('s_add_u32', sT0, sT0, base), valu('v_mul_u32_u24', t0, 80, vLane), valu('v_add_u32', t0, sT0, t0)]
            Sg += [dsw('ds_write_b128', t0, oq[i], 16*i) for i in range(4)] + [dsw('ds_write_b64', t0, oq[4].sub(0, 2), 64)]
            segs.append(Sg)
        A += segs[0]; Q = segs[1]
        B = []
        ta, tb_, tv = vHf[0][0], vHf[0][1], vHf[0][2]
        B += [valu('v_lshrrev_b32', t0, 4, vLane), valu('v_bfe_u32', t1, vLane, 2, 2), valu('v_lshl_add_u32', t0, t0, 3, t1),
              valu('v_and_b32', t1, 3, vLane), salu('s_mul_i32', sT0, sC, 10240), salu('s_add_u32', sT0, sT0, PHIK), valu('v_mul_u32_u24', t2, 80, t0),
              valu('v_add_u32', tb_, sT0, t2), valu('v_lshl_add_u32', ta, t1, 4, tb_),
              salu('s_lshl_b32', sT0, sC, 13), salu('s_add_u32', sT0, sT0, VV + 8), salu('s_lshl_b32', sT1, sR, 5), salu('s_add_u32', sT0, sT0, sT1),
              salu('s_sub_u32', sT1, 1, sR), valu('v_mul_u32_u24', t1, sT1, t1), valu('v_lshlrev_b32', t0, 6, t0), valu('v_lshl_add_u32', t0, t1, 3, t0), valu('v_add_u32', tv, sT0, t0)]
        D = [blk(2, 0), blk(2, 1), blk(2, 2)]
        fr = lambda ks, i: (v(ACC[0] + 48 + 4*i, 4) if ks % 2 == 0 else v(T + 24 + 4*(i & 1), 4) if i < 2 else v(ACC[0] + 44, 4) if i == 2 else vHf[1])
        def rd(ks):
            X = []
            for z in range(2):
                o = (32*ks + 4*z)
                X += [dsr('ds_read_b64_tr_b16', fr(ks, 3).sub(2*z, 2), tv, o*64), dsr('ds_read_b64_tr_b16', fr(ks, 0).sub(2*z, 2), ta, o*80),
                      dsr('ds_read_b64_tr_b16', fr(ks, 1).sub(2*z, 2), ta, o*80 + 8), dsr('ds_read_b64_tr_b16', fr(ks, 2).sub(2*z, 2), tb_, o*80 + 64)]
            return X
        mm = lambda ks: [mfma(D[i], fr(ks, i), fr(ks, 3), 0 if ks == 0 else None) for i in range(3)]
        B += rd(0) + rd(1) + mm(0) + rd(2) + mm(1) + rd(3) + mm(2) + mm(3)
        C = []
        C += [salu('s_lshl_b32', sT0, sJ, 1), salu('s_add_u32', sT0, sT0, sC), salu('s_mul_i32', sT0, sT0, 49152), salu('s_lshl_b32', sT1, sM, 10), salu('s_add_u32', sT0, sT0, sT1),
              salu('s_mov_b32', sT2, OOB), glue(scmp('s_cmp_eq_u32', sR, 1), salu('s_cselect_b64', sMask, -1, 0)),
              valu('v_lshlrev_b32', t0, 4, vLane), valu('v_and_b32', t1, 15, vLane), valu('v_lshrrev_b32', t2, 4, vLane), valu('v_cmp_gt_u32', 'vcc', 3, t1),
              valu('v_mul_u32_u24', t2, 3, t2), valu('v_add_u32', t1, t1, t2), valu('v_lshlrev_b32', t1, 4, t1), valu('v_add_u32', t1, 32768 + 256, t1), valu('v_mov_b32', t2, sT2),
              valu('v_cndmask_b32', t1, t2, t1, 'vcc'),
              valu('v_cndmask_b32', ta, t0, t1, sMask), valu('v_add_u32', tb_, 16384, t0), valu('v_add_u32', tv, 192, t1), valu('v_cndmask_b32', tb_, tb_, tv, sMask),
              valu('v_add_u32', t0, 32768, t0), valu('v_add_u32', t1, 384, t1), valu('v_cndmask_b32', t0, t0, t1, sMask), valu('v_cmp_gt_u32', 'vcc', 16, vLane), valu('v_cndmask_b32', tv, t2, t0, 'vcc')]
        C += [vstore('buffer_store_dwordx4', D[0], ta, sKV, sT0, mods='sc1', tag='kv'), vstore('buffer_store_dwordx4', D[1], tb_, sKV, sT0, mods='sc1', tag='kv'),
              vstore('buffer_store_dwordx4', D[2], tv, sKV, sT0, mods='sc1', tag='kv')]
        return A, Q, B, C
    def flag(g, t0, t1):
        return [salu('s_lshl_b32', sT0, sJ, 2), salu('s_mov_b32', sT1, OOB), glue(scmp('s_cmp_eq_u32', sW, 0), salu('s_cselect_b32', sT0, sT0, sT1)),
                valu('v_mov_b32', t0, sT1), valu('v_cmp_eq_u32', 'vcc', 0, vLane), valu('v_mov_b32', t1, sT0), valu('v_cndmask_b32', t0, t0, t1, 'vcc'), valu('v_mov_b32', t1, 1),
                I(f"buffer_atomic_add {t1}, {t0}, {sDBG}, 0 offen", 'vst', [t0, t1, sDBG], [], tag='flag', dep=set())]
    def half_addrs(g):
        t0, t1, t2 = vJ
        g.dH0, g.dH1, g.rH, g.vHh = v(8), v(9), v(10), v(11)
        P = [salu('s_lshl_b32', sT0, sC, 4), valu('v_lshrrev_b32', t0, 2, vLane), valu('v_add_u32', t0, sT0, t0), valu('v_mul_u32_u24', t0, 9216, t0),
             valu('v_bfe_u32', t1, vLane, 1, 1), valu('v_lshrrev_b32', t2, 5, vLane), valu('v_xor_b32', t1, t1, t2), valu('v_lshl_add_u32', t0, t1, 5, t0),
             valu('v_and_b32', t1, 1, vLane), valu('v_lshl_add_u32', g.dH0, t1, 4, t0), valu('v_add_u32', g.dH1, 32*9216 - 1024, g.dH0),
             valu('v_lshrrev_b32', t0, 5, vLane), valu('v_lshlrev_b32', t0, 11, t0), valu('v_bfe_u32', t1, vLane, 4, 1), valu('v_lshl_add_u32', t0, t1, 9, t0),
             valu('v_xor_b32', t1, sC, t1), valu('v_lshl_add_u32', t0, t1, 5, t0), valu('v_bfe_u32', t1, vLane, 2, 2), valu('v_lshl_add_u32', t0, t1, 6, t0),
             valu('v_and_b32', t1, 3, vLane), valu('v_lshl_add_u32', t0, t1, 3, t0), valu('v_add_u32', g.rH, RING, t0),
             salu('s_lshl_b32', sT0, sR, 12), salu('s_lshl_b32', sT1, sC, 3), salu('s_add_u32', sT0, sT0, sT1), salu('s_add_u32', sT0, sT0, 65536),
             valu('v_lshlrev_b32', t0, 4, vLane), valu('v_add_u32', g.vHh, sT0, t0)]
        return P

    def kv_gather(g):
        t0, t1, t2 = vJ
        poll0 = [salu('s_lshl_b32', sT0, sJ, 2), valu('v_mov_b32', t0, sT0), vload('buffer_load_dword', t1, t0, sDBG, 0, mods='sc1')]
        spin = "\n".join(["s_cmp_ge_u32 s98, 16", "s_cbranch_scc1 L_kvok", "L_kvspin:", f"buffer_load_dword {t1}, {t0}, {sDBG}, 0 offen sc1", "s_waitcnt vmcnt(0)",
                          f"v_readfirstlane_b32 s98, {t1}", "s_nop 3", "s_cmp_ge_u32 s98, 16", "s_cbranch_scc0 L_kvspin", "L_kvok:"])
        spin = "\n".join(["s_cmp_lt_u32 s98, 16", "s_cbranch_scc1 L_kvspin", "L_kvok:"])
        g.tail = "\n".join(["L_kvspin:", "s_mov_b32 s3, 0x80000", "L_kvspin2:", f"buffer_load_dword {t1}, {t0}, {sDBG}, 0 offen sc1", "s_waitcnt vmcnt(0)",
                          f"v_readfirstlane_b32 s98, {t1}", "s_sub_u32 s3, s3, 1", "s_cmp_eq_u32 s3, 0", "s_cbranch_scc1 L_kvok", "s_nop 1", "s_cmp_lt_u32 s98, 16", "s_cbranch_scc1 L_kvspin2", "s_branch L_kvok"])
        poll1 = [valu('v_readfirstlane_b32', sT3, t1), raw(spin, 'salu', [sT3], [], cost=2)]
        buf = [v(T + 4*i, 4) for i in range(8)] + [v(232 + 4*i, 4) for i in range(6)]
        sM_, sE_ = v(224, 4), v(228, 4)
        pre = [salu('s_lshl_b32', sT0, sJ, 1), salu('s_add_u32', sT0, sT0, sC), salu('s_mul_i32', sT0, sT0, 49152), salu('s_lshl_b32', sT1, sR, 14), salu('s_add_u32', sT1, sT1, sT0),
               salu('s_lshl_b32', sT2, sR, 13), salu('s_add_u32', sT0, sT0, sT2), salu('s_add_u32', sT0, sT0, 32768),
               valu('v_lshlrev_b32', t0, 4, vLane), valu('v_min_u32', t1, 42*16, t0)]
        def ld(i, d):
            X = []
            if i < 16:
                if i % 4 == 0 and i: X += [salu('s_add_u32', sT1, sT1, 4096)]
                X += [vload('buffer_load_dwordx4', d, t0, sKV, sT1, off=(i % 4)*1024, mods='sc1')]
            else:
                if i == 20: X += [salu('s_add_u32', sT0, sT0, 4096)]
                X += [vload('buffer_load_dwordx4', d, t1, sKV, sT0, off=(i % 4)*1024, mods='sc1')]
            return X
        L1 = pre + ld(0, sM_) + sum([ld(i, buf[i - 1]) for i in range(1, 15)], [])
        add = lambda acc, d: [valu('v_add_f32', acc[k], acc[k], d[k]) for k in range(4)]
        L2 = []
        nxt = [15, 17, 18, 19, 20, 21, 22, 23]
        L2 += ld(16, sE_)
        for i in range(14):
            L2 += add(sM_, buf[i])
            if i < 8: L2 += ld(nxt[i], buf[i])
        L3 = add(sM_, buf[0]) + sum([add(sE_, buf[i]) for i in range(1, 8)], [])
        W = [salu('s_lshl_b32', sT0, sW, 0), salu('s_lshl_b32', sT0, sC, 11), salu('s_lshl_b32', sT1, sR, 10), salu('s_add_u32', sT0, sT0, sT1), salu('s_add_u32', sT0, sT0, KVM),
             valu('v_add_u32', t0, sT0, t0), salu('s_lshl_b32', sT0, sC, 1), salu('s_add_u32', sT0, sT0, sR), salu('s_mul_i32', sT0, sT0, 704), salu('s_add_u32', sT0, sT0, KVE),
             valu('v_add_u32', t1, sT0, t1), dsw('ds_write_b128', t0, sM_), dsw('ds_write_b128', t1, sE_)]
        return poll0, poll1, L1, L2, L3, W
    def o_part(g):
        t0, t1, t2 = vJ; P = []
        R_ = v(224, 12); A01, A11, A00, A10 = R_.sub(0, 4), R_.sub(2, 4), R_.sub(4, 4), R_.sub(8, 4)
        q = [v(T + 4*i, 4) for i in range(8)]; q2 = [v(64 + 4*i, 4) for i in range(2)]
        P += [salu('s_lshl_b32', sT0, sC, 11), salu('s_add_u32', sT0, sT0, KVM), valu('v_lshlrev_b32', t0, 4, vLane), valu('v_add_u32', t0, sT0, t0),
              dsr('ds_read_b128', q[0], t0, 0), dsr('ds_read_b128', q[1], t0, 1024),
              salu('s_mul_i32', sT0, sC, 1408), salu('s_add_u32', sT0, sT0, KVE), valu('v_and_b32', t0, 3, vLane), valu('v_min_u32', t0, 2, t0), valu('v_lshrrev_b32', t1, 4, vLane),
              valu('v_mul_u32_u24', t1, 3, t1), valu('v_add_u32', t1, t1, t0), valu('v_lshlrev_b32', t1, 4, t1), valu('v_add_u32', t1, sT0, t1),
              valu('v_lshlrev_b32', t0, 4, t0), valu('v_add_u32', t0, sT0, t0), valu('v_and_b32', t2, 15, vLane), valu('v_lshlrev_b32', t2, 4, t2), valu('v_add_u32', t2, sT0, t2)]
        P += [dsr('ds_read_b128', q[2], t1, 256), dsr('ds_read_b128', q[3], t1, 256 + 704), dsr('ds_read_b128', q[4], t1, 448), dsr('ds_read_b128', q[5], t1, 448 + 704),
              dsr('ds_read_b128', q[6], t2, 0), dsr('ds_read_b128', q[7], t2, 704), dsr('ds_read_b128', q2[0], t0, 640), dsr('ds_read_b128', q2[1], t0, 640 + 704)]
        E = [v(236 + i) for i in range(4)]; Bq = [v(72 + 4*i, 4) for i in range(4)]; B1 = [v(240 + 4*i, 4) for i in range(4)]
        P += [salu('s_lshl_b32', sT0, sR, 8), salu('s_add_u32', sT0, sT0, LOGIT), valu('v_and_b32', t0, 15, vLane), valu('v_lshlrev_b32', t1, 2, t0), valu('v_add_u32', t1, sT0, t1)]
        P += [dsr('ds_read_b32', E[tb], t1, 64*tb) for tb in range(4)]
        P += [valu('v_lshlrev_b32', t1, 2, vLane), valu('v_add_u32', t1, sT0, t1), dsr('ds_read_b32', v(88), t1, 0)]
        P += [salu('s_mul_i32', sT0, sW, 5120), salu('s_add_u32', sT0, sT0, PHIQ), valu('v_mul_u32_u24', t0, 80, t0), valu('v_add_u32', t0, sT0, t0),
              valu('v_lshrrev_b32', t1, 4, vLane), valu('v_lshl_add_u32', t1, t1, 4, t0)]
        for tb in range(4): P += [dsr('ds_read_b128', Bq[tb], t1, 1280*tb), dsr('ds_read_b64', B1[tb].sub(0, 2), t0, 1280*tb + 64)]
        cv = lambda d, x: [valu('v_cvt_pk_bf16_f32', d[0], x[0], x[1]), valu('v_cvt_pk_bf16_f32', d[1], x[2], x[3])]
        add = lambda x, y: [valu('v_add_f32', x[k], x[k], y[k]) for k in range(4)]
        P += cv(A00.sub(0, 2), q[0]) + cv(A00.sub(2, 2), q[1]) + add(q[2], q[3]) + add(q[4], q[5]) + add(q[6], q[7]) + add(q2[0], q2[1])
        P += cv(A10.sub(0, 2), q[2]) + cv(A10.sub(2, 2), q[4]) + cv(A01.sub(0, 2), q[6]) + cv(A11.sub(0, 2), q2[0])
        P += [valu('v_cmp_gt_u32', 'vcc', 16, vLane), salu('s_mov_b32', sT2, '0x42700000')]
        for tb in range(4):
            P += [valu('v_cndmask_b32', B1[tb][0], 0, B1[tb][0], 'vcc'), valu('v_cndmask_b32', B1[tb][1], 0, B1[tb][1], 'vcc'), valu('v_mov_b32', B1[tb][2], 0), valu('v_mov_b32', B1[tb][3], 0),
                  valu('v_min_f32', E[tb], sT2, E[tb]), valu('v_mul_f32', E[tb], sL, E[tb]), valu('v_exp_f32', E[tb], E[tb])]
        o0 = [q[2*tb] for tb in range(4)]; o1 = [q[2*tb + 1] for tb in range(4)]
        for tb in range(4): P += [mfma(o0[tb], A00, Bq[tb], 0), mfma(o1[tb], A10, Bq[tb], 0)]
        for tb in range(4): P += [mfma(o0[tb], A01, B1[tb]), mfma(o1[tb], A11, B1[tb])]
        sv = v(88)
        P += [valu('v_min_f32', sv, sT2, sv), valu('v_mul_f32', sv, sL, sv), valu('v_exp_f32', sv, sv), salu('s_lshl_b32', sT0, sM, 9), salu('s_lshl_b32', sT1, sR, 8), salu('s_add_u32', sT0, sT0, sT1),
              valu('v_add_f32', sv, 1.0, sv), salu('s_add_u32', sT0, sT0, WS_SC), salu('s_or_b32', sT1, sJ, sC), valu('v_rcp_f32', sv, sv),
              glue(scmp('s_cmp_eq_u32', sT1, 0), salu('s_cselect_b32', sT0, sT0, OOB)), valu('v_lshlrev_b32', t2, 2, vLane), valu('v_add_u32', t2, sT0, t2),
              vstore('buffer_store_dword', sv, t2, sPART, 0)]
        P += [salu('s_mul_i32', sT0, sW, 5120), salu('s_add_u32', sT0, sT0, PHIQ), valu('v_lshlrev_b32', t0, 3, vLane), valu('v_add_u32', t0, sT0, t0),
              valu('v_lshlrev_b32', t1, 2, vLane), valu('v_add_u32', t1, sT0, t1), salu('s_mov_b32', sT2, '0x358637bd')]
        for tb in range(4): P += [valu('v_add_f32', o1[tb][2], sT2, o1[tb][2])]
        for tb in range(4): P += [valu('v_rcp_f32', o1[tb][2], o1[tb][2])]
        for tb in range(4): P += [valu('v_mul_f32', E[tb], E[tb], o1[tb][2])]
        for tb in range(4):
            P += [valu('v_mul_f32', o0[tb][k], o0[tb][k], E[tb]) for k in range(4)] + [valu('v_mul_f32', o1[tb][k], o1[tb][k], E[tb]) for k in range(2)]
            P += cv(o0[tb], o0[tb]) + [valu('v_cvt_pk_bf16_f32', o1[tb][0], o1[tb][0], o1[tb][1]), dsw('ds_write_b64', t0, o0[tb].sub(0, 2), 512*tb),
                  valu('v_cndmask_b32', o1[tb][0], 0, o1[tb][0], 'vcc'), dsw('ds_write_b32', t1, o1[tb][0], 2048 + 256*tb)]
        return P
    def hf(g, ks, tb): return a((ks*4 + tb)*4, 4)
    def h_reads(g, kss, vH, vH8):
        return [dsr('ds_read_b128', g.hf(ks, tb), vH8 if ks == 8 else vH, (0 if ks == 8 else ks*8192) + tb*1024) for ks in kss for tb in range(4)]
    def o_reads(g):
        t0, t1, t2 = vJ
        P = [salu('s_mul_i32', sT0, sR, 10240), salu('s_add_u32', sT0, sT0, PHIQ), valu('v_lshlrev_b32', t0, 3, vLane), valu('v_add_u32', t0, sT0, t0),
             valu('v_lshlrev_b32', t1, 2, vLane), valu('v_add_u32', t1, sT0, t1)]
        Rd = []
        for tb in range(4):
            Rd += [dsr('ds_read_b64', g.hf(9, tb).sub(0, 2), t0, 512*tb), dsr('ds_read_b64', g.hf(9, tb).sub(2, 2), t0, 5120 + 512*tb),
                   dsr('ds_read_b32', g.hf(10, tb)[0], t1, 2048 + 256*tb), dsr('ds_read_b32', g.hf(10, tb)[1], t1, 5120 + 2048 + 256*tb)]
            P += [valu('v_accvgpr_write_b32', g.hf(10, tb)[2], 0), valu('v_accvgpr_write_b32', g.hf(10, tb)[3], 0)]
        return P, Rd
    def g2_dma_addrs(g):
        t0, t1, t2 = vJ
        g.dW2 = [v(12 + i) for i in range(4)]; g.dO9 = v(1); g.dO10 = v(8)
        P = [valu('v_bfe_u32', t1, vLane, 1, 2), valu('v_lshrrev_b32', t2, 4, vLane), valu('v_xor_b32', t1, t1, t2), valu('v_lshlrev_b32', t1, 5, t1),
             valu('v_and_b32', t2, 1, vLane), valu('v_lshl_add_u32', t1, t2, 4, t1),
             salu('s_lshl_b32', sT0, sW, 3), valu('v_lshrrev_b32', t0, 3, vLane), valu('v_add_u32', t2, sT0, t0), valu('v_mul_u32_u24', t2, 1152, t2), valu('v_add_u32', g.dW2[0], t2, t1)]
        P += [valu('v_add_u32', g.dW2[q], 35840*q, g.dW2[0]) for q in range(1, 4)]
        P += [salu('s_mul_i32', sT0, sR, 2304), salu('s_add_u32', sT0, sT0, 1024), valu('v_add_u32', g.dO9, sT0, g.dW2[0]),
              valu('v_and_b32', t0, 3, t0), valu('v_lshrrev_b32', t2, 1, t0), valu('v_lshl_add_u32', t0, t2, 4, t0), valu('v_add_u32', t0, 16, t0), valu('v_mul_u32_u24', t0, 1152, t0),
              valu('v_add_u32', g.dO10, t0, t1),
              salu('s_mul_i32', sColF, sRowF, 1152), salu('s_mul_i32', sRowH, sRowH, 1152), salu('s_mul_i32', sOffX, sJ, 41472), salu('s_mul_i32', sMx, sW, WST)]
        return P
    def g2_dma(g, n, sub):
        st = ST[n % 3]; tg = ('g2', n, sub); d = g.dW2
        if sub == 0:
            return [salu('s_add_u32', 'm0', sMx, st), salu('s_add_u32', sOff, sColF, n*128)] + [dma(d[q], sW2, sOff, off=q*1024, tag=tg) for q in range(4)] + \
                   [salu('s_add_u32', 'm0', sMx, st + 4096), salu('s_add_u32', sOff, sColF, n*128 + 147456)] + [dma(d[q], sW2, sOff, off=q*1024, tag=tg) for q in range(2)]
        return [salu('s_add_u32', 'm0', sMx, st + 4096), salu('s_add_u32', sOff, sColF, n*128 + 147456)] + [dma(d[q], sW2, sOff, off=q*1024, tag=tg) for q in (2, 3)] + \
               [salu('s_add_u32', 'm0', sMx, st + 8192), salu('s_add_u32', sOff, sRowH, n*128), dma(d[0], sW2, sOff, tag=tg),
                salu('s_add_u32', sOff, sOffX, n*128), dma(g.dO9, sWO, sOff, off=1024, tag=tg), dma(g.dO10, sWO, sOff, off=2048, tag=tg)]
    def g2_rd_addrs(g):
        t0, t1, t2 = vJ
        g.r2 = [[v(16 + 2*i + e) for e in range(2)] for i in range(3)]; g.r10 = [[v(22 + 2*i + e) for e in range(2)] for i in range(3)]
        g.vP = [v(28 + i) for i in range(4)]
        t3 = v(2)
        P = [valu('v_lshrrev_b32', t0, 5, vLane), valu('v_mul_u32_u24', t0, WST, t0), valu('v_bfe_u32', t1, vLane, 2, 3), valu('v_lshl_add_u32', t0, t1, 7, t0),
             valu('v_and_b32', t2, 3, vLane), valu('v_lshl_add_u32', t0, t2, 3, t0), valu('v_lshrrev_b32', t1, 1, t1), salu('s_lshl_b32', sT1, sC, 1), valu('v_xor_b32', t1, sT1, t1),
             valu('v_lshlrev_b32', t1, 5, t1), valu('v_xor_b32', t3, 32, t1), valu('v_add_u32', g.r2[1][0], t0, t1), valu('v_add_u32', g.r2[1][1], t0, t3),
             valu('v_bfe_u32', t1, vLane, 2, 2), valu('v_lshlrev_b32', t0, 7, t1), valu('v_lshl_add_u32', t0, t2, 3, t0), valu('v_lshrrev_b32', t1, 1, t1), valu('v_xor_b32', t1, sT1, t1),
             valu('v_lshlrev_b32', t1, 5, t1), valu('v_xor_b32', t3, 32, t1), salu('s_add_u32', sT0, sMx, 10240), valu('v_add3_u32', g.r10[1][0], t0, t1, sT0), valu('v_add3_u32', g.r10[1][1], t0, t3, sT0)]
        for i in (0, 2):
            for e in range(2): P += [valu('v_add_u32', g.r2[i][e], ST[i], g.r2[1][e]), valu('v_add_u32', g.r10[i][e], ST[i], g.r10[1][e])]
        P += [salu('s_mul_i32', sT0, sM, 144), salu('s_lshl_b32', sT1, sC, 3), salu('s_add_u32', sT0, sT0, sT1), salu('s_lshl_b32', sT1, sR, 2), salu('s_add_u32', sT0, sT0, sT1),
              salu('s_lshl_b32', sT0, sT0, 4), salu('s_add_u32', sT0, sT0, sJ), salu('s_lshl_b32', sT0, sT0, 10), valu('v_lshlrev_b32', t0, 4, vLane), valu('v_add_u32', g.vP[0], sT0, t0)]
        P += [valu('v_add_u32', g.vP[i], 16384*i, g.vP[0]) for i in range(1, 4)]
        return P
    def w2f(g, q, e): return v(WF + (q % 4)*8 + e*4, 4)
    def g2_reads(g, q):
        n, ks = divmod(q, 11); X = []
        for e in range(2):
            f = g.w2f(q, e)
            if ks == 10: X.append([dsr('ds_read_b64_tr_b16', f.sub(0, 2), g.r10[n % 3][e], 0)])
            else: X.append([dsr('ds_read_b64_tr_b16', f.sub(2*z, 2), g.r2[n % 3][e], ks*1024 + z*2*WST) for z in range(2)])
        return X
    def acc2(g, n, e, tb): return v(128 + (n % 2)*32 + (e*4 + tb)*4, 4)
    def g2_epi(g, n):
        P = [salu('s_mov_b32', sT3, n*262144)]
        for tb in range(4):
            d = v(96 + (n % 2)*16 + tb*4, 4)
            for e in range(2):
                x = g.acc2(n, e, tb)
                P += [valu('v_cvt_pk_bf16_f32', d[2*e], x[0], x[1]), valu('v_cvt_pk_bf16_f32', d[2*e + 1], x[2], x[3])]
            P += [vstore('buffer_store_dwordx4', d, g.vP[tb], sPART, sT3, tag='part')]
        return P
    def gemm2(g):
        mf = []; af = {}; bf = {}; st = []
        ad = lambda dct, i, x: dct.setdefault(i, []).extend(x)
        for q in range(99):
            n, ks = divmod(q, 11); b = 8*q
            for e in range(2):
                for i in range(4):
                    tb = i if e == 0 else 3 - i
                    mf.append(mfma(g.acc2(n, e, tb), g.w2f(q, e), g.hf(ks, tb), 0 if ks == 0 else None))
            if q + 2 < 99:
                X = g.g2_reads(q + 2)
                for e in range(2):
                    for z, x in enumerate(X[e]): ad(af, b + 4*e + 2*z + 1, [x])
            if ks == 4:
                ad(bf, b, [wait_vm(('g2', n, 1)), barrier()])
                if n + 2 < 9: st.append((g.g2_dma(n + 2, 1), b, b + 40))
            if ks == 9 and n + 1 < 9:
                ad(bf, b, [wait_vm(('g2', n + 1, 0)), barrier()])
                if n + 3 < 9: st.append((g.g2_dma(n + 3, 0), b, b + 48))
            if ks == 0 and n > 0: st.append((g.g2_epi(n - 1), b + 2, b + 32))
        st.insert(0, (g.g2_dma(1, 0) + g.g2_dma(1, 1) + g.g2_dma(2, 0), 0, 32))
        return weave(mf, af, bf, st) + g.g2_epi(8)
    def main(g):
        P = g.prologue()
        P += g.stamp()
        P += [wait_vm(('w', 0), ('w', 1), ('x', 0)), barrier()]
        for pre, r0, r1 in g.readsW(0): P += [r0, r1]
        P += g.readsX(0)
        P += g.stamp()
        hA = g.half_addrs()
        phL, phP = g.phiA_loads()
        pf = g.pf
        mf, af, bf = g.phase1(0); P += weave(mf, af, bf, [(g.prefetchQ() if pf else [], 96, 128), (g.gate_late + [wait_ds()], 200, 230)]) + g.stamp()
        mf, af, bf = g.phase1(1); P += weave(mf, af, bf, [(g.silu(0, 0), 4, 288), ((g.prefetch13(2) if pf else []) + phL, 100, 200)]) + g.stamp()
        mf, af, bf = g.phase1(2); P += weave(mf, af, bf, [(g.silu(1, 1), 4, 288), (phP + (g.prefetch13(3) if pf else []), 100, 200)]) + g.stamp()
        A, Q, B, C = g.attn_post()
        mf, af, bf = g.phase1(3)
        P += weave(mf, af, bf, [(A + [wait_ds()], 4, 176), (B + C, 176, 224), (Q, 224, 288)]) + g.stamp()
        mf, af, bf = g.phase1(4)
        bf[16].insert(0, wait_vm('kv'))
        P += weave(mf, af, bf, [(g.silu(1, 2), 4, 288), (g.flag(vJ[0], vJ[1]) + (g.prefetch13(4) + g.prefetch2(v(T), v(T+1), v(T+2)) if pf else []) + hA, 16, 100)]) + g.stamp()
        poll0, poll1, L1, L2, L3, W = g.kv_gather()
        mf, af, bf = g.phase1(5)
        vH, vH8 = v(2), v(3)
        hr = [valu('v_lshlrev_b32', v(9), 4, vLane), salu('s_lshl_b32', sT0, sR, 12), valu('v_add_u32', vH, sT0, v(9)), valu('v_add_u32', vH8, 65536, vH)]
        P += weave(mf, af, bf, [(g.silu(0, 3), 4, 144), (poll0, 0, 8), (poll1, 36, 40), (L1, 48, 72), (L2, 84, 112), (L3 + W, 116, 144)])
        P += g.g2_dma_addrs() + g.g2_dma(0, 0) + g.g2_dma(0, 1) + g.stamp()
        P += hr + [wait_ds(), barrier()] + g.h_reads(range(0, 8), vH, vH8)
        P += g.o_part() + g.silu(1, 4)
        oa, orr = g.o_reads()
        P += g.g2_rd_addrs() + oa + [wait_ds(), wait_vm(('g2', 0, 0)), barrier()] + g.h_reads([8], vH, vH8) + orr
        for q in range(2):
            for x in g.g2_reads(q): P += x
        P += [wait_dsall(), barrier()] + g.stamp()
        P += g.gemm2() + g.stamp()
        rep = {}
        F = finalize(P, report=rep)
        print(rep, file=sys.stderr)
        return text(F) + "\ns_endpgm\n" + g.tail + "\nL_end:"

def reduce_kernel():
    P = []
    A = P.append
    A("s_cmp_ge_u32 s2, 576"); A("s_cbranch_scc1 L_rend")
    A("s_load_dwordx2 s[4:5], s[0:1], 72"); A("s_load_dwordx2 s[6:7], s[0:1], 88")
    A("v_lshrrev_b32 v1, 6, v0"); A("v_and_b32 v0, 63, v0"); A("s_lshl_b32 s3, s2, 2"); A("v_readfirstlane_b32 s16, v1"); A("s_nop 3")
    A("s_add_u32 s3, s3, s16")
    A("s_lshl_b32 s17, s3, 14"); A("v_lshlrev_b32 v2, 4, v0")
    A("s_mul_hi_u32 s18, s3, 29826162")
    A("s_mul_i32 s19, s18, 144"); A("s_sub_u32 s19, s3, s19")
    A("s_and_b32 s20, s19, 7"); A("s_lshr_b32 s21, s19, 3")
    A("s_lshl_b32 s18, s18, 7"); A("s_lshl_b32 s20, s20, 4"); A("s_add_u32 s18, s18, s20")
    A("v_and_b32 v3, 15, v0"); A("v_add_u32 v3, s18, v3")
    A("s_waitcnt lgkmcnt(0)")
    A("s_mov_b32 s8, s6"); A("s_mov_b32 s9, s7"); A(f"s_mov_b32 s10, {64<<20}"); A("s_mov_b32 s11, 0x20000")
    A("s_mov_b32 s12, s4"); A("s_mov_b32 s13, s5"); A(f"s_mov_b32 s14, {2048*1152}"); A("s_mov_b32 s15, 0x20000")
    for j in range(16):
        if j % 4 == 0 and j: A("s_add_u32 s17, s17, 4096")
        A(f"buffer_load_dwordx4 v[{16+4*j}:{19+4*j}], v2, s[8:11], s17 offen offset:{(j%4)*1024}")
    A("v_lshlrev_b32 v4, 2, v3"); A(f"s_mov_b32 s22, {WS_SC}"); A("buffer_load_dword v5, v4, s[8:11], s22 offen")
    A("v_mul_u32_u24 v3, 1152, v3"); A("v_bfe_u32 v6, v0, 4, 1"); A("v_lshl_add_u32 v3, v6, 5, v3"); A("v_lshrrev_b32 v6, 5, v0"); A("v_lshl_add_u32 v3, v6, 4, v3")
    A("s_lshl_b32 s21, s21, 6"); A("s_mov_b32 s23, 0xffff0000")
    for j in range(16):
        A(f"s_waitcnt vmcnt({16-j})")
        for k in range(4):
            r = 16 + 4*j + k
            if j == 0: A(f"v_lshlrev_b32 v{8+2*k}, 16, v{r}"); A(f"v_and_b32 v{9+2*k}, s23, v{r}")
            else:
                A(f"v_lshlrev_b32 v6, 16, v{r}"); A(f"v_and_b32 v7, s23, v{r}"); A(f"v_add_f32 v{8+2*k}, v{8+2*k}, v6"); A(f"v_add_f32 v{9+2*k}, v{9+2*k}, v7")
    A("s_waitcnt vmcnt(0)")
    for k in range(8): A(f"v_mul_f32 v{8+k}, v{8+k}, v5")
    for k in range(4): A(f"v_cvt_pk_bf16_f32 v{16+k}, v{8+2*k}, v{9+2*k}")
    A("s_nop 1"); A("v_permlane16_swap_b32 v16, v18"); A("v_permlane16_swap_b32 v17, v19")
    A("buffer_store_dwordx4 v[16:19], v3, s[12:15], s21 offen")
    A("L_rend:")
    return "\n".join(P)

def build(**kw):
    g = G(**kw)
    body = g.main()
    hdr = "; gated mix: fused hedgehog linear attention + SwiGLU FFN, generated by gen.py (hand-written generator)\n"
    hdr += "; @launch kernel=fused_kernel grid=(256,1,1) block=(256,1,1) lds=163840\n; @launch kernel=reduce_kernel grid=(576,1,1) block=(256,1,1) lds=0\n"
    hdr += '.amdgcn_target "amdgcn-amd-amdhsa--gfx950"\n'
    return hdr + kernel_text("fused_kernel", body, vgpr=256, agpr=256) + kernel_text("reduce_kernel", reduce_kernel(), vgpr=80, sgpr=32)
if __name__ == "__main__":
    kw = {}
    out = sys.argv[1]
    for x in sys.argv[2:]:
        k, val = x.split("="); kw[k] = eval(val)
    open(out, "w").write(build(**kw))
```

```python
import re

def R(kind, a, n=1):
    return {(kind, a + i) for i in range(n)}
def V(a, n=1): return R('v', a, n)
def A_(a, n=1): return R('a', a, n)
def S(a, n=1): return R('s', a, n)
def rs(kind, a, n):
    return f"{kind}{a}" if n == 1 else f"{kind}[{a}:{a+n-1}]"
class Reg:
    def __init__(s, kind, a, n=1): s.k, s.a, s.n = kind, a, n
    def __str__(s): return rs(s.k, s.a, s.n)
    def set(s): return R(s.k, s.a, s.n)
    def sub(s, off, n=1):
        assert off + n <= s.n
        return Reg(s.k, s.a + off, n)
    def __getitem__(s, i): return s.sub(i, 1)
def v(a, n=1): return Reg('v', a, n)
def a(a_, n=1): return Reg('a', a_, n)
def s(a_, n=1): return Reg('s', a_, n)

class I:
    __slots__ = ('t', 'k', 'rd', 'wr', 'cost', 'tag', 'srcc', 'dep', 'wide', 'space')
    def __init__(x, t, k, rd=(), wr=(), cost=1, tag=None, srcc=None, dep=None, wide=False):
        x.t, x.k, x.cost, x.tag, x.dep, x.wide = t, k, cost, tag, dep, wide
        x.rd = set().union(*[r.set() if isinstance(r, Reg) else r for r in rd]) if rd else set()
        x.wr = set().union(*[r.set() if isinstance(r, Reg) else r for r in wr]) if wr else set()
        x.srcc = srcc; x.space = None

TRANS = ('v_exp_f32', 'v_rcp_f32', 'v_log_f32', 'v_rsq_f32', 'v_sqrt_f32')
def _regs(ops): return [o for o in ops if isinstance(o, Reg)]
def valu(op, dst, *src, mods=''):
    k = 'trans' if op in TRANS else 'valu'
    rd = _regs(src); wr = [dst] if isinstance(dst, Reg) else []
    txt = f"{op} {dst}, " + ", ".join(str(x) for x in src) + (" " + mods if mods else "")
    if op.startswith('v_fmac') : rd = rd + [dst]
    extra_rd = set(); extra_wr = set()
    if 'vcc' in [str(x) for x in src]: extra_rd = {('s', 'vcc')}
    if str(dst) == 'vcc': extra_wr = {('s', 'vcc')}
    return I(txt, k, rd + [extra_rd], wr + [extra_wr], cost=2 if k == 'trans' else 1)
class Neg:
    def __init__(s, r): s.r = r
def vneg(op, dst, *src):
    rd = []; t = []
    for x in src:
        if isinstance(x, tuple): rd.append(x[0]); t.append(f"-{x[0]}")
        else:
            if isinstance(x, Reg): rd.append(x)
            t.append(str(x))
    k = 'trans' if op in TRANS else 'valu'
    return I(f"{op} {dst}, " + ", ".join(t), k, rd, [dst], cost=2 if k == 'trans' else 1)
def perm(op, x, y): return I(f"{op} {x}, {y}", 'perm', [x, y], [x, y])
def salu(op, dst, *src):
    wr = [dst] if isinstance(dst, Reg) else ([{('s', 'm0')}] if dst == 'm0' else ([{('s','exec')}] if dst == 'exec' else []))
    return I(f"{op} {dst}, " + ", ".join(str(x) for x in src), 'salu', _regs(src), wr)
def scmp(op, x, y): return I(f"{op} {x}, {y}", 'salu', _regs([x, y]), [])
def mfma(d, A, B, c=None):
    cc = d if c is None else c
    rd = [A, B] + ([cc] if isinstance(cc, Reg) else [])
    return I(f"v_mfma_f32_16x16x32_bf16 {d}, {A}, {B}, {cc}", 'mfma', rd, [d], cost=2, srcc=(cc if isinstance(cc, Reg) else None))
def dsr(op, dst, addr, off=0, tag=None):
    assert 0 <= off < 65536, off
    return I(f"{op} {dst}, {addr}" + (f" offset:{off}" if off else ""), 'dsr', [addr], [dst], tag=tag)
def dsw(op, addr, data, off=0):
    assert 0 <= off < 65536, off
    return I(f"{op} {addr}, {data}" + (f" offset:{off}" if off else ""), 'dsw', [addr, data], [])
def dsw2(addr, d0, d1, o0, o1):
    return I(f"ds_write2_b32 {addr}, {d0}, {d1} offset0:{o0} offset1:{o1}", 'dsw', [addr, d0, d1], [])
def dma(voff, srd, soff, off=0, tag=None):
    assert 0 <= off < 4096
    return I(f"buffer_load_dwordx4 {voff}, {srd}, {soff} offen" + (f" offset:{off}" if off else "") + " lds", 'dma',
             _regs([voff, srd, soff]) + [{('s', 'm0')}], [], tag=tag)
def vload(op, dst, voff, srd, soff=0, off=0, mods='', tag=None, rmw=False, lat=40):
    assert 0 <= off < 4096
    return I(f"{op} {dst}, {voff}, {srd}, {soff} offen" + (f" offset:{off}" if off else "") + (" " + mods if mods else ""), 'vld',
             _regs([voff, srd, soff]) + ([dst] if rmw else []), [dst], tag=tag, dep=lat)
def vstore(op, data, voff, srd, soff=0, off=0, mods='', tag=None):
    assert 0 <= off < 4096
    return I(f"{op} {data}, {voff}, {srd}, {soff} offen" + (f" offset:{off}" if off else "") + (" " + mods if mods else ""), 'vst',
             _regs([data, voff, srd, soff]), [], tag=tag, wide=(data.n >= 3), dep=data.set())
def wait_vm(*tags): return I('', 'wvm', dep=tags, cost=1)
def wait_ds(): return I('', 'wds', cost=1)
def wait_rd(tag): return I('', 'wrd', dep=tag, cost=1)
def wait_dsall(): return I('s_waitcnt lgkmcnt(0)', 'wdsall', cost=1)
def barrier(): return I('s_barrier', 'bar', cost=1)
def raw(t, k='salu', rd=(), wr=(), cost=1): return I(t, k, rd, wr, cost)
def glue(*xs):
    y = I("\n".join(x.t for x in xs), 'salu', [set().union(*[x.rd for x in xs])], [set().union(*[x.wr for x in xs])], cost=sum(x.cost for x in xs))
    return y
def spaced(xs, name, d, kinds=('vst', 'vld', 'dma')):
    for x in xs:
        if x.k in kinds: x.space = (name, d)
    return xs
def label(n): return I(n + ':', 'label', cost=0)
def comment(t): return I('; ' + t, 'label', cost=0)

def weave(mf, fixed_after, fixed_before, streams, cap=2):
    n = len(mf)
    after = {i: list(fixed_after.get(i, [])) for i in range(n)}
    used = [sum(x.cost for x in after[i]) + sum(x.cost for x in fixed_before.get(i + 1, [])) for i in range(n)]
    for insts, lo, hi in streams:
        hi = min(hi, n)
        tot = sum(x.cost for x in insts)
        if tot == 0 and not insts: continue
        L = cap
        free = lambda L: sum(max(0.0, L - used[i]) for i in range(lo, hi))
        if free(L) < tot:
            while free(L) < tot: L += 0.125
            w = [max(0.0, L - used[i]) for i in range(lo, hi)]
        else:
            f = free(L); w = [max(0.0, L - used[i]) * tot / f for i in range(lo, hi)]
        acc = 0.0; done = 0.0; q = list(insts);
        for g in range(lo, hi):
            acc += w[g - lo]
            while q and (done + q[0].cost * 0.5 <= acc + 1e-9 or g == hi - 1):
                x = q.pop(0); after[g].append(x); done += x.cost; used[g] += x.cost
    out = []
    for i in range(n):
        out += fixed_before.get(i, [])
        out.append(mf[i]); out += after[i]
    return out


RANK = {'nop':0,'wrd':0,'salu':0,'wait':0,'wvm':0,'wds':0,'wdsall':0,'bar':0,'label':0,'dsr':1,'vld':1,'dma':1,'vst':1,'dsw':1,'valu':2,'trans':2,'perm':2,'mfma':3}
class Gap:
    def __init__(g, m): g.m = m; g.s = []; g.v = []
    def vused(g): return sum(1 if x.k in ('dsr', 'vld', 'valu') else 2 for x in g.v) + (2 if any(x.k == 'bar' for x in g.s) else 0)
    def sused(g): return sum(x.cost for x in g.s) + (1 if any(x.k == 'dma' for x in g.v) else 0)
    def fits(g, x):
        r = RANK[x.k]
        if r == 0:
            if x.k == 'label': return True
            if x.k == 'bar': return g.sused() == 0 and g.vused() == 0
            return g.sused() == 0
        if x.k == 'dma': return g.vused() == 0 and g.sused() == 0
        if x.k in ('dsr', 'vld'): return g.vused() == 0 or (g.vused() == 1 and g.v[0].k == 'valu')
        if x.k == 'valu': return g.vused() <= 1
        return g.vused() == 0
    def put(g, x):
        (g.s if RANK[x.k] == 0 else g.v).append(x)
    def emit(g):
        return ([g.m] if g.m is not None else []) + g.s + [x for x in g.v if RANK[x.k] == 1] + [x for x in g.v if RANK[x.k] == 2]
def vcost(x): return 0 if RANK[x.k] in (0, 3) else (1 if x.k in ('dsr', 'vld', 'valu') else 2)
def _ord(x):
    rd, wr = set(x.rd), set(x.wr)
    if x.k in ('dsr', 'dsw', 'wds', 'wdsall', 'wrd'): wr.add(('o', 'ds'))
    if x.k in ('vld', 'vst', 'dma', 'wvm'): wr.add(('o', 'vm'))
    if x.space: wr.add(('o', x.space[0]))
    if x.k in ('bar', 'label') or 'cbranch' in x.t: wr |= {('o', 'ds'), ('o', 'vm')}
    return rd, wr
def lat(p, x, reg):
    pk, k = p.k, x.k
    if reg[0] == 'o':
        if x.space and reg[1] == x.space[0]: return x.space[1]
        if k == 'wds' and pk == 'dsw': return 4
        if k == 'wdsall': return 6
        return 0
    if pk == 'dsr': return 7
    if pk == 'vld': return 0 if (p.tag == 'pf' and x.tag == 'pf') else p.dep if isinstance(p.dep, int) else 40
    if pk == 'mfma': return 0 if (k == 'mfma' and x.srcc is not None and reg in x.srcc.set()) else 4
    if pk in ('valu', 'trans', 'perm'):
        if reg[0] == 's': return 3 if RANK[k] == 1 else 2
        if k == 'perm': return 2 if pk == 'perm' else 1
        if k == 'mfma' or pk != 'valu' or 'readfirstlane' in x.t: return 1
        return 0
    return 0
def pack(mf, fixed, streams, window=14, rep=None):
    n = len(mf); gaps = [Gap(m) for m in mf]
    for i, xs in fixed.items():
        for x in xs: gaps[i].put(x)
    free = [max(0, 2 - g.vused()) for g in gaps]
    suff = [0]*(n + 1)
    for i in range(n - 1, -1, -1): suff[i] = suff[i + 1] + free[i]
    st = [dict(q=[(x,) + _ord(x) for x in insts], lo=lo, hi=min(hi, n)) for insts, lo, hi in streams]
    wt = {}; rt = {}; out = []; t = 0; over = 0
    def ready(sq, k, g):
        x, rd, wr = sq[k]
        for (y, yr, yw) in sq[:k]:
            if (rd & yw) or (wr & yr) or (wr & yw): return False
        for r in rd | wr:
            if r in wt:
                tp, p = wt[r]; L = lat(p, x, r) if (r in rd or r[0] == 'o' or p.k in ('dsr', 'vld', 'mfma')) else 0
                if RANK[x.k] < RANK[p.k] and p.k != 'mfma': L = max(L, 1)
                if t < tp + L: return False
        for r in wr:
            if r in rt:
                tp, p = rt[r]
                if RANK[x.k] < RANK[p.k] and p.k != 'mfma' and t < tp + 1: return False
        return True
    def note(x, rd, wr):
        for r in rd: rt[r] = (t, x)
        for r in wr: wt[r] = (t, x)
    for i in range(n):
        g = gaps[i]
        act = [S_ for S_ in st if S_['lo'] <= i < S_['hi'] and S_['q']]
        while True:
            prog = True
            while prog:
                prog = False
                for S_ in act:
                    q = S_['q']
                    for k in range(min(window, len(q))):
                        x = q[k][0]
                        if x.k != 'mfma' and g.fits(x) and ready(q, k, g):
                            g.put(x); note(*q[k]); q.pop(k); prog = True; break
                    if prog: break
            for S_ in act:
                q = S_['q']
                same = [U for U in st if U['hi'] <= S_['hi'] and U['lo'] <= i]
                rem = sum(vcost(y[0]) for U in same for y in U['q']); cap = suff[i + 1] - suff[S_['hi']]
                if 'ov' not in S_: S_['ov'] = max(0, rem - cap); S_['i0'] = i
                allowed = S_['ov'] * (S_['hi'] - 1 - i) / max(1, S_['hi'] - S_['i0'])
                while q and rem - cap > allowed:
                    kk = next((k for k in range(min(window, len(q))) if q[k][0].k != 'mfma' and (RANK[q[k][0].k] != 1 or not any(RANK[y.k] == 1 for y in g.v)) and ready(q, k, g)), None)
                    if kk is None: break
                    x = q[kk][0]; g.put(x); note(*q[kk]); q.pop(kk); rem -= vcost(x); over += vcost(x)
            out += g.emit(); t += 1
            nxt = None
            for S_ in act:
                q = S_['q']
                for k in range(min(window, len(q))):
                    if q[k][0].k == 'mfma' and ready(q, k, g): nxt = (q, k); break
                if nxt: break
            if not nxt: break
            q, k = nxt; g = Gap(q[k][0]); note(*q[k]); q.pop(k)
        for S_ in act:
            if i == S_['hi'] - 1 and S_['q']:
                over += sum(vcost(y[0]) for y in S_['q']); left = len(S_['q'])
                if rep is not None: rep.append(f"flush {left} at {i}")
                out += [y[0] for y in S_['q']]; S_['q'] = []
    if rep is not None: rep.append(f"overflow {over}")
    return out

LOOSE = False
def finalize(prog, ds_slack=6, report=None):
    waited = set()
    for x in prog:
        if x.k == 'wvm': waited |= {t for t in x.dep if isinstance(t, tuple) or t in ('kv', 'h1', 'h2', 'ph1', 'ph2')}
        elif x.k in ('dma', 'vst', 'vld') and x.tag in waited: raise AssertionError(f"{x.tag} issued after its wait: {x.t}")
    out = []
    vm = []
    ds = []
    hist = []
    pos = 0
    nn = 0; nw = 0
    def emit(x, states=1):
        nonlocal pos
        out.append(x); hist.append((x, states)); pos += (1 if x.k == 'mfma' else 0) + (0.01 if x.k != 'label' else 0)
        if len(hist) > 40: hist.pop(0)
    def dist_need(x):
        need = 0; d = 0
        for (p, st) in reversed(hist):
            if p.k == 'label': continue
            req = 0
            k, pk = x.k, p.k
            isv = lambda z: z in ('valu', 'trans', 'perm')
            if pk == 'mfma':
                if k == 'mfma':
                    if x.srcc is not None and (x.srcc.set() & p.wr):
                        if not (x.srcc.set() == p.wr): req = max(req, 6)
                    ab = x.rd - (x.srcc.set() if x.srcc is not None else set())
                    if ab & p.wr: req = max(req, 8)
                    if (x.wr & p.wr) and not (x.srcc is not None and x.srcc.set() == p.wr): req = max(req, 8)
                else:
                    if (x.rd | x.wr) & p.wr: req = max(req, 8)
                    if isv(k) and p.srcc is not None and (x.wr & p.srcc.set()): req = max(req, 3)
            if isv(pk):
                vw = {r for r in p.wr if r[0] != 's'}; sw = {r for r in p.wr if r[0] == 's'}
                if k == 'mfma' and (x.rd & vw): req = max(req, 2)
                if k == 'perm' and (x.rd & vw): req = max(req, 2)
                if pk == 'trans' and isv(k) and (x.rd & vw): req = max(req, 1)
                if 'readfirstlane' in x.t or 'readlane' in x.t:
                    if x.rd & vw: req = max(req, 1)
                if 'dpp' in x.t and (x.rd & vw): req = max(req, 2)
                if isv(k) and (x.rd & sw): req = max(req, 2)
                if k in ('dma', 'vld', 'vst') and (x.rd & sw): req = max(req, 5)
                if k == 'salu' and (x.rd & sw): req = max(req, 4)
            if pk == 'salu' and ('s', 'm0') in p.wr and k == 'dma': req = max(req, 1)
            if pk == 'vst' and p.wide and (x.wr & p.dep): req = max(req, 2)
            if pk == 'dsw' and isv(k) and False: pass
            if req > d: need = max(need, req - d)
            d += st
            if d >= 12: break
        return need
    for x in prog:
        nvm = None; nds = None
        if x.k == 'wvm':
            idx = [i for i, o in enumerate(vm) if o.tag in x.dep]
            if idx: nvm = len(vm) - 1 - max(idx)
        elif x.k == 'wds':
            idx = [i for i, (o, p) in enumerate(ds) if o.k == 'dsw']
            if idx: nds = len(ds) - 1 - max(idx)
        elif x.k == 'wrd':
            idx = [i for i, (o, p) in enumerate(ds) if o.tag == x.dep]
            if idx: nds = len(ds) - 1 - max(idx)
        elif x.k == 'wdsall':
            if ds: nds = 0
        else:
            touch = x.rd | x.wr
            idx = [i for i, o in enumerate(vm) if o.k == 'vld' and (o.wr & touch) and not (o.tag == 'pf' and x.tag == 'pf')]
            if idx: nvm = len(vm) - 1 - max(idx)
            idx = [i for i, (o, p) in enumerate(ds) if o.k == 'dsr' and (o.wr & touch)]
            if idx:
                m = max(idx)
                while m + 1 < len(ds) and pos - ds[m + 1][1] >= ds_slack: m += 1
                nds = len(ds) - 1 - m
        if nvm is not None or nds is not None:
            at = len(out); hv, hd = nvm, nds
            if out and out[-1].k != 'mfma' and x.k not in ('wvm', 'wds', 'wdsall', 'wrd'):
                cv = cd = 0; seen = 0; p = len(out) - 1
                while p >= 0 and seen < 3:
                    y = out[p]
                    if y.k in ('label', 'bar') or 'cbranch' in y.t: break
                    if y.k == 'mfma':
                        seen += 1
                        nx = out[p + 1] if p + 1 < len(out) else None
                        if (nvm is None or cv <= nvm) and (nds is None or cd <= nds):
                            if nx is not None and RANK.get(nx.k, 0) != 0 and nx.k != 'dma':
                                at = p + 1; hv = None if nvm is None else nvm - cv; hd = None if nds is None else nds - cd; break
                        else: break
                    if y.k in ('dma', 'vld', 'vst'): cv += 1
                    if y.k in ('dsr', 'dsw'): cd += 1
                    p -= 1
            t = 's_waitcnt'
            if nvm is not None:
                k_ = min(hv, 63); t += f' vmcnt({k_})'; keep = k_ + (nvm - hv); vm = vm[len(vm) - keep:] if keep else []
            if nds is not None:
                k_ = min(hd, 15); t += f' lgkmcnt({k_})'; keep = k_ + (nds - hd); ds = ds[len(ds) - keep:] if keep else []
            if at == len(out): emit(I(t, 'wait'))
            else: out.insert(at, I(t, 'wait'))
            nw += 1
        if x.k in ('wvm', 'wds', 'wdsall', 'wrd'): continue
        if x.k != 'label':
            need = dist_need(x)
            if need:
                emit(I(f's_nop {need-1}', 'nop'), need); nn += need
        emit(x)
        if x.k in ('dma', 'vld', 'vst'):
            vm.append(x)
            if len(vm) > 48:
                assert LOOSE, "vmcnt overflow"
                emit(I('s_waitcnt vmcnt(40)', 'wait')); vm = vm[-40:]
        if x.k in ('dsr', 'dsw'): ds.append((x, pos))
        if x.k == 'drain': vm = []; ds = []
    mo = []
    for x in out:
        if x.k == 'wait' and mo and mo[-1].k == 'wait' and x.t.startswith('s_waitcnt') and mo[-1].t.startswith('s_waitcnt'):
            f = dict(re.findall(r'(\w+cnt)\((\d+)\)', mo[-1].t))
            for k_, n_ in re.findall(r'(\w+cnt)\((\d+)\)', x.t): f[k_] = min(int(n_), int(f.get(k_, 99)))
            mo[-1] = I('s_waitcnt ' + ' '.join(f'{k_}({n_})' for k_, n_ in f.items()), 'wait')
        else: mo.append(x)
    out = mo
    if report is not None: report.update(nops=nn, waits=nw, n=len(out))
    return out

def text(prog): return "\n".join(x.t for x in prog)

def kernel_text(name, body, vgpr=256, agpr=0, sgpr=102):
    acc = (vgpr + 3) // 4 * 4
    nfv = acc + agpr if agpr else vgpr
    return f""".text
.globl {name}
.p2align 8
.type {name},@function
{name}:
{body}
s_endpgm
.section .rodata,"a"
.p2align 6
.amdhsa_kernel {name}
  .amdhsa_next_free_vgpr {nfv}
  .amdhsa_next_free_sgpr {sgpr}
  .amdhsa_accum_offset {acc}
  .amdhsa_group_segment_fixed_size 0
  .amdhsa_kernarg_size 96
  .amdhsa_user_sgpr_count 2
  .amdhsa_user_sgpr_kernarg_segment_ptr 1
  .amdhsa_system_sgpr_workgroup_id_x 1
  .amdhsa_float_denorm_mode_32 3
.end_amdhsa_kernel
"""
```

```python
import sys
from asmlib import *
KN = "gated_mix__linear_kernel_hedgehog__glu_gated_swiglu__prompt"
H0 = 0; RING = 73728; MISC = 139264; PHIQ = MISC; LOGIT = MISC + 20480; DUMMY = MISC + 20992; KVE = MISC + 21248; KVM = 135168; GA = MISC
PHIK = 32768; VV = PHIK + 20480
S0 = 90112; ST = [S0, 0, 45056]; WST = 11264
WS_PART = 0; WS_SC = 37748736; WS_KV = WS_SC + 8192; WS_KV_BYTES = 16*2*3*16384; WS_STAMP = 48 << 20; WS_FL = 40 << 20
LOG2E = 0x3fb8aa3b; NLOG2E = 0xbfb8aa3b
OOB = 0x7ff00000
sX, sQ, sQ2, sW1, sW3, sWH, sW2, sWO, sPART, sKV, sDBG, sMI = [s(28 + 4*i, 4) for i in range(12)]
sJ, sM, sW, sR, sC = s(76), s(77), s(78), s(79), s(80)
sOff, sColF, sColH, sMb, sT0, sT1, sNL, sL, sOffX, sMx, sT2, sRowF, sRowH = [s(81 + i) for i in range(13)]
sExp = s(3); sOUT = sWH; sMask = s(94, 2); sStamp = s(96, 2); sT3 = s(98); sT4 = s(99); sFl = s(27)
vLane, vDmaF, vRdF0, vRdF1, vHw = v(0), v(1), v(2), v(3), v(4)
vJ = [v(5), v(6), v(7)]
vPhiA = [v(8, 4), v(12, 4)]
vE = [v(16 + i) for i in range(8)]
vHf = [v(24, 4), v(28, 4)]
T = 32; WF = 64; ACC = [128, 192]
def xf(ks, tb):
    i = ks*4 + tb
    return a(4*i, 4) if i < 64 else v(96 + 4*(i - 64), 4)
def slot(G): return ((G + 7) % 8) * 8192
def srd(P, d, lo, nbytes, add=0):
    if add >= 0: P += [glue(salu('s_add_u32', d[0], s(lo), add), salu('s_addc_u32', d[1], s(lo+1), 0))]
    else: P += [glue(salu('s_sub_u32', d[0], s(lo), -add), salu('s_subb_u32', d[1], s(lo+1), 0))]
    P += [salu('s_mov_b32', d[2], nbytes), salu('s_mov_b32', d[3], '0x20000')]

class G:
    def __init__(g, stamps=False, dump=None, pf=True, dbg='', cpf=True, pmods='sc1', fine=False, plan=0, esp=8, lsp=14, tpre=1, tmid=2):
        g.tpre = tpre; g.tmid = tmid
        g.esp = esp; g.lsp = lsp
        F2 = {37: 1, 48: 2, 59: 3, 70: 4, 81: 5, 92: 6}
        PL = {0: ((F2, {}, {}), (7, 7)),
              1: ((F2, {75: (64, [0, 1, 2])}, {}), (7, 7)),
              2: ((F2, {75: (64, [0, 1, 2, 3])}, {}), (7, 7)),
              3: ((F2, {70: (59, [0, 1, 2]), 92: (81, [3, 4])}, {}), (7, 7))}
        g.plan, g.tthr = PL[plan]; g.tailc = [c for c in range(5, 9) if c not in [x for p in g.plan[1] for x in g.plan[1][p][1]]]
        g.fine = fine; g.nf = 0; g.fregs = []
        g.pmods = pmods
        g.cpf = cpf; g.tails = []; g.rep = []
        g.dbg = dbg
        g.stamps = stamps; g.dump = dump; g.ns = 0; g.pf = pf
    def stamp(g):
        if not g.stamps: return []
        i = g.ns; g.ns += 1
        return [raw(f"s_memtime {sStamp}", 'salu', [], [sStamp]), raw(f"s_memrealtime s[4:5]", 'salu'), raw("s_waitcnt lgkmcnt(0)", 'wait'),
                valu('v_mov_b32', v(6), sStamp[0]), valu('v_mov_b32', v(7), s(4)), valu('v_mov_b32', v(5), sT4),
                vstore('buffer_store_dwordx2', v(6, 2), v(5), sPART, 0, off=8*i)]
    def prologue(g):
        P = []
        P += [scmp('s_cmp_ge_u32', s(2), 256), raw('s_cbranch_scc1 L_end')]
        P += [raw('s_load_dwordx16 s[4:19], s[0:1], 0'), raw('s_load_dwordx8 s[20:27], s[0:1], 64')]
        t0, t1, t2, t3, t4 = [v(T + 16 + i) for i in range(5)]
        P += [valu('v_lshrrev_b32', t0, 6, v(0)), valu('v_and_b32', vLane, 63, v(0))]
        P += [valu('v_readfirstlane_b32', sW, t0)]
        P += [salu('s_and_b32', sJ, s(2), 7), salu('s_lshl_b32', sJ, sJ, 1), salu('s_bfe_u32', sT0, s(2), '0x10003'), salu('s_add_u32', sJ, sJ, sT0),
              salu('s_lshr_b32', sM, s(2), 4), salu('s_lshr_b32', sR, sW, 1), salu('s_and_b32', sC, sW, 1)]
        P += [salu('s_mov_b32', sNL, hex(NLOG2E)), salu('s_mov_b32', sL, hex(LOG2E))]
        P += [salu('s_mul_i32', sT0, sJ, 288), salu('s_and_b32', sT1, sJ, 1), salu('s_lshl_b32', sT2, sT1, 5), salu('s_add_u32', sRowF, sT0, sT2),
              salu('s_lshl_b32', sT2, sT1, 8), salu('s_add_u32', sRowH, sT0, 256), salu('s_sub_u32', sRowH, sRowH, sT2),
              salu('s_lshl_b32', sColF, sRowF, 1), salu('s_lshl_b32', sColH, sRowH, 1)]
        P += [salu('s_lshl_b32', sMb, sW, 11), salu('s_add_u32', sMb, sMb, RING), salu('s_lshl_b32', sMx, sW, 12)]
        if g.stamps: P += [salu('s_lshl_b32', sT4, s(2), 10), salu('s_lshl_b32', sT0, sW, 8), salu('s_add_u32', sT4, sT4, sT0), salu('s_add_u32', sT4, sT4, WS_STAMP)]
        P += [valu('v_lshrrev_b32', t0, 3, vLane), salu('s_lshl_b32', sT0, sW, 3), valu('v_add_u32', t0, sT0, t0), valu('v_mul_u32_u24', t0, 9216, t0),
              valu('v_bfe_u32', t1, vLane, 4, 1), salu('s_lshl_b32', sT1, sC, 1), valu('v_or_b32', t1, sT1, t1), valu('v_bfe_u32', t2, vLane, 1, 2),
              valu('v_xor_b32', t1, t1, t2) if 's' not in g.dbg else valu('v_mov_b32', t1, t2), valu('v_lshlrev_b32', t1, 5, t1), valu('v_and_b32', t2, 1, vLane), valu('v_lshlrev_b32', t2, 4, t2),
              valu('v_add3_u32', vDmaF, t0, t1, t2)]
        dX0, dX1, rX0, rX1 = [v(T + i) for i in range(4)]
        P += [salu('s_lshl_b32', sT0, sM, 7), salu('s_lshl_b32', sT1, sW, 5), salu('s_add_u32', sT0, sT0, sT1), valu('v_lshrrev_b32', t0, 3, vLane),
              valu('v_add_u32', t0, sT0, t0), valu('v_mul_u32_u24', t0, 1152, t0), valu('v_lshrrev_b32', t1, 4, vLane), valu('v_and_b32', t2, 7, vLane),
              valu('v_xor_b32', t1, t1, t2), valu('v_lshlrev_b32', t1, 4, t1), valu('v_add_u32', dX0, t0, t1), valu('v_xor_b32', t1, 64, t1), valu('v_add_u32', dX1, t0, t1)]
        P += [raw('s_waitcnt lgkmcnt(0)', 'wait')]
        srd(P, sX, 4, 2048*1152); srd(P, sW1, 14, 576*9216); srd(P, sW3, 16, 576*9216 + 1024, -1024)
        if g.pf: P += g.prefetch13(0)
        for d in range(4):
            P += g.dmaX(d)
            for Gk in (2*d, 2*d + 1):
                if Gk <= 6: P += g.dmaW(Gk)
        if g.pf: P += g.prefetch13(1)
        srd(P, sQ, 6, 576*3456); srd(P, sQ2, 6, 576*3456 - 12800, 12800); srd(P, sW2, 18, 4608*1152); srd(P, sWO, 10, 576*1152 + 2048, -2048)
        srd(P, sKV, 26, WS_KV_BYTES, WS_KV); srd(P, sPART, 26, 64 << 20); srd(P, sDBG, 24, 256); srd(P, sMI, 20, 1152)
        P += [scmp('s_cmp_ge_u32', sW, 2), salu('s_cselect_b32', sWH[0], s(16), s(14)), salu('s_cselect_b32', sWH[1], s(17), s(15)),
              salu('s_mov_b32', sWH[2], 576*9216), salu('s_mov_b32', sWH[3], '0x20000')]
        P += [salu('s_lshl_b32', sT0, sM, 8), salu('s_lshl_b32', sT1, sJ, 2), salu('s_add_u32', sT0, sT0, sT1), salu('s_add_u32', sT0, sT0, WS_FL), salu('s_mov_b32', sT1, OOB),
              glue(scmp('s_cmp_eq_u32', sW, 0), salu('s_cselect_b32', sFl, sT0, sT1), salu('s_cselect_b32', sExp, '0xffff', 0)),
              valu('v_mov_b32', t0, sT1), valu('v_mov_b32', t1, sFl), valu('v_cmp_eq_u32', 'vcc', 0, vLane), valu('v_mov_b32', t2, 0), valu('v_cndmask_b32', t0, t0, t1, 'vcc'),
              vstore('buffer_store_dword', t2, t0, sPART, 0, mods='sc1', tag='arm')]
        if g.cpf:
            ca = v(T + 14, 2)
            P += [raw('s_getpc_b64 s[100:101]\nL_pc:', 'salu', [], [s(100, 2)]), salu('s_lshr_b32', sT0, s(2), 3), salu('s_lshl_b32', sT0, sT0, 2), salu('s_add_u32', sT0, sT0, sW),
                  salu('s_mul_i32', sT0, sT0, 5), valu('v_min_u32', t0, 4, vLane), valu('v_add_u32', t0, sT0, t0), valu('v_lshlrev_b32', t0, 7, t0),
                  raw(f'v_min_u32 {t0}, L_end-L_pc-4, {t0}', 'valu', [t0], [t0]), valu('v_and_b32', t0, -4, t0), valu('v_mov_b32', ca[1], s(101)),
                  I(f'v_add_co_u32 {ca[0]}, vcc, s100, {t0}', 'valu', [t0, s(100)], [ca[0], {('s', 'vcc')}]),
                  I(f'v_addc_co_u32 {ca[1]}, vcc, 0, {ca[1]}, vcc', 'valu', [ca[1], {('s', 'vcc')}], [ca[1], {('s', 'vcc')}]),
                  I(f'global_load_dword {v(T + 22)}, {ca}, off', 'vld', [ca], [v(T + 22)], tag='pf', dep=40)]
        gv = [v(T + 8 + i) for i in range(3)]
        P += [salu('s_lshl_b32', sT0, sW, 7), valu('v_lshlrev_b32', t0, 1, vLane), valu('v_add_u32', t0, sT0, t0)]
        for i in range(3): P += [vload('buffer_load_ushort', gv[i], t0, sMI, 0, off=512*i)]
        P += [valu('v_lshrrev_b32', t0, 4, vLane), valu('v_bfe_u32', t1, vLane, 2, 2), valu('v_lshlrev_b32', t2, 11, t0), valu('v_lshl_add_u32', t2, t1, 7, t2),
              valu('v_and_b32', t3, 3, vLane), valu('v_lshl_add_u32', t2, t3, 3, t2), valu('v_lshrrev_b32', t1, 1, t1), valu('v_and_b32', t0, 1, t0),
              valu('v_lshl_or_b32', t1, t0, 1, t1), salu('s_lshl_b32', sT1, sC, 1), valu('v_xor_b32', t1, sT1, t1), valu('v_lshlrev_b32', t1, 5, t1),
              valu('v_add_u32', t2, RING, t2), valu('v_add_u32', vRdF0, t2, t1), valu('v_xor_b32', t1, 32, t1), valu('v_add_u32', vRdF1, t2, t1)]
        P += [valu('v_and_b32', t0, 15, vLane), valu('v_lshrrev_b32', t1, 1, t0), valu('v_lshrrev_b32', t2, 4, vLane), valu('v_xor_b32', t1, t1, t2),
              valu('v_lshlrev_b32', t1, 4, t1), salu('s_lshl_b32', sT0, sR, 13), valu('v_lshlrev_b32', t0, 7, t0), valu('v_add_u32', t0, sT0, t0),
              valu('v_add_u32', rX0, t0, t1), valu('v_xor_b32', t1, 64, t1), valu('v_add_u32', rX1, t0, t1)]
        P += [salu('s_lshl_b32', sT0, sR, 12), salu('s_lshl_b32', sT1, sC, 13), salu('s_add_u32', sT0, sT0, sT1), valu('v_lshlrev_b32', t0, 4, vLane), valu('v_add_u32', vHw, sT0, t0)]
        P += g.qkv_addrs()
        P += [salu('s_lshl_b32', sT0, sW, 8), valu('v_lshrrev_b32', t0, 5, vLane), valu('v_lshlrev_b32', t0, 7, t0), valu('v_bfe_u32', t1, vLane, 3, 2),
              valu('v_lshl_add_u32', t0, t1, 5, t0), valu('v_bfe_u32', t1, vLane, 2, 1), valu('v_lshl_add_u32', t0, t1, 10, t0), valu('v_and_b32', t1, 3, vLane),
              valu('v_lshl_add_u32', t0, t1, 3, t0), salu('s_add_u32', sT0, sT0, GA), valu('v_add_u32', t0, sT0, t0)]
        g.gate_late = []
        for i in range(3):
            d = v(T + 12, 2)
            g.gate_late += [valu('v_lshl_or_b32', d[0], gv[i], 16, gv[i]), valu('v_mov_b32', d[1], d[0]), dsw('ds_write_b64', t0, d, off=2048*i)]
        return P
    def prefetch13(g, ch):
        t0 = v(T + 21); d = v(T + 22)
        P = [salu('s_mul_i32', sT0, sM, 36), salu('s_mul_i32', sT1, sW, 9), salu('s_add_u32', sT0, sT0, sT1), valu('v_min_u32', t0, 8, vLane),
             valu('v_add_u32', t0, sT0, t0), valu('v_mul_u32_u24', t0, 9216, t0)]
        if ch < 4: P += [salu('s_add_u32', sT0, sColF, 128*ch)]
        else: P += [salu('s_mov_b32', sT0, sColH)]
        P += [vload('buffer_load_dword', d, t0, sW1, sT0, tag='pf'), vload('buffer_load_dword', d, t0, sW3, sT0, off=1024, tag='pf')]
        return P
    def prefetchQ(g):
        t0 = v(T + 21); t1 = v(T + 23); d = v(T + 22)
        P = [salu('s_mul_i32', sT0, sM, 36), salu('s_mul_i32', sT1, sW, 9), salu('s_add_u32', sT0, sT0, sT1), valu('v_min_u32', t0, 53, vLane),
             valu('v_mul_u32_u24', t1, 43, t0), valu('v_lshrrev_b32', t1, 8, t1), valu('v_mul_u32_u24', d, 6, t1), valu('v_sub_u32', t0, t0, d),
             valu('v_add_u32', t1, sT0, t1), valu('v_mul_u32_u24', t1, 3456, t1), valu('v_lshrrev_b32', d, 1, t0), valu('v_mul_u32_u24', d, 1152, d), valu('v_add_u32', t1, t1, d),
             valu('v_and_b32', t0, 1, t0), valu('v_mul_u32_u24', t0, 68, t0), valu('v_add_u32', t1, t1, t0), salu('s_mul_i32', sT0, sJ, 72),
             vload('buffer_load_dword', d, t1, sQ, sT0, tag='pf')]
        return P
    def prefetch2(g, t0, t1, d):
        P = [salu('s_mul_i32', sT0, sM, 162), salu('s_mul_i32', sT1, sW, 41), salu('s_add_u32', sT0, sT0, sT1), valu('v_min_u32', t0, 40, vLane),
             valu('v_add_u32', t0, sT0, t0), valu('v_lshlrev_b32', t0, 7, t0), salu('s_mul_i32', sT0, sJ, 331776),
             vload('buffer_load_dword', d, t0, sW2, sT0, tag='pf'),
             salu('s_mul_i32', sT0, sM, 21), salu('s_mul_i32', sT1, sW, 6), salu('s_add_u32', sT0, sT0, sT1), valu('v_min_u32', t1, 5, vLane),
             valu('v_add_u32', t1, sT0, t1), valu('v_lshlrev_b32', t1, 7, t1), salu('s_mul_i32', sT0, sJ, 41472),
             vload('buffer_load_dword', d, t1, sWO, sT0, off=2048, tag='pf')]
        return P
    def qkv_addrs(g):
        t0, t1, t2, t3, t4 = [v(T + 16 + i) for i in range(5)]
        g.dQ = v(T + 24); g.rQ = [v(T + 25), v(T + 26), v(T + 27), v(T + 30)]; g.rQ3b = v(T + 28); g.isG = v(T + 29)
        P = []
        P += [valu('v_lshrrev_b32', t0, 4, vLane), salu('s_lshl_b32', sT1, sC, 2), valu('v_or_b32', t1, sT1, t0), valu('v_lshlrev_b32', t1, 1, t1),
              valu('v_and_b32', t2, 15, vLane), valu('v_xor_b32', t1, t1, t2),
              salu('s_lshl_b32', sT0, sW, 3), valu('v_add_u32', t0, sT0, t0), valu('v_mul_u32_u24', t0, 3456, t0),
              valu('v_cmp_le_u32', 'vcc', 6, t1), valu('v_cndmask_b32', t2, 0, v(T+31), 'vcc') ]
        P.insert(0, valu('v_mov_b32', v(T+31), 1))
        P += [valu('v_cmp_le_u32', 'vcc', 11, t1), valu('v_cndmask_b32', t3, 0, v(T+31), 'vcc'),
              valu('v_mul_u32_u24', t4, 6, t2), valu('v_sub_u32', t1, t1, t4), valu('v_mul_u32_u24', t4, 5, t3), valu('v_sub_u32', t1, t1, t4),
              valu('v_min_u32', t1, 4, t1), valu('v_add_u32', t2, t2, t3), valu('v_mul_u32_u24', t2, 1152, t2), valu('v_add_u32', t0, t0, t2),
              valu('v_lshrrev_b32', t3, 2, t1), valu('v_lshlrev_b32', t1, 4, t1), valu('v_lshlrev_b32', t3, 3, t3), valu('v_sub_u32', t1, t1, t3),
              salu('s_mul_i32', sT0, sJ, 72), valu('v_add3_u32', g.dQ, t0, t1, sT0)]
        def B(seg, n, c):
            b = 32*c + 8*n
            if b >= 64: b += 8
            return [0, 96, 176][seg] + b
        tabs = [[(0, i) for i in range(4)], [(0, 4), (2, 0), (2, 1), (2, 2)], [(1, i) for i in range(4)], [(1, 4), (2, 3), (2, 4), (2, 4)]]
        P += [valu('v_lshrrev_b32', t0, 4, vLane), valu('v_bfe_u32', t1, vLane, 2, 2), valu('v_lshlrev_b32', t2, 11, t0), valu('v_lshl_add_u32', t2, t1, 8, t2),
              valu('v_add_u32', t2, RING, t2), valu('v_and_b32', t0, 1, t0), valu('v_lshl_or_b32', t0, t0, 2, t1), valu('v_lshlrev_b32', t0, 5, t0),
              valu('v_and_b32', t1, 3, vLane), valu('v_lshlrev_b32', t1, 3, t1), scmp('s_cmp_eq_u32', sC, 0)]
        for b in range(4):
            pk = [sum(B(sg, n, c) << (8*i) for i, (sg, n) in enumerate(tabs[b])) for c in range(2)]
            dst = g.rQ[b] if b < 3 else g.rQ3b
            P += [salu('s_cselect_b32', sT0, hex(pk[0]), hex(pk[1]) ) ] if False else [salu('s_mov_b32', sT0, hex(pk[1])), salu('s_cselect_b32', sT0, hex(pk[0]), sT0)]
            P += [valu('v_lshrrev_b32', t3, t1, sT0) if False else valu('v_bfe_u32', t3, sT0, t1, 8), valu('v_xor_b32', t3, t3, t0), valu('v_add_u32', dst, t2, t3)]
        P += [valu('v_and_b32', t1, 3, vLane), valu('v_cmp_eq_u32', 'vcc', 3, t1), valu('v_lshrrev_b32', t3, 2, vLane), valu('v_lshlrev_b32', t3, 3, t3),
              valu('v_add_u32', t3, GA, t3), valu('v_cndmask_b32', g.rQ3b, g.rQ3b, t3, 'vcc'), valu('v_cndmask_b32', g.isG, 0, v(T+31), 'vcc')]
        return P
    def dmaX(g, d):
        dX = [v(T), v(T + 1)]
        P = [salu('s_add_u32', 'm0', sMx, (d % 4)*16384)]
        for aa in range(4):
            P += [salu('s_mov_b32', sOffX, d*128 + aa*8192), dma(dX[aa & 1], sX, sOffX, off=aa*1024, tag=('x', d))]
        return P
    def dmaW(g, Gk):
        ph, ks = divmod(Gk, 18)
        m0 = salu('s_add_u32', 'm0', sMb, slot(Gk))
        if Gk >= 90:
            i = Gk - 90
            return [m0, salu('s_add_u32', sOff, sColH, 2*i*32*9216), dma(g.dH0, sWH, sOff, tag=('w', Gk)), dma(g.dH1, sWH, sOff, off=1024, tag=('w', Gk))]
        if ph == 2:
            return [m0, salu('s_mov_b32', sOff, ks*32*3456), dma(g.dQ, sQ, sOff, tag=('w', Gk)), dma(g.dQ, sQ2, sOff, off=1024, tag=('w', Gk))]
        ch = [0, 1, None, 2, 3][ph]
        return [m0, salu('s_add_u32', sOff, sColF, ks*32*9216 + ch*128), dma(vDmaF, sW1, sOff, tag=('w', Gk)), dma(vDmaF, sW3, sOff, off=1024, tag=('w', Gk))]
    def wfrag(g, Gk, fi): return v(WF + (Gk % 2)*16 + fi*4, 4)
    def readsW(g, Gk):
        ph = Gk // 18; R_ = []
        for fi in range(4):
            f = g.wfrag(Gk, fi); pre = []
            if Gk >= 90: ad = g.rH; o = slot(Gk) + (fi >> 1)*1024 + (fi & 1)*4096; zo = 256
            elif ph == 2:
                ad = g.rQ[fi]; o = slot(Gk); zo = 1024
                if fi == 3:
                    ks = Gk - 36; c = (ks >> 3)*2048 + (ks & 7)*128 - slot(Gk)
                    pre = [salu('s_mov_b32', sT3, c), valu('v_mad_i32_i24', ad, g.isG, sT3, g.rQ3b)]
            else: ad = [vRdF0, vRdF1][fi >> 1]; o = slot(Gk) + (fi & 1)*1024; zo = 512
            R_.append((pre, dsr('ds_read_b64_tr_b16', f.sub(0, 2), ad, o), dsr('ds_read_b64_tr_b16', f.sub(2, 2), ad, o + zo)))
        return R_
    def readsX(g, ks):
        return [dsr('ds_read_b128', xf(ks, tb), v(T + 2 + (ks & 1)), ((ks >> 1) % 4)*16384 + tb*2048, tag=('x', ks)) for tb in range(4)]
    def accq(g, st, fi, tb): return v(ACC[st] + (fi*4 + tb)*4, 4)
    def fixed1(g):
        F = {}; ad = lambda i, x: F.setdefault(i, []).extend(x)
        g.pre_reads = []
        for Gk in range(99):
            b = 16*Gk
            for fi, (pre, r0, r1) in enumerate(g.readsW(Gk)):
                for z, r in enumerate((r0, r1)):
                    p = b - 16 + 4*fi - 5 + 2*z
                    if p < 0: g.pre_reads.append(r)
                    else: ad(p, [r])
                if pre: ad(b - 16 + 5, pre)
            xd = Gk < 18
            if Gk % 2 == 0:
                tags = [('w', Gk + 2), ('w', Gk + 3)]
                wx = []
                if Gk + 2 < 18: tags.append(('x', (Gk + 2)//2)); wx = [wait_rd(('x', Gk + 1))]
                ad(b + 9, [wait_vm(*tags)] + wx); ad(b + 10, [barrier()])
                if Gk + 7 <= 98:
                    m0, so, d0, d1 = g.dmaW(Gk + 7)
                    if xd: ad(b + 11, [m0, so])
                    else: ad(b + 7, [m0]); ad(b + 11, [so])
                    ad(b + 12, [d0]); ad(b + 14, [d1])
            elif Gk + 7 <= 98:
                m0, so, d0, d1 = g.dmaW(Gk + 7)
                ad(b + 1, [m0]); ad(b + 3, [so]); ad(b + (8 if xd else 4), [d0]); ad(b + (10 if xd else 8), [d1])
            if Gk < 18:
                for tb, x in enumerate(g.readsX(Gk)):
                    if Gk == 0: g.pre_reads.append(x)
                    else: ad(b - 16 + 2*tb, [x])
                if Gk % 2 == 1 and (Gk - 1)//2 + 4 <= 8:
                    D = g.dmaX((Gk - 1)//2 + 4)
                    ad(b + 11, D[0:2]); ad(b + 12, D[2:3]); ad(b + 13, D[3:4]); ad(b + 14, D[4:5]); ad(b + 15, D[5:6]); ad(b + 16, D[6:7]); ad(b + 16 + 7, D[7:8]); ad(b + 16 + 8, D[8:9])
        g.F1 = F
    def phase1(g, ph, streams, extra={}):
        G0 = ph*18; nk = 9 if ph == 5 else 18; st = ph % 2; mf = []
        for k in range(nk):
            for fi in range(4):
                for q in range(4):
                    tb = q if fi % 2 == 0 else 3 - q
                    if ph == 5: ks = 2*k + (fi >> 1); d = g.accq(st, fi & 1, tb); first = (k == 0 and fi < 2)
                    else: ks = k; d = g.accq(st, fi, tb); first = (k == 0)
                    mf.append(mfma(d, g.wfrag(G0 + k, fi), xf(ks, tb), 0 if first else None))
        fx = {i - 16*G0: list(x) for i, x in g.F1.items() if 16*G0 <= i < 16*(G0 + nk)}
        for i, x in extra.items(): fx[i] = x + fx.get(i, [])
        g.rep.append(f"P{ph}")
        return pack(mf, fx, streams, rep=g.rep)
    def silu(g, st, ch):
        P = []; n = 0
        half = (ch == 4)
        for tb in range(4):
            hf = vHf[tb % 2]
            for e in range(1 if half else 2):
                gq = g.accq(st, 2*e, tb); uq = g.accq(st, 2*e + 1, tb); t = vE[4*(n % 2):4*(n % 2) + 4]; n += 1
                P += [valu('v_mul_f32', t[i], sNL, gq[i]) for i in range(4)]
                P += [valu('v_exp_f32', t[0], t[0]), valu('v_mul_f32', gq[0], gq[0], uq[0]), valu('v_exp_f32', t[1], t[1]), valu('v_mul_f32', gq[1], gq[1], uq[1]),
                      valu('v_exp_f32', t[2], t[2]), valu('v_mul_f32', gq[2], gq[2], uq[2]), valu('v_exp_f32', t[3], t[3]), valu('v_mul_f32', gq[3], gq[3], uq[3])]
                P += [valu('v_add_f32', t[i], 1.0, t[i]) for i in range(4)]
                P += [valu('v_rcp_f32', t[i], t[i]) for i in range(4)]
                P += [valu('v_mul_f32', gq[i], gq[i], t[i]) for i in range(4)]
                P += [valu('v_cvt_pk_bf16_f32', hf[2*e], gq[0], gq[1]), valu('v_cvt_pk_bf16_f32', hf[2*e + 1], gq[2], gq[3])]
                if not half: P += [dsw('ds_write_b64', vHw, hf.sub(2*e, 2), ch*16384 + tb*1024 + 8*e)]
            if half: P += [dsw('ds_write_b64', g.vHh, hf.sub(0, 2), tb*1024)]
            for e in range(0 if half else 2): pass
        return P
    def phiA_loads(g):
        t0, t1, t2 = vJ
        P = []; srd(P, sMI, 8, 32*648)
        P += [salu('s_lshl_b32', sT0, sJ, 1), salu('s_add_u32', sT0, sT0, sC), salu('s_mul_i32', sT0, sT0, 648), salu('s_mul_i32', sT1, sC, 72), salu('s_sub_u32', sT0, sT0, sT1),
              salu('s_mov_b32', sT2, OOB)]
        for ob in range(2):
            F = vPhiA[ob]
            P += [valu('v_and_b32', t2, 15, vLane)]
            if ob == 1: P += [valu('v_and_b32', t0, 11, t2), valu('v_cmp_eq_u32', 'vcc', 0, t0), valu('v_lshrrev_b32', t2, 2, t2), valu('v_add_u32', t2, 16, t2),
                              valu('v_mov_b32', t0, sT2), valu('v_lshlrev_b32', t2, 1, t2), valu('v_cndmask_b32', t2, t0, t2, 'vcc')]
            else: P += [valu('v_lshlrev_b32', t2, 1, t2)]
            P += [valu('v_add_u32', t2, sT0, t2), valu('v_lshrrev_b32', t0, 4, vLane), valu('v_cmp_eq_u32', 'vcc', 0, t0), valu('v_mul_u32_u24', t0, 144, t0),
                  valu('v_add_u32', t0, t0, t2), valu('v_mov_b32', t1, sT2), valu('v_add_u32', t2, 576, t2), valu('v_cndmask_b32', t1, t1, t2, 'vcc')]
            gl = glue(scmp('s_cmp_eq_u32', sC, 1), salu('s_cselect_b64', sMask, 'vcc', 0)); gl.rd |= {('s', 'vcc')}
            P += [gl, valu('v_mov_b32', t2, sT2), valu('v_cndmask_b32', t2, t0, t2, sMask)]
            for e in range(4): P += [vload('buffer_load_ushort', v(T + 8*ob + e), t2 if e < 2 else t0, sMI, 0, off=36*e)]
            P += [glue(scmp('s_cmp_eq_u32', sC, 0), salu('s_cselect_b32', sT1, sT2, 0)), valu('v_max_u32', t0, sT1, t1)]
            for e in range(4): P += [vload('buffer_load_ushort', v(T + 8*ob + 4 + e), t1 if e < 2 else t0, sMI, 0, off=36*e)]
        pk = [valu('v_lshl_or_b32', vPhiA[i >> 2][i & 3], v(T + 2*i + 1), 16, v(T + 2*i)) for i in range(8)]
        return P, pk
    def softmax(g, x, tmp, outq, mx, mn, s0, s1):
        P = []
        P += [valu('v_max3_f32', mx, x[0], x[1], x[2]), valu('v_min3_f32', mn, x[0], x[1], x[2])]
        for i in range(3, 17, 2): P += [valu('v_max3_f32', mx, mx, x[i], x[i+1]), valu('v_min3_f32', mn, mn, x[i], x[i+1])]
        P += [valu('v_max_f32', mx, mx, x[17]), valu('v_min_f32', mn, mn, x[17]), valu('v_mul_f32', mx, sNL, mx), valu('v_mul_f32', mn, sL, mn)]
        for i in range(18): P += [valu('v_fma_f32', tmp[i], x[i], sNL, mn), valu('v_fma_f32', x[i], x[i], sL, mx)]
        for i in range(18):
            P += [valu('v_exp_f32', x[i], x[i]), valu('v_exp_f32', tmp[i], tmp[i])]
            if i == 2: P += [valu('v_add_f32', s0, x[0], x[1]), valu('v_add_f32', s1, tmp[0], tmp[1])]
            if i > 2: P += [valu('v_add_f32', s0, s0, x[i-1]), valu('v_add_f32', s1, s1, tmp[i-1])]
        P += [valu('v_add_f32', s0, s0, x[17]), valu('v_add_f32', s1, s1, tmp[17]), valu('v_rcp_f32', s0, s0), valu('v_rcp_f32', s1, s1)]
        for i in range(18): P += [valu('v_mul_f32', x[i], x[i], s0), valu('v_mul_f32', tmp[i], tmp[i], s1)]
        P += [valu('v_cvt_pk_bf16_f32', outq[8], x[16], x[17])]
        for i in range(8): P += [valu('v_cvt_pk_bf16_f32', outq[i], x[2*i], x[2*i+1])]
        for i in range(9): P += [valu('v_cvt_pk_bf16_f32', outq[9 + i], tmp[2*i], tmp[2*i+1])]
        return P
    def attn_post(g):
        t0, t1, t2 = vJ; A = []
        blk = lambda b, tb: g.accq(0, b, tb)
        A += [salu('s_lshl_b32', sT0, sR, 8), salu('s_add_u32', sT0, sT0, LOGIT - 192), valu('v_lshlrev_b32', t0, 2, vLane), valu('v_add_u32', t0, sT0, t0),
              valu('v_mov_b32', t1, DUMMY), valu('v_cmp_le_u32', 'vcc', 48, vLane), valu('v_cndmask_b32', t0, t1, t0, 'vcc')]
        A += [dsw('ds_write_b32', t0, blk(3, tb)[0], 64*tb) for tb in range(4)]
        Pq = [v(T + 8*tb, 4) for tb in range(4)]; Pk = [v(T + 8*tb + 4, 4) for tb in range(4)]
        A += [salu('s_lshl_b32', sT0, sC, 13), salu('s_lshl_b32', sT1, sR, 12), salu('s_add_u32', sT0, sT0, sT1), salu('s_add_u32', sT0, sT0, VV),
              salu('s_lshl_b32', sT1, sC, 2), salu('s_sub_u32', sT1, sT0, sT1),
              valu('v_and_b32', t0, 15, vLane), valu('v_lshlrev_b32', t0, 6, t0), valu('v_lshrrev_b32', t1, 4, vLane), valu('v_lshl_add_u32', t1, t1, 3, t0),
              valu('v_add_u32', t1, sT1, t1), valu('v_add_u32', t0, sT0, t0), valu('v_add_u32', t2, 24, t1), valu('v_add_u32', vE[0], 48, t0),
              valu('v_cmp_gt_u32', 'vcc', 16, vLane), valu('v_cndmask_b32', t1, t1, vE[0], 'vcc'), valu('v_cndmask_b32', t2, t2, vE[0], 'vcc'),
              valu('v_cmp_le_u32', 'vcc', 48, vLane), valu('v_mov_b32', vE[1], '0x3f80'), valu('v_cndmask_b32', t2, t2, vE[0], 'vcc')]
        for tb in range(4):
            for b in range(4):
                d = (Pq if b < 2 else Pk)[tb]; q = blk(b, tb)
                A += [valu('v_cvt_pk_bf16_f32', d[2*(b & 1)], q[0], q[1]), valu('v_cvt_pk_bf16_f32', d[2*(b & 1) + 1], q[2], q[3])]
            if tb > 0: A += [valu('v_add_u32', t1, 1024, t1), valu('v_add_u32', t2, 1024, t2)]
            A += [dsw2(t1, Pq[tb][2], Pq[tb][3], 0, 1), dsw2(t2, Pk[tb][2], Pk[tb][3], 0, 1), dsw('ds_write_b32', t0, vE[1], 1024*tb + 44)]
            A += [mfma(blk(2, tb), vPhiA[0], Pk[tb], 0), mfma(blk(3, tb), vPhiA[1], Pk[tb], 0), mfma(blk(0, tb), vPhiA[0], Pq[tb], 0), mfma(blk(1, tb), vPhiA[1], Pq[tb], 0)]
        def transp(b, r):
            R_ = [blk(b, tb)[r] for tb in range(4)]
            return [perm('v_permlane32_swap_b32', R_[0], R_[2]), perm('v_permlane32_swap_b32', R_[1], R_[3]), perm('v_permlane16_swap_b32', R_[0], R_[1]), perm('v_permlane16_swap_b32', R_[2], R_[3])]
        segs = []
        for (b0, base, who) in ((2, PHIK, 'k'), (0, PHIQ, 'q')):
            Sg = []
            tr = [transp(b0, r) for r in range(4)] + [transp(b0 + 1, 0)]
            for i in range(4):
                for x in tr: Sg.append(x[i])
            x = [blk(b0, i >> 2)[i & 3] for i in range(16)] + [blk(b0 + 1, 0)[0], blk(b0 + 1, 1)[0]]
            tmp = [v(T + i) for i in range(18)]
            oq = [blk(b0 + 1, 2), blk(b0 + 1, 3), v(T + 20, 4), blk(b0 + 1, 0), blk(b0 + 1, 1)]
            outq = [oq[i >> 2][i & 3] for i in range(18)]
            Sg += g.softmax(x, tmp, outq, vE[0], vE[1], vE[2], vE[3])
            Sg += [salu('s_mul_i32', sT0, sW if who == 'q' else sC, 5120 if who == 'q' else 10240), salu('s_mul_i32', sT1, sR, 0 if who == 'q' else 5120),
                   salu('s_add_u32', sT0, sT0, sT1), salu('s_add_u32', sT0, sT0, base), valu('v_mul_u32_u24', t0, 80, vLane), valu('v_add_u32', t0, sT0, t0)]
            Sg += [dsw('ds_write_b128', t0, oq[i], 16*i) for i in range(4)] + [dsw('ds_write_b64', t0, oq[4].sub(0, 2), 64)]
            segs.append(Sg)
        A += segs[0]; Q = segs[1]
        B = []
        ta, tb_, tv = vHf[0][0], vHf[0][1], vHf[0][2]
        B += [valu('v_lshrrev_b32', t0, 4, vLane), valu('v_bfe_u32', t1, vLane, 2, 2), valu('v_lshl_add_u32', t0, t0, 3, t1),
              valu('v_and_b32', t1, 3, vLane), salu('s_mul_i32', sT0, sC, 10240), salu('s_add_u32', sT0, sT0, PHIK), valu('v_mul_u32_u24', t2, 80, t0),
              valu('v_add_u32', tb_, sT0, t2), valu('v_lshl_add_u32', ta, t1, 4, tb_),
              salu('s_lshl_b32', sT0, sC, 13), salu('s_add_u32', sT0, sT0, VV + 8), salu('s_lshl_b32', sT1, sR, 5), salu('s_add_u32', sT0, sT0, sT1),
              salu('s_sub_u32', sT1, 1, sR), valu('v_mul_u32_u24', t1, sT1, t1), valu('v_lshlrev_b32', t0, 6, t0), valu('v_lshl_add_u32', t0, t1, 3, t0), valu('v_add_u32', tv, sT0, t0)]
        D = [blk(2, 0), blk(2, 1), blk(2, 2)]
        fr = lambda ks, i: (v(ACC[0] + 48 + 4*i, 4) if ks % 2 == 0 else v(T + 24 + 4*(i & 1), 4) if i < 2 else v(ACC[0] + 44, 4) if i == 2 else vHf[1])
        def rd(ks):
            X = []
            for z in range(2):
                o = (32*ks + 4*z)
                X += [dsr('ds_read_b64_tr_b16', fr(ks, 3).sub(2*z, 2), tv, o*64), dsr('ds_read_b64_tr_b16', fr(ks, 0).sub(2*z, 2), ta, o*80),
                      dsr('ds_read_b64_tr_b16', fr(ks, 1).sub(2*z, 2), ta, o*80 + 8), dsr('ds_read_b64_tr_b16', fr(ks, 2).sub(2*z, 2), tb_, o*80 + 64)]
            return X
        mm = lambda ks: [mfma(D[i], fr(ks, i), fr(ks, 3), 0 if ks == 0 else None) for i in range(3)]
        B += rd(0) + rd(1) + mm(0) + rd(2) + mm(1) + rd(3) + mm(2) + mm(3)
        C = []
        C += [salu('s_lshl_b32', sT0, sJ, 1), salu('s_add_u32', sT0, sT0, sC), salu('s_mul_i32', sT0, sT0, 49152), salu('s_lshl_b32', sT1, sM, 10), salu('s_add_u32', sT0, sT0, sT1),
              salu('s_mov_b32', sT2, OOB), glue(scmp('s_cmp_eq_u32', sR, 1), salu('s_cselect_b64', sMask, -1, 0)),
              valu('v_lshlrev_b32', t0, 4, vLane), valu('v_and_b32', t1, 15, vLane), valu('v_lshrrev_b32', t2, 4, vLane), valu('v_cmp_gt_u32', 'vcc', 3, t1),
              valu('v_mul_u32_u24', t2, 3, t2), valu('v_add_u32', t1, t1, t2), valu('v_lshlrev_b32', t1, 4, t1), valu('v_add_u32', t1, 32768 + 256, t1), valu('v_mov_b32', t2, sT2),
              valu('v_cndmask_b32', t1, t2, t1, 'vcc'),
              valu('v_cndmask_b32', ta, t0, t1, sMask), valu('v_add_u32', tb_, 16384, t0), valu('v_add_u32', tv, 192, t1), valu('v_cndmask_b32', tb_, tb_, tv, sMask),
              valu('v_add_u32', t0, 32768, t0), valu('v_add_u32', t1, 384, t1), valu('v_cndmask_b32', t0, t0, t1, sMask), valu('v_cmp_gt_u32', 'vcc', 16, vLane), valu('v_cndmask_b32', tv, t2, t0, 'vcc')]
        C += [vstore('buffer_store_dwordx4', D[0], ta, sKV, sT0, mods='sc1', tag='kv'), vstore('buffer_store_dwordx4', D[1], tb_, sKV, sT0, mods='sc1', tag='kv'),
              vstore('buffer_store_dwordx4', D[2], tv, sKV, sT0, mods='sc1', tag='kv')]
        return A, Q, B, C
    def flag(g, t0, t1):
        return [salu('s_lshl_b32', sT0, sJ, 4), salu('s_mov_b32', sT1, OOB), glue(scmp('s_cmp_eq_u32', sW, 0), salu('s_cselect_b32', sT0, sT0, sT1)),
                valu('v_mov_b32', t0, sT1), valu('v_cmp_eq_u32', 'vcc', 0, vLane), valu('v_mov_b32', t1, sT0), valu('v_cndmask_b32', t0, t0, t1, 'vcc'), valu('v_mov_b32', t1, 1),
                I(f"buffer_atomic_add {t1}, {t0}, {sDBG}, 0 offen", 'vst', [t0, t1, sDBG], [], tag='flag', dep=set())]
    def half_addrs(g):
        t0, t1, t2 = vJ
        g.dH0, g.dH1, g.rH, g.vHh = v(8), v(9), v(10), v(11)
        P = [salu('s_lshl_b32', sT0, sC, 4), valu('v_lshrrev_b32', t0, 2, vLane), valu('v_add_u32', t0, sT0, t0), valu('v_mul_u32_u24', t0, 9216, t0),
             valu('v_bfe_u32', t1, vLane, 1, 1), valu('v_lshrrev_b32', t2, 5, vLane), valu('v_xor_b32', t1, t1, t2), valu('v_lshl_add_u32', t0, t1, 5, t0),
             valu('v_and_b32', t1, 1, vLane), valu('v_lshl_add_u32', g.dH0, t1, 4, t0), valu('v_add_u32', g.dH1, 32*9216 - 1024, g.dH0),
             valu('v_lshrrev_b32', t0, 5, vLane), valu('v_lshlrev_b32', t0, 11, t0), valu('v_bfe_u32', t1, vLane, 4, 1), valu('v_lshl_add_u32', t0, t1, 9, t0),
             valu('v_xor_b32', t1, sC, t1), valu('v_lshl_add_u32', t0, t1, 5, t0), valu('v_bfe_u32', t1, vLane, 2, 2), valu('v_lshl_add_u32', t0, t1, 6, t0),
             valu('v_and_b32', t1, 3, vLane), valu('v_lshl_add_u32', t0, t1, 3, t0), valu('v_add_u32', g.rH, RING, t0),
             salu('s_lshl_b32', sT0, sR, 12), salu('s_lshl_b32', sT1, sC, 3), salu('s_add_u32', sT0, sT0, sT1), salu('s_add_u32', sT0, sT0, 65536),
             valu('v_lshlrev_b32', t0, 4, vLane), valu('v_add_u32', g.vHh, sT0, t0)]
        return P

    def check(g, name, res, addr, srd_, thr):
        g.tails.append("\n".join([f"L_{name}_spin:", "s_mov_b32 s4, 0x40000", f"L_{name}_s2:", f"buffer_load_dword {res}, {addr}, {srd_}, 0 offen sc1", "s_waitcnt vmcnt(0)",
                          f"v_cmp_le_u32 vcc, {thr}, {res}", "s_sub_u32 s4, s4, 1", "s_cmp_eq_u32 s4, 0", f"s_cbranch_scc1 L_{name}_ok", "s_nop 1",
                          f"s_cmp_eq_u32 vcc_lo, {sExp}", f"s_cbranch_scc0 L_{name}_s2", f"s_branch L_{name}_ok"]))
        return [valu('v_cmp_le_u32', 'vcc', thr, res),
                raw(f"s_cmp_eq_u32 vcc_lo, {sExp}\ns_cbranch_scc0 L_{name}_spin\nL_{name}_ok:", 'salu', [{('s', 'vcc')}, res, addr], [res], cost=2)]
    def kv_gather(g):
        t0, t1, t2 = vJ
        poll0 = [salu('s_mov_b32', sT1, OOB), glue(scmp('s_cmp_eq_u32', sW, 0), salu('s_cselect_b32', sT0, 0, sT1)), valu('v_lshlrev_b32', t0, 4, vLane), valu('v_max_u32', t0, sT0, t0),
                 vload('buffer_load_dword', t1, t0, sDBG, 0, mods='sc1', lat=30)]
        poll1 = g.check('kv', t1, t0, sDBG, 16)
        buf = [v(T + 4*i, 4) for i in range(6)] + [v(232 + 4*i, 4) for i in range(6)]
        sM_, sE_ = v(224, 4), v(228, 4)
        pre = [salu('s_lshl_b32', sT0, sJ, 1), salu('s_add_u32', sT0, sT0, sC), salu('s_mul_i32', sT0, sT0, 49152), salu('s_lshl_b32', sT1, sR, 14), salu('s_add_u32', sT1, sT1, sT0),
               salu('s_lshl_b32', sT2, sR, 13), salu('s_add_u32', sT0, sT0, sT2), salu('s_add_u32', sT0, sT0, 32768),
               valu('v_lshlrev_b32', t0, 4, vLane), valu('v_min_u32', t1, 42*16, t0)]
        def ld(i, d):
            X = []
            if i < 16:
                if i % 4 == 0 and i: X += [salu('s_add_u32', sT1, sT1, 4096)]
                X += [vload('buffer_load_dwordx4', d, t0, sKV, sT1, off=(i % 4)*1024, mods='sc1', lat=30)]
            else:
                if i == 20: X += [salu('s_add_u32', sT0, sT0, 4096)]
                X += [vload('buffer_load_dwordx4', d, t1, sKV, sT0, off=(i % 4)*1024, mods='sc1', lat=30)]
            return X
        L1 = pre + ld(0, sM_) + sum([ld(i, buf[i - 1]) for i in range(1, 13)], [])
        add = lambda acc, d: [valu('v_add_f32', acc[k], acc[k], d[k]) for k in range(4)]
        L2 = []
        nxt = [13, 14, 15, 17, 18, 19, 20, 21, 22, 23]
        L2 += ld(16, sE_)
        for i in range(12):
            L2 += add(sM_, buf[i])
            if i < 10: L2 += ld(nxt[i], buf[i])
        L3 = sum([add(sM_, buf[i]) for i in range(3)], []) + sum([add(sE_, buf[i]) for i in range(3, 10)], [])
        W = [salu('s_lshl_b32', sT0, sC, 11), salu('s_lshl_b32', sT1, sR, 10), salu('s_add_u32', sT0, sT0, sT1), salu('s_add_u32', sT0, sT0, KVM),
             valu('v_add_u32', t0, sT0, t0), salu('s_lshl_b32', sT0, sC, 1), salu('s_add_u32', sT0, sT0, sR), salu('s_mul_i32', sT0, sT0, 704), salu('s_add_u32', sT0, sT0, KVE),
             valu('v_add_u32', t1, sT0, t1), dsw('ds_write_b64', t0, sM_.sub(0, 2)), dsw('ds_write_b64', t0, sM_.sub(2, 2), 8), dsw('ds_write_b64', t1, sE_.sub(0, 2)), dsw('ds_write_b64', t1, sE_.sub(2, 2), 8)]
        return poll0, poll1, L1, L2, L3, W
    def o_part(g):
        t0, t1, t2 = vJ; P = []
        R_ = v(224, 12); A01, A11, A00, A10 = R_.sub(0, 4), R_.sub(2, 4), R_.sub(4, 4), R_.sub(8, 4)
        q = [v(T + 4*i, 4) for i in range(6)] + [v(96, 4), v(100, 4)]; q2 = [v(104 + 4*i, 4) for i in range(2)]
        P += [salu('s_lshl_b32', sT0, sC, 11), salu('s_add_u32', sT0, sT0, KVM), valu('v_lshlrev_b32', t0, 4, vLane), valu('v_add_u32', t0, sT0, t0),
              dsr('ds_read_b128', q[0], t0, 0), dsr('ds_read_b128', q[1], t0, 1024),
              salu('s_mul_i32', sT0, sC, 1408), salu('s_add_u32', sT0, sT0, KVE), valu('v_and_b32', t0, 3, vLane), valu('v_min_u32', t0, 2, t0), valu('v_lshrrev_b32', t1, 4, vLane),
              valu('v_mul_u32_u24', t1, 3, t1), valu('v_add_u32', t1, t1, t0), valu('v_lshlrev_b32', t1, 4, t1), valu('v_add_u32', t1, sT0, t1),
              valu('v_lshlrev_b32', t0, 4, t0), valu('v_add_u32', t0, sT0, t0), valu('v_and_b32', t2, 15, vLane), valu('v_lshlrev_b32', t2, 4, t2), valu('v_add_u32', t2, sT0, t2)]
        P += [dsr('ds_read_b128', q[2], t1, 256), dsr('ds_read_b128', q[3], t1, 256 + 704), dsr('ds_read_b128', q[4], t1, 448), dsr('ds_read_b128', q[5], t1, 448 + 704),
              dsr('ds_read_b128', q[6], t2, 0), dsr('ds_read_b128', q[7], t2, 704), dsr('ds_read_b128', q2[0], t0, 640), dsr('ds_read_b128', q2[1], t0, 640 + 704)]
        E = [v(236 + i) for i in range(4)]; Bq = [a(176 + 4*i, 4) for i in range(4)]; B1 = [v(240 + 4*i, 4) for i in range(4)]
        P += [salu('s_lshl_b32', sT0, sR, 8), salu('s_add_u32', sT0, sT0, LOGIT), valu('v_and_b32', t0, 15, vLane), valu('v_lshlrev_b32', t1, 2, t0), valu('v_add_u32', t1, sT0, t1)]
        P += [dsr('ds_read_b32', E[tb], t1, 64*tb) for tb in range(4)]
        P += [salu('s_mul_i32', sT0, sW, 5120), salu('s_add_u32', sT0, sT0, PHIQ), valu('v_mul_u32_u24', t0, 80, t0), valu('v_add_u32', t0, sT0, t0),
              valu('v_lshrrev_b32', t1, 4, vLane), valu('v_lshl_add_u32', t1, t1, 4, t0)]
        for tb in range(4): P += [dsr('ds_read_b128', Bq[tb], t1, 1280*tb), dsr('ds_read_b64', B1[tb].sub(0, 2), t0, 1280*tb + 64)]
        cv = lambda d, x: [valu('v_cvt_pk_bf16_f32', d[0], x[0], x[1]), valu('v_cvt_pk_bf16_f32', d[1], x[2], x[3])]
        add = lambda x, y: [valu('v_add_f32', x[k], x[k], y[k]) for k in range(4)]
        P += cv(A00.sub(0, 2), q[0]) + cv(A00.sub(2, 2), q[1]) + add(q[2], q[3]) + add(q[4], q[5]) + add(q[6], q[7]) + add(q2[0], q2[1])
        P += cv(A10.sub(0, 2), q[2]) + cv(A10.sub(2, 2), q[4]) + cv(A01.sub(0, 2), q[6]) + cv(A11.sub(0, 2), q2[0])
        P += [valu('v_cmp_gt_u32', 'vcc', 16, vLane), salu('s_mov_b32', sT2, '0x42700000')]
        for tb in range(4):
            P += [valu('v_cndmask_b32', B1[tb][0], 0, B1[tb][0], 'vcc'), valu('v_cndmask_b32', B1[tb][1], 0, B1[tb][1], 'vcc'), valu('v_mov_b32', B1[tb][2], 0), valu('v_mov_b32', B1[tb][3], 0),
                  valu('v_min_f32', E[tb], sT2, E[tb]), valu('v_mul_f32', E[tb], sL, E[tb]), valu('v_exp_f32', E[tb], E[tb])]
        o0 = [q[2*tb] for tb in range(4)]; o1 = [q[2*tb + 1] for tb in range(4)]
        for tb in range(4): P += [mfma(o0[tb], A00, Bq[tb], 0), mfma(o1[tb], A10, Bq[tb], 0)]
        for tb in range(4): P += [mfma(o0[tb], A01, B1[tb]), mfma(o1[tb], A11, B1[tb])]
        P += [salu('s_mul_i32', sT0, sW, 5120), salu('s_add_u32', sT0, sT0, PHIQ), valu('v_lshlrev_b32', t0, 3, vLane), valu('v_add_u32', t0, sT0, t0),
              valu('v_lshlrev_b32', t1, 2, vLane), valu('v_add_u32', t1, sT0, t1), salu('s_mov_b32', sT2, '0x358637bd')]
        for tb in range(4): P += [valu('v_add_f32', o1[tb][2], sT2, o1[tb][2])]
        for tb in range(4): P += [valu('v_rcp_f32', o1[tb][2], o1[tb][2])]
        for tb in range(4): P += [valu('v_mul_f32', E[tb], E[tb], o1[tb][2])]
        for tb in range(4):
            P += [valu('v_mul_f32', o0[tb][k], o0[tb][k], E[tb]) for k in range(4)] + [valu('v_mul_f32', o1[tb][k], o1[tb][k], E[tb]) for k in range(2)]
            P += cv(o0[tb], o0[tb]) + [valu('v_cvt_pk_bf16_f32', o1[tb][0], o1[tb][0], o1[tb][1]), dsw('ds_write_b64', t0, o0[tb].sub(0, 2), 512*tb),
                  valu('v_cndmask_b32', o1[tb][0], 0, o1[tb][0], 'vcc'), dsw('ds_write_b32', t1, o1[tb][0], 2048 + 256*tb)]
        return P
    def hf(g, ks, tb): return a((ks*4 + tb)*4, 4)
    def h_reads(g, kss, vH, vH8):
        return [dsr('ds_read_b128', g.hf(ks, tb), vH8 if ks == 8 else vH, (0 if ks == 8 else ks*8192) + tb*1024) for ks in kss for tb in range(4)]
    def o_reads(g):
        t0, t1, t2 = vJ
        P = [salu('s_mul_i32', sT0, sR, 10240), salu('s_add_u32', sT0, sT0, PHIQ), valu('v_lshlrev_b32', t0, 3, vLane), valu('v_add_u32', t0, sT0, t0),
             valu('v_lshlrev_b32', t1, 2, vLane), valu('v_add_u32', t1, sT0, t1)]
        Rd = []
        for tb in range(4):
            Rd += [dsr('ds_read_b64', g.hf(9, tb).sub(0, 2), t0, 512*tb), dsr('ds_read_b64', g.hf(9, tb).sub(2, 2), t0, 5120 + 512*tb),
                   dsr('ds_read_b32', g.hf(10, tb)[0], t1, 2048 + 256*tb), dsr('ds_read_b32', g.hf(10, tb)[1], t1, 5120 + 2048 + 256*tb)]
            P += [valu('v_accvgpr_write_b32', g.hf(10, tb)[2], 0), valu('v_accvgpr_write_b32', g.hf(10, tb)[3], 0)]
        return P, Rd
    def g2_dma_addrs(g):
        t0, t1, t2 = vJ
        g.dW2 = [v(12 + i) for i in range(4)]; g.dO9 = v(1); g.dO10 = v(8)
        P = [valu('v_bfe_u32', t1, vLane, 1, 2), valu('v_lshrrev_b32', t2, 4, vLane), valu('v_xor_b32', t1, t1, t2), valu('v_lshlrev_b32', t1, 5, t1),
             valu('v_and_b32', t2, 1, vLane), valu('v_lshl_add_u32', t1, t2, 4, t1),
             salu('s_lshl_b32', sT0, sW, 3), valu('v_lshrrev_b32', t0, 3, vLane), valu('v_add_u32', t2, sT0, t0), valu('v_mul_u32_u24', t2, 1152, t2), valu('v_add_u32', g.dW2[0], t2, t1)]
        P += [valu('v_add_u32', g.dW2[q], 35840*q, g.dW2[0]) for q in range(1, 4)]
        P += [salu('s_mul_i32', sT0, sR, 2304), salu('s_add_u32', sT0, sT0, 1024), valu('v_add_u32', g.dO9, sT0, g.dW2[0]),
              valu('v_and_b32', t0, 3, t0), valu('v_lshrrev_b32', t2, 1, t0), valu('v_lshl_add_u32', t0, t2, 4, t0), valu('v_add_u32', t0, 16, t0), valu('v_mul_u32_u24', t0, 1152, t0),
              valu('v_add_u32', v(T + 20), t0, t1),
              salu('s_mul_i32', sColF, sRowF, 1152), salu('s_mul_i32', sRowH, sRowH, 1152), salu('s_mul_i32', sOffX, sJ, 41472), salu('s_mul_i32', sMx, sW, WST)]
        return P
    BUFA = [0, 1, 0, 1, 2, 0, 1, 2, 0]; BUFB = [0, 1, 2, 0, 1, 2, 0, 1, 2]
    def g2_dma(g, n, sub):
        st = ST[(g.BUFB if sub else g.BUFA)[n]]; tg = ('g2', n, sub); d = g.dW2
        if sub == 0:
            return [salu('s_add_u32', 'm0', sMx, st), salu('s_add_u32', sOff, sColF, n*128)] + [dma(d[q], sW2, sOff, off=q*1024, tag=tg) for q in range(4)] + \
                   [salu('s_add_u32', 'm0', sMx, st + 4096), salu('s_add_u32', sOff, sColF, n*128 + 147456)] + [dma(d[q], sW2, sOff, off=q*1024, tag=tg) for q in range(2)]
        return [salu('s_add_u32', 'm0', sMx, st + 4096), salu('s_add_u32', sOff, sColF, n*128 + 147456)] + [dma(d[q], sW2, sOff, off=q*1024, tag=tg) for q in (2, 3)] + \
               [salu('s_add_u32', 'm0', sMx, st + 8192), salu('s_add_u32', sOff, sRowH, n*128), dma(d[0], sW2, sOff, tag=tg),
                salu('s_add_u32', sOff, sOffX, n*128), dma(g.dO9, sWO, sOff, off=1024, tag=tg), dma(g.dO10, sWO, sOff, off=2048, tag=tg)]
    def g2_rd_addrs(g):
        t0, t1, t2 = vJ
        g.r2 = [[v(T + 24), v(T + 25)], [v(T + 26), v(T + 27)], [v(112), v(113)]]; g.r10 = [[v(T + 28), v(T + 29)], [v(T + 30), v(T + 31)], [v(114), v(115)]]
        g.vP = [v(116 + i) for i in range(4)]
        t3 = g.r2[0][0]
        P = [valu('v_lshrrev_b32', t0, 5, vLane), valu('v_mul_u32_u24', t0, WST, t0), valu('v_bfe_u32', t1, vLane, 2, 3), valu('v_lshl_add_u32', t0, t1, 7, t0),
             valu('v_and_b32', t2, 3, vLane), valu('v_lshl_add_u32', t0, t2, 3, t0), valu('v_lshrrev_b32', t1, 1, t1), salu('s_lshl_b32', sT1, sC, 1), valu('v_xor_b32', t1, sT1, t1),
             valu('v_lshlrev_b32', t1, 5, t1), valu('v_xor_b32', t3, 32, t1), valu('v_add_u32', g.r2[1][0], t0, t1), valu('v_add_u32', g.r2[1][1], t0, t3),
             valu('v_bfe_u32', t1, vLane, 2, 2), valu('v_lshlrev_b32', t0, 7, t1), valu('v_lshl_add_u32', t0, t2, 3, t0), valu('v_lshrrev_b32', t1, 1, t1), valu('v_xor_b32', t1, sT1, t1),
             valu('v_lshlrev_b32', t1, 5, t1), valu('v_xor_b32', t3, 32, t1), salu('s_mul_i32', sT0, sW, WST), salu('s_add_u32', sT0, sT0, 10240),
             valu('v_add3_u32', g.r10[1][0], t0, t1, sT0), valu('v_add3_u32', g.r10[1][1], t0, t3, sT0)]
        for e in range(2): P += [valu('v_add_u32', g.r2[0][e], ST[0], g.r2[1][e]), valu('v_add_u32', g.r10[0][e], ST[0], g.r10[1][e])]
        Q = []
        for e in range(2): Q += [valu('v_add_u32', g.r2[2][e], ST[2], g.r2[1][e]), valu('v_add_u32', g.r10[2][e], ST[2], g.r10[1][e])]
        Q += [salu('s_mul_i32', sT0, sM, 144), salu('s_lshl_b32', sT1, sC, 3), salu('s_add_u32', sT0, sT0, sT1), salu('s_lshl_b32', sT1, sR, 2), salu('s_add_u32', sT0, sT0, sT1),
              salu('s_lshl_b32', sT0, sT0, 4), salu('s_add_u32', sT0, sT0, sJ), salu('s_lshl_b32', sT0, sT0, 10), valu('v_lshlrev_b32', t0, 4, vLane), valu('v_add_u32', g.vP[0], sT0, t0)]
        Q += [valu('v_add_u32', g.vP[i], 16384*i, g.vP[0]) for i in range(1, 4)]
        return P, Q
    def red_setup(g):
        t0, t1, t2 = vJ
        g.vLd, g.vOut, g.vS, g.vPA, g.vPR, g.vFA, g.vFV = [v(120 + i) for i in range(7)]
        g.rD = v(224, 4); g.rA = v(228, 4)
        P = []; srd(P, sOUT, 22, 2048*1152)
        P += [salu('s_lshr_b32', sT0, sJ, 1), salu('s_lshl_b32', sT0, sT0, 4), valu('v_and_b32', t0, 15, vLane),
              valu('v_add_u32', t0, sT0, t0), valu('v_lshlrev_b32', t1, 2, t0), valu('v_add_u32', t1, LOGIT, t1), dsr('ds_read_b32', g.vS, t1, 0),
              salu('s_lshl_b32', sT0, sM, 7), valu('v_add_u32', t0, sT0, t0), valu('v_mul_u32_u24', t0, 1152, t0), salu('s_lshl_b32', sT0, sW, 3), valu('v_add_u32', t0, sT0, t0),
              valu('v_lshrrev_b32', t1, 5, vLane), valu('v_lshl_add_u32', t0, t1, 5, t0), valu('v_bfe_u32', t1, vLane, 4, 1), valu('v_lshl_add_u32', t0, t1, 2, t0),
              salu('s_and_b32', sT1, sJ, 1), salu('s_lshl_b32', sT0, sT1, 6), valu('v_add_u32', g.vOut, sT0, t0),
              salu('s_lshl_b32', sT1, sT1, 3), salu('s_mul_i32', sT0, sM, 144), salu('s_add_u32', sT0, sT0, sT1), salu('s_lshr_b32', sT1, sJ, 1), salu('s_add_u32', sT0, sT0, sT1),
              salu('s_lshl_b32', sT0, sT0, 14), salu('s_lshl_b32', sT1, sW, 8), salu('s_add_u32', sT0, sT0, sT1), valu('v_lshrrev_b32', t0, 4, vLane), valu('v_lshlrev_b32', t0, 10, t0),
              valu('v_and_b32', t1, 15, vLane), valu('v_lshl_add_u32', t0, t1, 4, t0), valu('v_add_u32', g.vLd, sT0, t0),
              salu('s_mov_b32', sT1, OOB), valu('v_mov_b32', t0, sT1), valu('v_mov_b32', t2, sFl), valu('v_cmp_eq_u32', 'vcc', 0, vLane), salu('s_andn2_b32', sT0, sFl, 255),
              valu('v_cndmask_b32', g.vFA, t0, t2, 'vcc'), valu('v_lshlrev_b32', t2, 2, vLane), valu('v_add_u32', t2, sT0, t2), valu('v_cmp_gt_u32', 'vcc', 16, vLane),
              salu('s_mov_b32', sT2, '0x42700000'), valu('v_cndmask_b32', g.vPA, t0, t2, 'vcc'),
              valu('v_min_f32', g.vS, sT2, g.vS), valu('v_mul_f32', g.vS, sL, g.vS), valu('v_exp_f32', g.vS, g.vS), valu('v_add_f32', g.vS, 1.0, g.vS), valu('v_rcp_f32', g.vS, g.vS),
              valu('v_and_b32', t0, 1, t1), valu('v_lshlrev_b32', t0, 4, t0), valu('v_mov_b32', t2, '0x3f80'), valu('v_lshlrev_b32', t0, t0, t2), valu('v_and_b32', t1, 14, t1)]
        for d in range(4): P += [valu('v_cmp_eq_u32', 'vcc', 4*d, t1), valu('v_cndmask_b32', g.rA[d], 0, t0, 'vcc')]
        return P
    def rbuf(g, c, i): return a((176 + c*16 if c < 5 else (c - 5)*16 if c in g.tailc else 176 + (c - 5)*16) + 4*i, 4)
    def red_flag(g, val): return [valu('v_mov_b32', g.vFV, val), vstore('buffer_store_dword', g.vFV, g.vFA, sPART, 0, mods='sc1', tag='fl')]
    def red_poll(g): return [vload('buffer_load_dword', g.vPR, g.vPA, sPART, 0, mods='sc1', lat=30)]
    def red_ld(g, c):
        P = []
        for i in range(4): P += [salu('s_mov_b32', sT2, c*262144 + i*4096), vload('buffer_load_dwordx4', g.rbuf(c, i), g.vLd, sPART, sT2, mods='sc1', lat=36)]
        return P
    def red_m(g, c):
        D = g.rD
        return [mfma(D, g.rA, g.rbuf(c, i), 0 if i == 0 else None) for i in range(4)] + \
               [valu('v_mul_f32', D[0], D[0], g.vS), valu('v_mul_f32', D[1], D[1], g.vS), valu('v_cvt_pk_bf16_f32', D[0], D[0], D[1]), vstore('buffer_store_dword', D[0], g.vOut, sOUT, 0, off=c*128)]
    def w2f(g, q, e): return v(WF + ((q + 2) % 4)*8 + e*4, 4)
    SEQ = [(0, k) for k in range(6)] + [(1, k) for k in range(6)] + [(0, 6), (0, 7), (1, 6), (1, 7), (0, 8), (0, 9), (0, 10), (1, 8), (1, 9), (1, 10)] + [(n, k) for n in range(2, 9) for k in range(11)]
    def g2_reads(g, q):
        n, ks = g.SEQ[q]; X = []; b = (g.BUFB if ks >= 6 else g.BUFA)[n]
        for e in range(2):
            f = g.w2f(q, e)
            if ks == 10: X.append([dsr('ds_read_b64_tr_b16', f.sub(0, 2), g.r10[b][e], 0)])
            else: X.append([dsr('ds_read_b64_tr_b16', f.sub(2*z, 2), g.r2[b][e], ks*1024 + z*2*WST) for z in range(2)])
        return X
    def acc2(g, n, e, tb): return v(128 + (n % 2)*32 + (e*4 + tb)*4, 4)
    def g2_epi(g, n):
        P = [salu('s_mov_b32', sT3, n*262144)]; St = []
        for tb in range(4):
            d = v(192 + (n % 2)*16 + tb*4, 4)
            for e in range(2):
                x = g.acc2(n, e, tb)
                P += [valu('v_cvt_pk_bf16_f32', d[2*e], x[0], x[1]), valu('v_cvt_pk_bf16_f32', d[2*e + 1], x[2], x[3])]
            P += [vstore('buffer_store_dwordx4', d, g.vP[tb], sPART, sT3, tag=('part', n), mods=g.pmods)]
        return P
    def fstamp(g):
        prs = list(range(6, 22, 2)) + list(range(28, 48, 2)) + [64, 66, 68, 70]
        r = prs[g.nf]; g.nf += 1; g.fregs.append(r)
        return raw(f"s_memrealtime s[{r}:{r+1}]", 'label')
    def fdump(g):
        if not g.fine: return []
        P = [raw("s_waitcnt lgkmcnt(0)", 'wait'), valu('v_mov_b32', v(5), sT4)]
        for i, r in enumerate(g.fregs): P += [valu('v_mov_b32', v(6), s(r)), valu('v_mov_b32', v(7), s(r)), vstore('buffer_store_dwordx2', v(6, 2), v(5), sPART, 0, off=8*(g.ns + i)), raw('s_nop 1', 'wait')]
        return P
    def gemm2(g, X1, X2, X3, X4, X5):
        mf = []; F = {}; st = []
        ad = lambda i, x: F.setdefault(i, []).extend(x)
        for q, (n, ks) in enumerate(g.SEQ):
            for e in range(2):
                for i in range(4):
                    tb = i if e == 0 else 3 - i
                    mf.append(mfma(g.acc2(n, e, tb), g.w2f(q, e), g.hf(ks, tb), 0 if ks == 0 else None))
            if q + 2 < 99:
                X = g.g2_reads(q + 2)
                for e in range(2):
                    for z, x in enumerate(X[e]): ad(8*q + 4*e + 2*z + 1, [x])
        bars = {4: [(1, 0)], 10: [(0, 1), (1, 1)], 14: [], 20: [(2, 0)], 26: [(2, 1)]}
        for n in range(3, 9): bars[11*n - 2] = [(n, 0)]; bars[11*n + 4] = [(n, 1)]
        bars[97] = []
        iss = {10: [(2, 0)], 14: [(3, 0)], 20: [(2, 1), (3, 1), (4, 0)], 26: [(4, 1)], 31: [(5, 0)], 37: [(5, 1)], 42: [(6, 0)], 48: [(6, 1)], 53: [(7, 0)], 59: [(7, 1)], 64: [(8, 0)], 70: [(8, 1)]}
        flg, chk, mm = g.plan
        bl = sorted(bars)
        for bi, p in enumerate(bl):
            nx = bl[bi + 1] if bi + 1 < len(bl) else 99
            tags = [('g2',) + x for x in bars[p]] + ([('part', flg[p])] if p in flg else [])
            if tags: ad(8*p - 1, [wait_vm(*tags)])
            ad(8*p, [barrier()])
            if g.fine: ad(8*p - 2, [g.fstamp()])
            if p in iss: st.append((sum([g.g2_dma(*x) for x in iss[p]], []), 8*p + 1, 8*nx - 1))
            if p in flg: st.append((g.red_flag(flg[p] + 1), 8*p + 1, 8*p + 10))
            if p in chk:
                pp, cs = chk[p]
                ck = g.check(f"r{p}", g.vPR, g.vPA, sPART, cs[-1] + 1)
                st.append((g.red_poll(), 8*pp + 12, 8*pp + 24)); st.append((ck, 8*p - 8, 8*p - 1))
                R_ = sum([g.red_ld(c) for c in cs], [])
                st.append((spaced(R_, 'ld', g.lsp), 8*p + 4, min(8*p + 14 + g.lsp*4*len(cs), 791)))
        for p, cs in mm.items(): st.append((sum([g.red_m(c) for c in cs], []), 8*p + 4, 8*p + 38))
        ends = {0: 18, 1: 21}
        for n in range(8):
            e = ends.get(n, 11*n + 10); b = 8*(e + 1)
            st.append((spaced(g.g2_epi(n), 'st', 5 if n == 0 else g.esp), b + 2, b + (23 if n == 0 else 14 + 3*g.esp)))
        st = [(X2, 0, 40)] + st + [(X1, 0, 8*14 - 2), (X3, 8*14 + 1, 8*16 - 2), (X4, 8*16, 8*19), (X5, 8*19, 8*26 - 2)]
        g.rep.append("G2")
        P = pack(mf, F, st, rep=g.rep)
        P += g.stamp()
        dl = [c for p in chk for c in chk[p][1]]; dm = [c for p in mm for c in mm[p]]
        rest = [c for c in range(7) if c not in dl]; a_, b_ = rest[:g.tpre], rest[g.tpre:]
        LD = lambda cs: sum([g.red_ld(c) for c in cs], []); M = lambda cs: sum([g.red_m(c) for c in cs], [])
        fs = lambda: [g.fstamp()] if g.fine else []
        pend = [c for c in dl if c not in dm]
        P += g.red_poll() + g.g2_epi(8) + M(pend) + g.check("t0", g.vPR, g.vPA, sPART, 7) + [barrier()] + LD(a_) + fs()
        P += [wait_vm(('part', 8)), barrier()] + g.red_flag(9) + LD(b_[:g.tmid]) + g.red_poll() + LD(b_[g.tmid:]) + fs()
        P += g.check("t2", g.vPR, g.vPA, sPART, 9) + [barrier()] + fs() + LD([7, 8]) + M(rest + [7, 8])
        return P
    def main(g):
        P = g.prologue()
        hA = g.half_addrs(); g.fixed1()
        P += g.stamp()
        P += [wait_vm(('w', 0), ('w', 1), ('x', 0)), barrier()] + g.pre_reads
        P += g.stamp()
        phL, phP = g.phiA_loads()
        pf = g.pf
        P += g.phase1(0, [(g.prefetchQ() if pf else [], 96, 128), (g.gate_late + [wait_ds()], 200, 230)]) + g.stamp()
        P += g.phase1(1, [((g.prefetch13(2) if pf else []) + phL, 60, 280), (g.silu(0, 0), 4, 288)]) + g.stamp()
        P += g.phase1(2, [(phP + (g.prefetch13(3) if pf else []), 60, 280), (g.silu(1, 1), 4, 288)]) + g.stamp()
        A, Q, B, C = g.attn_post()
        P += g.phase1(3, [(A + [wait_ds()], 4, 169), (B + C + Q, 171, 288)]) + g.stamp()
        rA, rB = g.g2_rd_addrs(); g2a = g.g2_dma_addrs()
        P += g.phase1(4, [(g.flag(vJ[0], vJ[1]) + (g.prefetch13(4) + g.prefetch2(v(T), v(T+1), v(T+2)) if pf else []) + hA, 43, 170), (rA + g2a, 180, 288), (g.silu(1, 2), 4, 288)],
                      extra={41: [wait_vm('kv')]}) + g.stamp()
        poll0, poll1, L1, L2, L3, W = g.kv_gather()
        vH, vH8 = v(2), v(3)
        hr = [valu('v_lshlrev_b32', vH8, 4, vLane), salu('s_lshl_b32', sT3, sR, 12), valu('v_add_u32', vH, sT3, vH8), valu('v_add_u32', vH8, 65536, vH)]
        H = lambda ks: g.h_reads(ks, vH, vH8)
        for i in (16*98 + 9, 16*98 + 10): g.F1.pop(i)
        X = {135: [wait_vm(('g2', 0, 0)), wait_ds()], 136: [barrier()], 30: [valu('v_mov_b32', g.dO10, v(T + 20))]}
        rr = [x for q in range(2) for y in g.g2_reads(q) for x in y]
        for i, x in enumerate(rr): X.setdefault(137 + min(i, 6), []).append(x)
        P += g.phase1(5, [(g.g2_dma(0, 0) + g.g2_dma(1, 0), 107, 135), (poll0 + poll1, 0, 41), (hr + H([0, 1]), 16, 40), (H([2, 3]), 40, 60), (H([4, 5]), 60, 90),
                          (L1, 43, 66), (L2 + L3, 66, 107), (W, 107, 132), (g.silu(0, 3), 4, 132)], extra=X) + g.stamp()
        oa, orr = g.o_reads()
        X1 = H([6, 7]) + g.o_part() + g.silu(1, 4) + oa + [wait_ds()]
        P += g.gemm2(X1, g.g2_dma(0, 1) + g.g2_dma(1, 1), H([8]) + orr, rB, g.red_setup()) + g.stamp() + g.fdump()
        import asmlib; asmlib.LOOSE = bool(g.dbg)
        if 'w' in g.dbg: P = [x for x in P if not (x.k == 'wvm')]
        if 'b' in g.dbg: P = [x for x in P if not (x.k == 'bar')]
        if 'v' in g.dbg: P = [x for x in P if not (x.k in ('trans',) or x.t.startswith('v_mul_f32') or x.t.startswith('v_add_f32') or x.t.startswith('v_cvt'))]
        if 'd' in g.dbg: P = [x for x in P if not (x.k == 'dma')]
        if 'r' in g.dbg: P = [x for x in P if not (x.t.startswith('ds_read_b64_tr'))]
        if 'c' in g.dbg: P = [x if '_spin' not in x.t else label(x.t.split('\n')[-1][:-1]) for x in P]
        if 'L' in g.dbg: P = [x for x in P if not (x.k == 'vld' and 'dwordx4 a' in x.t)]
        if 'p' in g.dbg: P = [x for x in P if not (isinstance(x.tag, tuple) and x.tag[0] == 'part')]
        rep = {}
        F = finalize(P, report=rep)
        print(rep, g.rep, file=sys.stderr)
        return text(F) + "\ns_endpgm\n" + "\n".join(g.tails) + "\nL_end:"

def build(**kw):
    g = G(**kw)
    body = g.main()
    hdr = "; gated mix: hedgehog linear attention + SwiGLU FFN fused in one launch (text emitted by my own generator script)\n"
    hdr += "; @launch grid=(256,1,1) block=(256,1,1) lds=163840\n"
    hdr += '.amdgcn_target "amdgcn-amd-amdhsa--gfx950"\n'
    return hdr + kernel_text(KN + "_kernel", body, vgpr=256, agpr=256)
if __name__ == "__main__":
    kw = {}
    out = sys.argv[1]
    for x in sys.argv[2:]:
        k, val = x.split("="); kw[k] = eval(val)
    t = build(**kw)
    open(out, "w").write(t)
```

```python
import sys
from asmlib import *
KN = "gated_mix__linear_kernel_hedgehog__glu_gated_swiglu__prompt"
H0 = 0; RING = 73728; MISC = 139264; PHIQ = MISC; LOGIT = MISC + 20480; DUMMY = MISC + 20992; KVE = MISC + 21248; KVM = 135168; GA = MISC
PHIK = 32768; VV = PHIK + 20480
S0 = 90112; ST = [S0, 0, 45056]; WST = 11264
WS_PART = 0; WS_SC = 37748736; WS_KV = WS_SC + 8192; WS_KV_BYTES = 16*2*16*1536; WS_STAMP = 48 << 20; WS_FL = 40 << 20
LOG2E = 0x3fb8aa3b; NLOG2E = 0xbfb8aa3b
OOB = 0x7ff00000
sX, sQ, sQ2, sW1, sW3, sWH, sW2, sWO, sPART, sKV, sDBG, sMI = [s(28 + 4*i, 4) for i in range(12)]
sJ, sM, sW, sR, sC = s(76), s(77), s(78), s(79), s(80)
sOff, sColF, sColH, sMb, sT0, sT1, sNL, sL, sOffX, sMx, sT2, sRowF, sRowH = [s(81 + i) for i in range(13)]
sExp = s(3); sOUT = sWH; sMask = s(94, 2); sStamp = s(96, 2); sT3 = s(98); sT4 = s(99); sFl = s(27); sXA, sXB, sFA, sFB, sQA, sQB, sHA, sHB = s(0), s(1), s(12), s(13), s(6), s(7), s(10), s(11); sPar = s(100); sIdx = s(101)
vLane, vDmaF, vRdF0, vRdF1, vHw = v(0), v(1), v(2), v(3), v(4)
vJ = [v(5), v(6), v(7)]
vPhiA = [v(8, 4), v(12, 4)]
vE = [v(16 + i) for i in range(8)]
vHf = [v(24, 4), v(28, 4)]
T = 32; WF = 64; ACC = [128, 192]
def xf(ks, tb):
    i = ks*4 + tb
    return a(4*i, 4) if i < 64 else v(96 + 4*(i - 64), 4)
def slot(G): return ((G + 7) % 8) * 8192
def srd(P, d, lo, nbytes, add=0):
    if add >= 0: P += [glue(salu('s_add_u32', d[0], s(lo), add), salu('s_addc_u32', d[1], s(lo+1), 0))]
    else: P += [glue(salu('s_sub_u32', d[0], s(lo), -add), salu('s_subb_u32', d[1], s(lo+1), 0))]
    P += [salu('s_mov_b32', d[2], nbytes), salu('s_mov_b32', d[3], '0x20000')]

class G:
    def __init__(g, stamps=False, dump=None, pf=True, dbg='', cpf=True, pmods='sc1', fine=False, plan=0, esp=8, lsp=14, tpre=1, tmid=2, xpf=False, early=0, nsh=16, lead=8, fine0=None, rot=True, tlb=True, pfp=1, qlate=False, kvlat=50, p3b=170):
        g.kvlat = kvlat; g.p3b = p3b
        g.qlate = qlate
        g.rot = rot; g.tlb = tlb; g.pfp = pfp
        g.fine0 = fine0; g.vF0 = v(15) if fine0 == 0 else v(4)
        g.lead = lead; g.mkSA()
        g.nsh = nsh
        g.xpf = xpf; g.early = early
        g.tpre = tpre; g.tmid = tmid
        g.esp = esp; g.lsp = lsp
        F2 = {37: 1, 48: 2, 59: 3, 70: 4, 81: 5, 92: 6}
        PL = {0: ((F2, {}, {}), (7, 7)),
              1: ((F2, {75: (64, [0, 1, 2])}, {}), (7, 7)),
              2: ((F2, {75: (64, [0, 1, 2, 3])}, {}), (7, 7)),
              3: ((F2, {70: (59, [0, 1, 2]), 92: (81, [3, 4])}, {}), (7, 7))}
        g.plan, g.tthr = PL[plan]; g.tailc = [c for c in range(5, 9) if c not in [x for p in g.plan[1] for x in g.plan[1][p][1]]]
        g.fine = fine; g.nf = 0; g.fregs = []
        g.pmods = pmods
        g.cpf = cpf; g.tails = []; g.rep = []
        g.dbg = dbg
        g.stamps = stamps; g.dump = dump; g.ns = 0; g.pf = pf
    def stamp(g):
        if not g.stamps: return []
        i = g.ns; g.ns += 1
        return [raw(f"s_memtime {sStamp}", 'salu', [], [sStamp]), raw(f"s_memrealtime s[4:5]", 'salu'), raw("s_waitcnt lgkmcnt(0)", 'wait'),
                valu('v_mov_b32', v(6), sStamp[0]), valu('v_mov_b32', v(7), s(4)), valu('v_mov_b32', v(5), sT4),
                vstore('buffer_store_dwordx2', v(6, 2), v(5), sPART, 0, off=8*i)]
    def prologue(g):
        P = []
        P += [scmp('s_cmp_ge_u32', s(2), 256), raw('s_cbranch_scc1 L_end')]
        if g.stamps: P += [raw('s_memrealtime s[72:73]', 'label')]
        P += [raw('s_load_dwordx16 s[4:19], s[0:1], 0'), raw('s_load_dwordx8 s[20:27], s[0:1], 64')]
        t0, t1, t2, t3, t4 = [v(T + 16 + i) for i in range(5)]
        P += [valu('v_lshrrev_b32', t0, 6, v(0)), valu('v_and_b32', vLane, 63, v(0))]
        P += [valu('v_readfirstlane_b32', sW, t0)]
        lj = {16: 1, 8: 2, 4: 3}[g.nsh]
        P += [salu('s_bfe_u32', sJ, s(2), hex(((4 - lj) << 16) | 0)), salu('s_lshl_b32', sJ, sJ, lj), salu('s_bfe_u32', sT0, s(2), hex((lj << 16) | 3)), salu('s_add_u32', sJ, sJ, sT0),
              salu('s_lshr_b32', sIdx, s(2), 3 + lj)]
        if lj > 1: P += [salu('s_bfe_u32', sM, s(2), hex(((lj - 1) << 16) | (4 - lj))), salu('s_lshl_b32', sM, sM, 5 - lj), salu('s_add_u32', sM, sM, sIdx)]
        else: P += [salu('s_mov_b32', sM, sIdx)]
        P += [salu('s_lshr_b32', sR, sW, 1), salu('s_and_b32', sC, sW, 1)]
        P += [salu('s_mov_b32', sNL, hex(NLOG2E)), salu('s_mov_b32', sL, hex(LOG2E))]
        P += [salu('s_mul_i32', sT0, sJ, 288), salu('s_and_b32', sT1, sJ, 1), salu('s_lshl_b32', sT2, sT1, 5), salu('s_add_u32', sRowF, sT0, sT2),
              salu('s_lshl_b32', sT2, sT1, 8), salu('s_add_u32', sRowH, sT0, 256), salu('s_sub_u32', sRowH, sRowH, sT2),
              salu('s_lshl_b32', sColF, sRowF, 1), salu('s_lshl_b32', sColH, sRowH, 1)]
        P += [salu('s_lshl_b32', sMb, sW, 11), salu('s_add_u32', sMb, sMb, RING), salu('s_lshl_b32', sMx, sW, 12)]
        if g.stamps: g.early_part = True; P += [salu('s_lshl_b32', sT4, s(2), 10), salu('s_lshl_b32', sT0, sW, 8), salu('s_add_u32', sT4, sT4, sT0), salu('s_add_u32', sT4, sT4, WS_STAMP)]
        P += [valu('v_lshrrev_b32', t0, 3, vLane), salu('s_lshl_b32', sT0, sW, 3), valu('v_add_u32', t0, sT0, t0), valu('v_mul_u32_u24', t0, 9216, t0),
              valu('v_bfe_u32', t1, vLane, 4, 1), salu('s_lshl_b32', sT1, sC, 1), valu('v_or_b32', t1, sT1, t1), valu('v_bfe_u32', t2, vLane, 1, 2),
              valu('v_xor_b32', t1, t1, t2) if 's' not in g.dbg else valu('v_mov_b32', t1, t2), valu('v_lshlrev_b32', t1, 5, t1), valu('v_and_b32', t2, 1, vLane), valu('v_lshlrev_b32', t2, 4, t2),
              valu('v_add3_u32', vDmaF, t0, t1, t2)]
        dX0, dX1, rX0, rX1 = [v(T + i) for i in range(4)]
        P += [salu('s_lshl_b32', sT0, sM, 7), salu('s_lshl_b32', sT1, sW, 5), salu('s_add_u32', sT0, sT0, sT1), valu('v_lshrrev_b32', t0, 3, vLane),
              valu('v_add_u32', t0, sT0, t0), valu('v_mul_u32_u24', t0, 1152, t0), valu('v_lshrrev_b32', t1, 4, vLane), valu('v_and_b32', t2, 7, vLane),
              valu('v_xor_b32', t1, t1, t2), valu('v_lshlrev_b32', t1, 4, t1), valu('v_add_u32', dX0, t0, t1), valu('v_xor_b32', t1, 64, t1), valu('v_add_u32', dX1, t0, t1)]
        P += [raw('s_waitcnt lgkmcnt(0)', 'wait')]
        if g.stamps: P += [raw('s_mov_b32 s97, s72\ns_mov_b32 s96, s72', 'label'), raw('s_memrealtime s[74:75]\ns_waitcnt lgkmcnt(0)\ns_mov_b32 s95, s74', 'label')]
        if g.stamps: srd(P, sPART, 26, 64 << 20)
        P += [salu('s_and_b32', sPar, sJ, 1 if g.rot else 0), salu('s_mul_i32', sXA, sPar, 512), salu('s_mul_i32', sXB, sPar, -640), salu('s_mul_i32', sT0, sPar, 8*294912),
              salu('s_add_u32', sFA, sColF, sT0), salu('s_mul_i32', sT1, sPar, -10*294912), salu('s_add_u32', sFB, sColF, sT1)]
        srd(P, sX, 4, 2048*1152); srd(P, sW1, 14, 576*9216); srd(P, sW3, 16, 576*9216 + 1024, -1024)
        P += g.dmaX(0) + g.dmaW(0) + g.dmaW(1)
        if 'f' in g.dbg: P += [raw('s_memrealtime s[74:75]\ns_waitcnt lgkmcnt(0)\ns_mov_b32 s97, s74\ns_waitcnt vmcnt(0)\ns_memrealtime s[74:75]\ns_waitcnt lgkmcnt(0)\ns_mov_b32 s95, s74', 'label')]
        if g.pf and not g.xpf: P += g.prefetch13(0) + g.prefetch13(1)[6:]
        if g.pf and g.xpf:
            P += [salu('s_and_b32', sT1, sJ, 1), salu('s_lshl_b32', sT1, sT1, 6), salu('s_lshl_b32', sT0, sM, 7), salu('s_add_u32', sT0, sT0, sT1), salu('s_lshl_b32', sT1, sW, 4),
                  salu('s_add_u32', sT0, sT0, sT1), valu('v_and_b32', t0, 15, vLane), valu('v_add_u32', t0, sT0, t0), valu('v_mul_u32_u24', t0, 1152, t0), valu('v_lshrrev_b32', t1, 4, vLane),
                  valu('v_lshl_add_u32', t0, t1, 7, t0), vload('buffer_load_dword', v(T + 22), t0, sX, 0, off=128, tag='pf')]
            g.xpf2 = vload('buffer_load_dword', v(T + 22), t0, sX, 0, off=640, tag='pf')
            P += g.prefetch13(0) + [g.xpf2]
        if g.cpf:
            ca = v(T + 14, 2); t0 = v(T + 23)
            P += [raw('s_getpc_b64 s[72:73]\nL_pc:', 'salu', [], [s(72, 2)]), salu('s_lshr_b32', sT0, s(2), 3), salu('s_lshl_b32', sT0, sT0, 2), salu('s_add_u32', sT0, sT0, sW),
                  salu('s_mul_i32', sT0, sT0, 5), valu('v_min_u32', t0, 4, vLane), valu('v_add_u32', t0, sT0, t0), valu('v_lshlrev_b32', t0, 7, t0),
                  raw(f'v_min_u32 {t0}, L_end-L_pc-4, {t0}', 'valu', [t0], [t0]), valu('v_and_b32', t0, -4, t0), valu('v_mov_b32', ca[1], s(73)),
                  I(f'v_add_co_u32 {ca[0]}, vcc, s72, {t0}', 'valu', [t0, s(72)], [ca[0], {('s', 'vcc')}]),
                  I(f'v_addc_co_u32 {ca[1]}, vcc, 0, {ca[1]}, vcc', 'valu', [ca[1], {('s', 'vcc')}], [ca[1], {('s', 'vcc')}]),
                  I(f'global_load_dword {v(T + 22)}, {ca}, off', 'vld', [ca], [v(T + 22)], tag='pf', dep=40)]
        t0 = v(T + 16)
        srd(P, sQ, 6, 576*3456); srd(P, sQ2, 6, 576*3456 - 12800, 12800); srd(P, sW2, 18, 4608*1152); srd(P, sWO, 10, 576*1152 + 2048, -2048)
        srd(P, sKV, 26, WS_KV_BYTES, WS_KV); srd(P, sPART, 26, 64 << 20); srd(P, sDBG, 24, 256); srd(P, sMI, 20, 1152)
        P += [glue(scmp('s_cmp_ge_u32', sW, 2), salu('s_cselect_b32', sWH[0], s(16), s(14)), salu('s_cselect_b32', sWH[1], s(17), s(15))),
              salu('s_mov_b32', sWH[2], 576*9216), salu('s_mov_b32', sWH[3], '0x20000')]
        P += [salu('s_mul_i32', sQA, sPar, 8*110592), salu('s_mul_i32', sQB, sPar, -10*110592), salu('s_mul_i32', sT0, sPar, 8*294912), salu('s_add_u32', sHA, sColH, sT0),
              salu('s_mul_i32', sT0, sPar, -10*294912), salu('s_add_u32', sHB, sColH, sT0)]
        P += [salu('s_lshl_b32', sT0, sM, 8), salu('s_lshl_b32', sT1, sJ, 2), salu('s_add_u32', sT0, sT0, sT1), salu('s_add_u32', sT0, sT0, WS_FL), salu('s_mov_b32', sT1, OOB),
              glue(scmp('s_cmp_eq_u32', sW, 0), salu('s_cselect_b32', sFl, sT0, sT1), salu('s_cselect_b32', sExp, '0xffff', 0)),
              valu('v_mov_b32', t0, sT1), valu('v_mov_b32', t1, sFl), valu('v_cmp_eq_u32', 'vcc', 0, vLane), valu('v_mov_b32', t2, 0), valu('v_cndmask_b32', t0, t0, t1, 'vcc'),
              vstore('buffer_store_dword', t2, t0, sPART, 0, mods='sc1', tag='arm')]
        gv = [v(T + 8 + i) for i in range(3)]
        P += [salu('s_lshl_b32', sT0, sW, 7), valu('v_lshlrev_b32', t0, 1, vLane), valu('v_add_u32', t0, sT0, t0), salu('s_lshl_b32', sT1, sPar, 9)]
        for i in range(3):
            P += [valu('v_add_u32', t1, 512*i, t0), valu('v_add_u32', t2, sT1, t1), valu('v_subrev_u32', t3, 1152, t2), valu('v_min_u32', t2, t2, t3)]
            if i == 2: P += [valu('v_cmp_gt_u32', 'vcc', 1152, t1), valu('v_cndmask_b32', t2, t1, t2, 'vcc')]
            P += [vload('buffer_load_ushort', gv[i], t2, sMI, 0)]
        if g.pf and not g.qlate: P += g.prefetchQ()
        if g.tlb:
            P += [valu('v_mov_b32', t1, 0), salu('s_mul_i32', sT0, sJ, 331776), vload('buffer_load_dword', v(T + 22), t1, sW2, sT0, tag='pf'), salu('s_mul_i32', sT0, sJ, 41472),
                  vload('buffer_load_dword', v(T + 22), t1, sWO, sT0, off=2048, tag='pf'), salu('s_mul_i32', sT0, sJ, 49152), vload('buffer_load_dword', v(T + 22), t1, sKV, sT0, tag='pf'),
                  vload('buffer_load_dword', v(T + 22), t1, sDBG, 0, tag='pf'), salu('s_mul_i32', sT0, sM, 144*16384), valu('v_and_b32', t1, 3, vLane), valu('v_mul_u32_u24', t1, 786432 - 256, t1),
                  vload('buffer_load_dword', v(T + 22), t1, sPART, sT0, tag='pf')]
        P += g.dmaX(1) + g.dmaW(2) + g.dmaW(3)
        if g.early: P += g.dmaX(2) + g.dmaW(4) + g.dmaW(5)
        P += [valu('v_lshrrev_b32', t0, 4, vLane), valu('v_bfe_u32', t1, vLane, 2, 2), valu('v_lshlrev_b32', t2, 11, t0), valu('v_lshl_add_u32', t2, t1, 7, t2),
              valu('v_and_b32', t3, 3, vLane), valu('v_lshl_add_u32', t2, t3, 3, t2), valu('v_lshrrev_b32', t1, 1, t1), valu('v_and_b32', t0, 1, t0),
              valu('v_lshl_or_b32', t1, t0, 1, t1), salu('s_lshl_b32', sT1, sC, 1), valu('v_xor_b32', t1, sT1, t1), valu('v_lshlrev_b32', t1, 5, t1),
              valu('v_add_u32', t2, RING, t2), valu('v_add_u32', vRdF0, t2, t1), valu('v_xor_b32', t1, 32, t1), valu('v_add_u32', vRdF1, t2, t1)]
        P += [valu('v_and_b32', t0, 15, vLane), valu('v_lshrrev_b32', t1, 1, t0), valu('v_lshrrev_b32', t2, 4, vLane), valu('v_xor_b32', t1, t1, t2),
              valu('v_lshlrev_b32', t1, 4, t1), salu('s_lshl_b32', sT0, sR, 13), valu('v_lshlrev_b32', t0, 7, t0), valu('v_add_u32', t0, sT0, t0),
              valu('v_add_u32', rX0, t0, t1), valu('v_xor_b32', t1, 64, t1), valu('v_add_u32', rX1, t0, t1)]
        P += [salu('s_lshl_b32', sT0, sR, 12), salu('s_lshl_b32', sT1, sC, 13), salu('s_add_u32', sT0, sT0, sT1), valu('v_lshlrev_b32', t0, 4, vLane), valu('v_add_u32', vHw, sT0, t0)]
        main = P; P = []
        P += g.qkv_addrs()
        P += [salu('s_lshl_b32', sT0, sW, 8), valu('v_lshrrev_b32', t0, 5, vLane), valu('v_lshlrev_b32', t0, 7, t0), valu('v_bfe_u32', t1, vLane, 3, 2),
              valu('v_lshl_add_u32', t0, t1, 5, t0), valu('v_bfe_u32', t1, vLane, 2, 1), valu('v_lshl_add_u32', t0, t1, 10, t0), valu('v_and_b32', t1, 3, vLane),
              valu('v_lshl_add_u32', t0, t1, 3, t0), salu('s_add_u32', sT0, sT0, GA), valu('v_add_u32', t0, sT0, t0)]
        g.late = P; P = main
        g.gate_late = []
        for i in range(3):
            d = v(T + 12, 2)
            g.gate_late += [valu('v_lshl_or_b32', d[0], gv[i], 16, gv[i]), valu('v_mov_b32', d[1], d[0]), dsw('ds_write_b64', t0, d, off=2048*i)]
        return P
    def prefetch13(g, ch, t0=v(T + 21), d=v(T + 22)):
        rw = 144//g.nsh
        P = [salu('s_mul_i32', sT0, sIdx, 4*rw), salu('s_mul_i32', sT1, sW, rw), salu('s_add_u32', sT0, sT0, sT1), valu('v_min_u32', t0, rw - 1, vLane),
             valu('v_add_u32', t0, sT0, t0), valu('v_mul_u32_u24', t0, 9216, t0)]
        if ch < 4: P += [salu('s_add_u32', sT0, sColF, 128*ch)]
        else: P += [salu('s_mov_b32', sT0, sColH)]
        P += [vload('buffer_load_dword', d, t0, sW1, sT0, tag='pf'), vload('buffer_load_dword', d, t0, sW3, sT0, off=1024, tag='pf')]
        return P
    def prefetchQ(g):
        t0 = v(T + 21); t1 = v(T + 23); d = v(T + 22); d2 = v(T + 20); rw = 144//g.nsh
        P = [salu('s_mul_i32', sT0, sIdx, 4*rw), salu('s_mul_i32', sT1, sW, rw), salu('s_add_u32', sT0, sT0, sT1), valu('v_min_u32', t0, 53, vLane),
             valu('v_mul_u32_u24', t1, 43, t0), valu('v_lshrrev_b32', t1, 8, t1), valu('v_mul_u32_u24', d2, 6, t1), valu('v_sub_u32', t0, t0, d2),
             valu('v_add_u32', t1, sT0, t1), valu('v_mul_u32_u24', t1, 3456, t1), valu('v_lshrrev_b32', d2, 1, t0), valu('v_mul_u32_u24', d2, 1152, d2), valu('v_add_u32', t1, t1, d2),
             valu('v_and_b32', t0, 1, t0), valu('v_mul_u32_u24', t0, 68, t0), valu('v_add_u32', t1, t1, t0), salu('s_mul_i32', sT0, sJ, 72)]
        for i in range(rw//9): P += ([salu('s_add_u32', sT0, sT0, 9*3456)] if i else []) + [vload('buffer_load_dword', d, t1, sQ, sT0, tag='pf')]
        return P
    def prefetch2(g, t0, t1, d):
        k = 16//g.nsh
        P = [salu('s_mul_i32', sT0, sIdx, 162*k), salu('s_mul_i32', sT1, sW, 41*k), salu('s_add_u32', sT0, sT0, sT1), valu('v_min_u32', t0, 40, vLane),
             valu('v_add_u32', t0, sT0, t0), valu('v_lshlrev_b32', t0, 7, t0), salu('s_mul_i32', sT0, sJ, 331776)]
        for i in range(k): P += ([salu('s_add_u32', sT0, sT0, 41*128)] if i else []) + [vload('buffer_load_dword', d, t0, sW2, sT0, tag='pf')]
        P += [salu('s_mul_i32', sT0, sIdx, 21*k), salu('s_mul_i32', sT1, sW, 6*k), salu('s_add_u32', sT0, sT0, sT1), valu('v_min_u32', t1, 6*k - 1, vLane),
              valu('v_add_u32', t1, sT0, t1), valu('v_lshlrev_b32', t1, 7, t1), salu('s_mul_i32', sT0, sJ, 41472),
              vload('buffer_load_dword', d, t1, sWO, sT0, off=2048, tag='pf')]
        return P
    def qkv_addrs(g):
        t0, t1, t2, t3, t4 = [v(T + 16 + i) for i in range(5)]
        g.dQ = v(T + 24); g.rQ = [v(T + 25), v(T + 26), v(T + 27), v(T + 30)]; g.rQ3b = v(T + 28); g.isG = v(T + 29)
        P = []
        P += [valu('v_lshrrev_b32', t0, 4, vLane), salu('s_lshl_b32', sT1, sC, 2), valu('v_or_b32', t1, sT1, t0), valu('v_lshlrev_b32', t1, 1, t1),
              valu('v_and_b32', t2, 15, vLane), valu('v_xor_b32', t1, t1, t2),
              salu('s_lshl_b32', sT0, sW, 3), valu('v_add_u32', t0, sT0, t0), valu('v_mul_u32_u24', t0, 3456, t0),
              valu('v_cmp_le_u32', 'vcc', 6, t1), valu('v_cndmask_b32', t2, 0, v(T+31), 'vcc') ]
        P.insert(0, valu('v_mov_b32', v(T+31), 1))
        P += [valu('v_cmp_le_u32', 'vcc', 11, t1), valu('v_cndmask_b32', t3, 0, v(T+31), 'vcc'),
              valu('v_mul_u32_u24', t4, 6, t2), valu('v_sub_u32', t1, t1, t4), valu('v_mul_u32_u24', t4, 5, t3), valu('v_sub_u32', t1, t1, t4),
              valu('v_min_u32', t1, 4, t1), valu('v_add_u32', t2, t2, t3), valu('v_mul_u32_u24', t2, 1152, t2), valu('v_add_u32', t0, t0, t2),
              valu('v_lshrrev_b32', t3, 2, t1), valu('v_lshlrev_b32', t1, 4, t1), valu('v_lshlrev_b32', t3, 3, t3), valu('v_sub_u32', t1, t1, t3),
              salu('s_mul_i32', sT0, sJ, 72), valu('v_add3_u32', g.dQ, t0, t1, sT0)]
        def B(seg, n, c):
            b = 32*c + 8*n
            if b >= 64: b += 8
            return [0, 96, 176][seg] + b
        tabs = [[(0, i) for i in range(4)], [(0, 4), (2, 0), (2, 1), (2, 2)], [(1, i) for i in range(4)], [(1, 4), (2, 3), (2, 4), (2, 4)]]
        P += [valu('v_lshrrev_b32', t0, 4, vLane), valu('v_bfe_u32', t1, vLane, 2, 2), valu('v_lshlrev_b32', t2, 11, t0), valu('v_lshl_add_u32', t2, t1, 8, t2),
              valu('v_add_u32', t2, RING, t2), valu('v_and_b32', t0, 1, t0), valu('v_lshl_or_b32', t0, t0, 2, t1), valu('v_lshlrev_b32', t0, 5, t0),
              valu('v_and_b32', t1, 3, vLane), valu('v_lshlrev_b32', t1, 3, t1)]
        for b in range(4):
            pk = [sum(B(sg, n, c) << (8*i) for i, (sg, n) in enumerate(tabs[b])) for c in range(2)]
            dst = g.rQ[b] if b < 3 else g.rQ3b
            P += [salu('s_mov_b32', sT0, hex(pk[1])), glue(scmp('s_cmp_eq_u32', sC, 0), salu('s_cselect_b32', sT0, hex(pk[0]), sT0))]
            P += [valu('v_lshrrev_b32', t3, t1, sT0) if False else valu('v_bfe_u32', t3, sT0, t1, 8), valu('v_xor_b32', t3, t3, t0), valu('v_add_u32', dst, t2, t3)]
        P += [valu('v_and_b32', t1, 3, vLane), valu('v_cmp_eq_u32', 'vcc', 3, t1), valu('v_lshrrev_b32', t3, 2, vLane), valu('v_lshlrev_b32', t3, 3, t3),
              valu('v_add_u32', t3, GA, t3), valu('v_cndmask_b32', g.rQ3b, g.rQ3b, t3, 'vcc'), valu('v_cndmask_b32', g.isG, 0, v(T+31), 'vcc')]
        return P
    def dmaX(g, d):
        dX = [v(T), v(T + 1)]
        P = [salu('s_add_u32', 'm0', sMx, (d % 4)*16384)]
        for aa in range(4):
            P += [salu('s_add_u32', sOffX, sXA if d < 5 else sXB, d*128 + aa*8192), dma(dX[aa & 1], sX, sOffX, off=aa*1024, tag=('x', d))]
        return P
    def mkSA(g):
        n = 36 - g.lead; SA = []; a_ = b_ = 0
        for p in range(36):
            if a_ < 18 and (p >= n - 1 or a_*n <= p*18 or b_ >= a_): SA.append((0, a_)); a_ += 1
            else: SA.append((1, b_)); b_ += 1
        g.SA = SA; g.U = {ks: p for p, (ch, ks) in enumerate(SA) if ch == 0}
    def dmaW(g, Gk):
        ph, ks = divmod(Gk, 18)
        m0 = salu('s_add_u32', 'm0', sMb, slot(Gk))
        if Gk >= 90:
            i = Gk - 90
            return [m0, salu('s_add_u32', sOff, sHA if i < 5 else sHB, 2*i*32*9216), dma(g.dH0, sWH, sOff, tag=('w', Gk)), dma(g.dH1, sWH, sOff, off=1024, tag=('w', Gk))]
        if ph == 2:
            return [m0, salu('s_add_u32', sOff, sQA if ks < 10 else sQB, ks*32*3456), dma(g.dQ, sQ, sOff, tag=('w', Gk)), dma(g.dQ, sQ2, sOff, off=1024, tag=('w', Gk))]
        ch = [0, 1, None, 2, 3][ph]
        if Gk < 36: ch, ks = g.SA[Gk]
        return [m0, salu('s_add_u32', sOff, sFA if ks < 10 else sFB, ks*32*9216 + ch*128), dma(vDmaF, sW1, sOff, tag=('w', Gk)), dma(vDmaF, sW3, sOff, off=1024, tag=('w', Gk))]
    def wfrag(g, Gk, fi): return v(WF + (Gk % 2)*16 + fi*4, 4)
    def readsW(g, Gk):
        ph = Gk // 18; R_ = []
        for fi in range(4):
            f = g.wfrag(Gk, fi); pre = []
            if Gk >= 90: ad = g.rH; o = slot(Gk) + (fi >> 1)*1024 + (fi & 1)*4096; zo = 256
            elif ph == 2:
                ad = g.rQ[fi]; o = slot(Gk); zo = 1024
                if fi == 3:
                    ks = Gk - 36; c = (ks >> 3)*2048 + (ks & 7)*128 - slot(Gk)
                    pre = [salu('s_mov_b32', sT3, c), valu('v_mad_i32_i24', ad, g.isG, sT3, g.rQ3b)]
            else: ad = [vRdF0, vRdF1][fi >> 1]; o = slot(Gk) + (fi & 1)*1024; zo = 512
            R_.append((pre, dsr('ds_read_b64_tr_b16', f.sub(0, 2), ad, o), dsr('ds_read_b64_tr_b16', f.sub(2, 2), ad, o + zo)))
        return R_
    def readsX(g, ks):
        return [dsr('ds_read_b128', xf(ks, tb), v(T + 2 + (ks & 1)), ((ks >> 1) % 4)*16384 + tb*2048, tag=('x', ks)) for tb in range(4)]
    def accq(g, st, fi, tb): return v(ACC[st] + (fi*4 + tb)*4, 4)
    def fixed1(g):
        F = {}; ad = lambda i, x: F.setdefault(i, []).extend(x)
        g.pre_reads = []
        g.xiss = {}; g.xbusy = set()
        for d in range(4, 9):
            last = g.U[2*(d - 4) + 1] - 1; Gb = last + (last % 2)
            while Gb + 1 in g.xiss: Gb += 2
            g.xiss[Gb + 1] = d; g.xbusy.add(Gb + 2)
            assert Gb + 2 < g.U[2*d] - 3, (d, Gb, g.U)
        for Gk in range(99):
            b = 16*Gk
            for fi, (pre, r0, r1) in enumerate(g.readsW(Gk)):
                for z, r in enumerate((r0, r1)):
                    p = b - 16 + 4*fi - 5 + 2*z
                    if p < 0: g.pre_reads.append(r)
                    else: ad(p, [r])
                if pre: ad(b - 16 + 5, pre)
            xd = Gk in g.xbusy
            if Gk % 2 == 0:
                tags = [('w', Gk + 2), ('w', Gk + 3)] + [('x', ks//2) for ks, u in g.U.items() if u in (Gk + 2, Gk + 3)]
                wx = [wait_rd(('x', ks)) for ks, u in g.U.items() if u == Gk + 1]
                ad(b + 9, [wait_vm(*tags)] + wx); ad(b + 10, [barrier()])
                if g.fine0 is not None and g.fine0 <= Gk < g.fine0 + 36:
                    ad(b + 8, [raw(f"s_memrealtime s[96:97]\ns_waitcnt lgkmcnt(0)\nv_writelane_b32 v4, s96, {(Gk - g.fine0)//2}" if False else f"s_memrealtime s[96:97]\ns_waitcnt lgkmcnt(0)\nv_mov_b32 v6, s96\nv_mov_b32 v7, s96\nv_mov_b32 v5, s99\nds_write_b64 v5, v[6:7] offset:{8*((Gk - g.fine0)//2)}", 'label')]) if False else None
                    ad(b + 8, [raw(f"s_memrealtime s[96:97]\ns_waitcnt lgkmcnt(0)\nv_writelane_b32 {g.vF0}, s96, {(Gk - g.fine0)//2}", 'label')])
                if Gk + 7 <= 98:
                    m0, so, d0, d1 = g.dmaW(Gk + 7)
                    if xd: ad(b + 11, [m0, so])
                    else: ad(b + 7, [m0]); ad(b + 11, [so])
                    ad(b + 12, [d0]); ad(b + 14, [d1])
            elif Gk + 7 <= 98:
                xr = Gk < 36
                m0, so, d0, d1 = g.dmaW(Gk + 7)
                ad(b + 1, [m0]); ad(b + 3, [so]); ad(b + (8 if xr else 4), [d0]); ad(b + (10 if xr else 8), [d1])
            if Gk in g.xiss:
                D = g.dmaX(g.xiss[Gk])
                ad(b + 11, D[0:2]); ad(b + 12, D[2:3]); ad(b + 13, D[3:4]); ad(b + 14, D[4:5]); ad(b + 15, D[5:6]); ad(b + 16, D[6:7]); ad(b + 16 + 7, D[7:8]); ad(b + 16 + 8, D[8:9])
        for ks, u in g.U.items():
            for tb, x in enumerate(g.readsX(ks)):
                if u == 0: g.pre_reads.append(x)
                else: ad(16*(u - 1) + 2*tb, [x])
        g.F1 = F
    def phase1(g, ph, streams, extra={}):
        G0 = ph*18; nk = {0: 36, 5: 9}.get(ph, 18); st = ph % 2; mf = []
        for k in range(nk):
            for fi in range(4):
                for q in range(4):
                    tb = q if fi % 2 == 0 else 3 - q
                    if ph == 5: ks = 2*k + (fi >> 1); d = g.accq(st, fi & 1, tb); first = (k == 0 and fi < 2)
                    elif ph == 0: st, ks = g.SA[k]; d = g.accq(st, fi, tb); first = (ks == 0)
                    else: ks = k; d = g.accq(st, fi, tb); first = (k == 0)
                    mf.append(mfma(d, g.wfrag(G0 + k, fi), xf(ks, tb), 0 if first else None))
        fx = {i - 16*G0: list(x) for i, x in g.F1.items() if 16*G0 <= i < 16*(G0 + nk)}
        for i, x in extra.items(): fx[i] = x + fx.get(i, [])
        g.rep.append(f"P{ph}")
        return pack(mf, fx, streams, rep=g.rep)
    def silu(g, st, ch):
        P = []; n = 0
        half = (ch == 4)
        for tb in range(4):
            hf = vHf[tb % 2]
            for e in range(1 if half else 2):
                gq = g.accq(st, 2*e, tb); uq = g.accq(st, 2*e + 1, tb); t = vE[4*(n % 2):4*(n % 2) + 4]; n += 1
                P += [valu('v_mul_f32', t[i], sNL, gq[i]) for i in range(4)]
                P += [valu('v_exp_f32', t[0], t[0]), valu('v_mul_f32', gq[0], gq[0], uq[0]), valu('v_exp_f32', t[1], t[1]), valu('v_mul_f32', gq[1], gq[1], uq[1]),
                      valu('v_exp_f32', t[2], t[2]), valu('v_mul_f32', gq[2], gq[2], uq[2]), valu('v_exp_f32', t[3], t[3]), valu('v_mul_f32', gq[3], gq[3], uq[3])]
                P += [valu('v_add_f32', t[i], 1.0, t[i]) for i in range(4)]
                P += [valu('v_rcp_f32', t[i], t[i]) for i in range(4)]
                P += [valu('v_mul_f32', gq[i], gq[i], t[i]) for i in range(4)]
                P += [valu('v_cvt_pk_bf16_f32', hf[2*e], gq[0], gq[1]), valu('v_cvt_pk_bf16_f32', hf[2*e + 1], gq[2], gq[3])]
                if not half: P += [dsw('ds_write_b64', vHw, hf.sub(2*e, 2), ch*16384 + tb*1024 + 8*e)]
            if half: P += [dsw('ds_write_b64', g.vHh, hf.sub(0, 2), tb*1024)]
            for e in range(0 if half else 2): pass
        return P
    def phiA_loads(g):
        t0, t1, t2 = vJ
        P = []; srd(P, sMI, 8, 32*648)
        P += [salu('s_lshl_b32', sT0, sJ, 1), salu('s_add_u32', sT0, sT0, sC), salu('s_mul_i32', sT0, sT0, 648), salu('s_mul_i32', sT1, sC, 72), salu('s_sub_u32', sT0, sT0, sT1),
              salu('s_mov_b32', sT2, OOB)]
        for ob in range(2):
            F = vPhiA[ob]
            P += [valu('v_and_b32', t2, 15, vLane)]
            if ob == 1: P += [valu('v_and_b32', t0, 11, t2), valu('v_cmp_eq_u32', 'vcc', 0, t0), valu('v_lshrrev_b32', t2, 2, t2), valu('v_add_u32', t2, 16, t2),
                              valu('v_mov_b32', t0, sT2), valu('v_lshlrev_b32', t2, 1, t2), valu('v_cndmask_b32', t2, t0, t2, 'vcc')]
            else: P += [valu('v_lshlrev_b32', t2, 1, t2)]
            P += [valu('v_add_u32', t2, sT0, t2), valu('v_lshrrev_b32', t0, 4, vLane), valu('v_cmp_eq_u32', 'vcc', 0, t0), valu('v_mul_u32_u24', t0, 144, t0),
                  valu('v_add_u32', t0, t0, t2), valu('v_mov_b32', t1, sT2), valu('v_add_u32', t2, 576, t2), valu('v_cndmask_b32', t1, t1, t2, 'vcc')]
            gl = glue(scmp('s_cmp_eq_u32', sC, 1), salu('s_cselect_b64', sMask, 'vcc', 0)); gl.rd |= {('s', 'vcc')}
            P += [gl, valu('v_mov_b32', t2, sT2), valu('v_cndmask_b32', t2, t0, t2, sMask)]
            for e in range(4): P += [vload('buffer_load_ushort', v(T + 8*ob + e), t2 if e < 2 else t0, sMI, 0, off=36*e)]
            P += [glue(scmp('s_cmp_eq_u32', sC, 0), salu('s_cselect_b32', sT1, sT2, 0)), valu('v_max_u32', t0, sT1, t1)]
            for e in range(4): P += [vload('buffer_load_ushort', v(T + 8*ob + 4 + e), t1 if e < 2 else t0, sMI, 0, off=36*e)]
        pk = [valu('v_lshl_or_b32', vPhiA[i >> 2][i & 3], v(T + 2*i + 1), 16, v(T + 2*i)) for i in range(8)]
        return P, pk
    def softmax(g, x, tmp, outq, mx, mn, s0, s1):
        P = []
        P += [valu('v_max3_f32', mx, x[0], x[1], x[2]), valu('v_min3_f32', mn, x[0], x[1], x[2])]
        for i in range(3, 17, 2): P += [valu('v_max3_f32', mx, mx, x[i], x[i+1]), valu('v_min3_f32', mn, mn, x[i], x[i+1])]
        P += [valu('v_max_f32', mx, mx, x[17]), valu('v_min_f32', mn, mn, x[17]), valu('v_mul_f32', mx, sNL, mx), valu('v_mul_f32', mn, sL, mn)]
        for i in range(18): P += [valu('v_fma_f32', tmp[i], x[i], sNL, mn), valu('v_fma_f32', x[i], x[i], sL, mx)]
        for i in range(18):
            P += [valu('v_exp_f32', x[i], x[i]), valu('v_exp_f32', tmp[i], tmp[i])]
            if i == 2: P += [valu('v_add_f32', s0, x[0], x[1]), valu('v_add_f32', s1, tmp[0], tmp[1])]
            if i > 2: P += [valu('v_add_f32', s0, s0, x[i-1]), valu('v_add_f32', s1, s1, tmp[i-1])]
        P += [valu('v_add_f32', s0, s0, x[17]), valu('v_add_f32', s1, s1, tmp[17]), valu('v_rcp_f32', s0, s0), valu('v_rcp_f32', s1, s1)]
        for i in range(18): P += [valu('v_mul_f32', x[i], x[i], s0), valu('v_mul_f32', tmp[i], tmp[i], s1)]
        P += [valu('v_cvt_pk_bf16_f32', outq[8], x[16], x[17])]
        for i in range(8): P += [valu('v_cvt_pk_bf16_f32', outq[i], x[2*i], x[2*i+1])]
        for i in range(9): P += [valu('v_cvt_pk_bf16_f32', outq[9 + i], tmp[2*i], tmp[2*i+1])]
        return P
    def attn_post(g):
        t0, t1, t2 = vJ; A = []
        blk = lambda b, tb: g.accq(0, b, tb)
        A += [salu('s_lshl_b32', sT0, sR, 8), salu('s_add_u32', sT0, sT0, LOGIT - 192), valu('v_lshlrev_b32', t0, 2, vLane), valu('v_add_u32', t0, sT0, t0),
              valu('v_mov_b32', t1, DUMMY), valu('v_cmp_le_u32', 'vcc', 48, vLane), valu('v_cndmask_b32', t0, t1, t0, 'vcc')]
        A += [dsw('ds_write_b32', t0, blk(3, tb)[0], 64*tb) for tb in range(4)]
        Pq = [v(T + 8*tb, 4) for tb in range(4)]; Pk = [v(T + 8*tb + 4, 4) for tb in range(4)]
        A += [salu('s_lshl_b32', sT0, sC, 13), salu('s_lshl_b32', sT1, sR, 12), salu('s_add_u32', sT0, sT0, sT1), salu('s_add_u32', sT0, sT0, VV),
              salu('s_lshl_b32', sT1, sC, 2), salu('s_sub_u32', sT1, sT0, sT1),
              valu('v_and_b32', t0, 15, vLane), valu('v_lshlrev_b32', t0, 6, t0), valu('v_lshrrev_b32', t1, 4, vLane), valu('v_lshl_add_u32', t1, t1, 3, t0),
              valu('v_add_u32', t1, sT1, t1), valu('v_add_u32', t0, sT0, t0), valu('v_add_u32', t2, 24, t1), valu('v_add_u32', vE[0], 48, t0),
              valu('v_cmp_gt_u32', 'vcc', 16, vLane), valu('v_cndmask_b32', t1, t1, vE[0], 'vcc'), valu('v_cndmask_b32', t2, t2, vE[0], 'vcc'),
              valu('v_cmp_le_u32', 'vcc', 48, vLane), valu('v_mov_b32', vE[1], '0x3f80'), valu('v_cndmask_b32', t2, t2, vE[0], 'vcc')]
        for tb in range(4):
            for b in range(4):
                d = (Pq if b < 2 else Pk)[tb]; q = blk(b, tb)
                A += [valu('v_cvt_pk_bf16_f32', d[2*(b & 1)], q[0], q[1]), valu('v_cvt_pk_bf16_f32', d[2*(b & 1) + 1], q[2], q[3])]
            if tb > 0: A += [valu('v_add_u32', t1, 1024, t1), valu('v_add_u32', t2, 1024, t2)]
            A += [dsw2(t1, Pq[tb][2], Pq[tb][3], 0, 1), dsw2(t2, Pk[tb][2], Pk[tb][3], 0, 1), dsw('ds_write_b32', t0, vE[1], 1024*tb + 44)]
            A += [mfma(blk(2, tb), vPhiA[0], Pk[tb], 0), mfma(blk(3, tb), vPhiA[1], Pk[tb], 0), mfma(blk(0, tb), vPhiA[0], Pq[tb], 0), mfma(blk(1, tb), vPhiA[1], Pq[tb], 0)]
        def transp(b, r):
            R_ = [blk(b, tb)[r] for tb in range(4)]
            return [perm('v_permlane32_swap_b32', R_[0], R_[2]), perm('v_permlane32_swap_b32', R_[1], R_[3]), perm('v_permlane16_swap_b32', R_[0], R_[1]), perm('v_permlane16_swap_b32', R_[2], R_[3])]
        segs = []
        for (b0, base, who) in ((2, PHIK, 'k'), (0, PHIQ, 'q')):
            Sg = []
            tr = [transp(b0, r) for r in range(4)] + [transp(b0 + 1, 0)]
            for i in range(4):
                for x in tr: Sg.append(x[i])
            x = [blk(b0, i >> 2)[i & 3] for i in range(16)] + [blk(b0 + 1, 0)[0], blk(b0 + 1, 1)[0]]
            tmp = [v(T + i) for i in range(18)]
            oq = [blk(b0 + 1, 2), blk(b0 + 1, 3), v(T + 20, 4), blk(b0 + 1, 0), blk(b0 + 1, 1)]
            outq = [oq[i >> 2][i & 3] for i in range(18)]
            Sg += g.softmax(x, tmp, outq, vE[0], vE[1], vE[2], vE[3])
            ta_ = vE[5]
            if who == 'q': Sg += [salu('s_mul_i32', sT3, sW, 5120), salu('s_add_u32', sT3, sT3, base)]
            else: Sg += [salu('s_lshl_b32', sT3, sC, 1), salu('s_add_u32', sT3, sT3, sR), salu('s_mul_i32', sT3, sT3, 5120), salu('s_add_u32', sT3, sT3, base)]
            Sg += [valu('v_mul_u32_u24', ta_, 80, vLane), valu('v_add_u32', ta_, sT3, ta_)]
            Sg += [dsw('ds_write_b64', ta_, oq[i >> 1].sub(2*(i & 1), 2), 8*i) for i in range(9)]
            segs.append(Sg)
        A += segs[0]; Q = segs[1]
        B = []
        ta, tb_, tv = vHf[0][0], vHf[0][1], vHf[0][2]
        B += [valu('v_lshrrev_b32', t0, 4, vLane), valu('v_bfe_u32', t1, vLane, 2, 2), valu('v_lshl_add_u32', t0, t0, 3, t1),
              valu('v_and_b32', t1, 3, vLane), salu('s_mul_i32', sT0, sC, 10240), salu('s_add_u32', sT0, sT0, PHIK), valu('v_mul_u32_u24', t2, 80, t0),
              valu('v_add_u32', tb_, sT0, t2), valu('v_lshl_add_u32', ta, t1, 4, tb_),
              salu('s_lshl_b32', sT0, sC, 13), salu('s_add_u32', sT0, sT0, VV + 8), salu('s_lshl_b32', sT1, sR, 5), salu('s_add_u32', sT0, sT0, sT1),
              salu('s_sub_u32', sT1, 1, sR), valu('v_mul_u32_u24', t1, sT1, t1), valu('v_lshlrev_b32', t0, 6, t0), valu('v_lshl_add_u32', t0, t1, 3, t0), valu('v_add_u32', tv, sT0, t0)]
        D = [blk(2, 0), blk(2, 1), blk(2, 2)]
        fr = lambda ks, i: (v(ACC[0] + 48 + 4*i, 4) if ks % 2 == 0 else v(T + 24 + 4*(i & 1), 4) if i < 2 else v(ACC[0] + 44, 4) if i == 2 else vHf[1])
        def rd(ks):
            X = []
            for z in range(2):
                o = (32*ks + 4*z)
                X += [dsr('ds_read_b64_tr_b16', fr(ks, 3).sub(2*z, 2), tv, o*64), dsr('ds_read_b64_tr_b16', fr(ks, 0).sub(2*z, 2), ta, o*80),
                      dsr('ds_read_b64_tr_b16', fr(ks, 1).sub(2*z, 2), ta, o*80 + 8), dsr('ds_read_b64_tr_b16', fr(ks, 2).sub(2*z, 2), tb_, o*80 + 64)]
            return X
        mm = lambda ks: [mfma(D[i], fr(ks, i), fr(ks, 3), 0 if ks == 0 else None) for i in range(3)]
        B += rd(0) + rd(1) + mm(0) + rd(2) + mm(1) + rd(3) + mm(2) + mm(3)
        C = []
        q1, q2_ = vHf[1], v(ACC[0] + 44, 4)
        C += [salu('s_lshl_b32', sT0, sJ, 1), salu('s_add_u32', sT0, sT0, sC), salu('s_lshl_b32', sT0, sT0, 4), salu('s_add_u32', sT0, sT0, sM), salu('s_mul_i32', sT0, sT0, 1536),
              salu('s_mov_b32', sT2, OOB), glue(scmp('s_cmp_eq_u32', sR, 1), salu('s_cselect_b64', sMask, -1, 0)),
              valu('v_lshlrev_b32', t0, 4, vLane), valu('v_and_b32', t1, 15, vLane), valu('v_lshrrev_b32', t2, 4, vLane), valu('v_cmp_gt_u32', 'vcc', 3, t1),
              valu('v_mul_u32_u24', t2, 3, t2), valu('v_add_u32', t1, t1, t2), valu('v_lshlrev_b32', t1, 4, t1), valu('v_add_u32', t1, 1024 + 256, t1), valu('v_mov_b32', t2, sT2),
              valu('v_cndmask_b32', t1, t2, t1, 'vcc'), valu('v_cndmask_b32', ta, t0, t1, sMask),
              valu('v_add_u32', t0, 1024, t0), valu('v_add_u32', t1, 192, t1), valu('v_cndmask_b32', t0, t0, t1, sMask), valu('v_cmp_gt_u32', 'vcc', 16, vLane), valu('v_cndmask_b32', tb_, t2, t0, 'vcc')]
        cv = lambda d, x, y: valu('v_cvt_pk_bf16_f32', d, x, y)
        C += [cv(q1[0], D[0][0], D[0][1]), cv(q1[1], D[0][2], D[0][3]), cv(q1[2], D[1][0], D[1][1]), cv(q1[3], D[1][2], D[1][3]),
              cv(q2_[0], D[2][0], D[2][1]), cv(q2_[1], D[2][2], D[2][3]), cv(q2_[2], D[2][0], D[2][1]), cv(q2_[3], D[2][2], D[2][3]),
              vstore('buffer_store_dwordx4', q1, ta, sKV, sT0, mods='sc1', tag='kv'), vstore('buffer_store_dwordx4', q2_, tb_, sKV, sT0, mods='sc1', tag='kv')]
        return A, Q, B, C
    def flag(g, t0, t1):
        return [salu('s_lshl_b32', sT0, sJ, 4), salu('s_mov_b32', sT1, OOB), glue(scmp('s_cmp_eq_u32', sW, 0), salu('s_cselect_b32', sT0, sT0, sT1)),
                valu('v_mov_b32', t0, sT1), valu('v_cmp_eq_u32', 'vcc', 0, vLane), valu('v_mov_b32', t1, sT0), valu('v_cndmask_b32', t0, t0, t1, 'vcc'), valu('v_mov_b32', t1, 1),
                I(f"buffer_atomic_add {t1}, {t0}, {sDBG}, 0 offen", 'vst', [t0, t1, sDBG], [], tag='flag', dep=set())]
    def half_addrs(g):
        t0, t1, t2 = vJ
        g.dH0, g.dH1, g.rH, g.vHh = v(8), v(9), v(10), v(11)
        P = [salu('s_lshl_b32', sT0, sC, 4), valu('v_lshrrev_b32', t0, 2, vLane), valu('v_add_u32', t0, sT0, t0), valu('v_mul_u32_u24', t0, 9216, t0),
             valu('v_bfe_u32', t1, vLane, 1, 1), valu('v_lshrrev_b32', t2, 5, vLane), valu('v_xor_b32', t1, t1, t2), valu('v_lshl_add_u32', t0, t1, 5, t0),
             valu('v_and_b32', t1, 1, vLane), valu('v_lshl_add_u32', g.dH0, t1, 4, t0), valu('v_add_u32', g.dH1, 32*9216 - 1024, g.dH0),
             valu('v_lshrrev_b32', t0, 5, vLane), valu('v_lshlrev_b32', t0, 11, t0), valu('v_bfe_u32', t1, vLane, 4, 1), valu('v_lshl_add_u32', t0, t1, 9, t0),
             valu('v_xor_b32', t1, sC, t1), valu('v_lshl_add_u32', t0, t1, 5, t0), valu('v_bfe_u32', t1, vLane, 2, 2), valu('v_lshl_add_u32', t0, t1, 6, t0),
             valu('v_and_b32', t1, 3, vLane), valu('v_lshl_add_u32', t0, t1, 3, t0), valu('v_add_u32', g.rH, RING, t0),
             salu('s_lshl_b32', sT0, sR, 12), salu('s_lshl_b32', sT1, sC, 3), salu('s_add_u32', sT0, sT0, sT1), salu('s_add_u32', sT0, sT0, 65536),
             valu('v_lshlrev_b32', t0, 4, vLane), valu('v_add_u32', g.vHh, sT0, t0)]
        return P

    def check(g, name, res, addr, srd_, thr):
        g.tails.append("\n".join([f"L_{name}_spin:", "s_mov_b32 s4, 0x40000", f"L_{name}_s2:", f"buffer_load_dword {res}, {addr}, {srd_}, 0 offen sc1", "s_waitcnt vmcnt(0)",
                          f"v_cmp_le_u32 vcc, {thr}, {res}", "s_sub_u32 s4, s4, 1", "s_cmp_eq_u32 s4, 0", f"s_cbranch_scc1 L_{name}_ok", "s_nop 1",
                          f"s_cmp_eq_u32 vcc_lo, {sExp}", f"s_cbranch_scc0 L_{name}_s2", f"s_branch L_{name}_ok"]))
        return [valu('v_cmp_le_u32', 'vcc', thr, res),
                raw(f"s_cmp_eq_u32 vcc_lo, {sExp}\ns_cbranch_scc0 L_{name}_spin\nL_{name}_ok:", 'salu', [{('s', 'vcc')}, res, addr], [res], cost=2)]
    def kv_gather(g):
        t0, t1, t2 = vJ
        poll0 = [salu('s_mov_b32', sT1, OOB), glue(scmp('s_cmp_eq_u32', sW, 0), salu('s_cselect_b32', sT0, 0, sT1)), valu('v_lshlrev_b32', t0, 4, vLane), valu('v_max_u32', t0, sT0, t0),
                 vload('buffer_load_dword', t1, t0, sDBG, 0, mods='sc1', lat=30)]
        poll1 = g.check('kv', t1, t0, sDBG, 16)
        buf = [v(T + 4*i, 4) for i in range(6)] + [v(232 + 4*i, 4) for i in range(6)]
        g.rA = v(228, 4)
        e0, e1, e2 = v(224), v(225), v(226)
        sel = [valu('v_and_b32', e0, 1, vLane), valu('v_lshlrev_b32', e0, 4, e0), valu('v_mov_b32', e2, '0x3f80'), valu('v_lshlrev_b32', e0, e0, e2), valu('v_and_b32', e1, 14, vLane)]
        for d in range(4): sel += [valu('v_cmp_eq_u32', 'vcc', 4*d, e1), valu('v_cndmask_b32', g.rA[d], 0, e0, 'vcc')]
        L1 = [salu('s_lshl_b32', sT0, sJ, 1), salu('s_add_u32', sT0, sT0, sC), salu('s_mul_i32', sT0, sT0, 24576), salu('s_mul_i32', sT1, sR, 768), salu('s_add_u32', sT0, sT0, sT1),
              valu('v_lshrrev_b32', t0, 4, vLane), valu('v_mul_u32_u24', t0, 1536, t0), valu('v_and_b32', t1, 15, vLane), valu('v_lshl_add_u32', t0, t1, 4, t0)]
        for i in range(4):
            if i: L1 += [salu('s_add_u32', sT0, sT0, 6144)]
            L1 += [vload('buffer_load_dwordx4', buf[4*gr + i], t0, sKV, sT0, off=256*gr, mods='sc1', lat=g.kvlat) for gr in range(3)]
        D = [v(224, 4), buf[0], buf[1]]
        L2 = [salu('s_mul_i32', sT0, sC, 1536), salu('s_mul_i32', sT1, sR, 768), salu('s_add_u32', sT0, sT0, sT1), salu('s_add_u32', sT0, sT0, KVE),
              valu('v_lshrrev_b32', t2, 4, vLane), valu('v_lshlrev_b32', t2, 2, t2), valu('v_lshl_add_u32', t2, t1, 4, t2), valu('v_add_u32', t2, sT0, t2)]
        for gr in range(3): L2 += [mfma(D[gr], g.rA, buf[4*gr + i], 0 if i == 0 else None) for i in range(4)]
        for gr in range(3): L2 += [valu('v_cvt_pk_bf16_f32', D[gr][0], D[gr][0], D[gr][1]), dsw('ds_write_b32', t2, D[gr][0], 256*gr)]
        return poll0, poll1, sel, L1, L2
    def o_part(g):
        t0, t1, t2 = vJ; P = []
        R_ = v(104, 12); A01, A11, A00, A10 = R_.sub(0, 4), R_.sub(2, 4), R_.sub(4, 4), R_.sub(8, 4)
        q = [v(T + 4*i, 4) for i in range(6)] + [v(96, 4), v(100, 4)]
        P += [salu('s_mul_i32', sT0, sC, 1536), salu('s_add_u32', sT0, sT0, KVE), valu('v_lshlrev_b32', t0, 4, vLane), valu('v_add_u32', t0, sT0, t0), dsr('ds_read_b128', A00, t0, 0),
              valu('v_and_b32', t0, 3, vLane), valu('v_min_u32', t0, 2, t0), valu('v_lshrrev_b32', t1, 4, vLane), valu('v_mul_u32_u24', t1, 3, t1), valu('v_add_u32', t1, t1, t0),
              valu('v_lshlrev_b32', t1, 4, t1), valu('v_add_u32', t1, sT0, t1), valu('v_lshlrev_b32', t0, 4, t0), valu('v_add_u32', t0, sT0, t0),
              valu('v_and_b32', t2, 15, vLane), valu('v_lshlrev_b32', t2, 4, t2), valu('v_add_u32', t2, sT0, t2),
              dsr('ds_read_b128', A10, t1, 1024 + 256), dsr('ds_read_b64', A01.sub(0, 2), t2, 1024), dsr('ds_read_b64', A11.sub(0, 2), t0, 1024 + 448)]
        E = [v(236 + i) for i in range(4)]; Bq = [a(176 + 4*i, 4) for i in range(4)]; B1 = [v(240 + 4*i, 4) for i in range(4)]
        P += [salu('s_lshl_b32', sT0, sR, 8), salu('s_add_u32', sT0, sT0, LOGIT), valu('v_and_b32', t0, 15, vLane), valu('v_lshlrev_b32', t1, 2, t0), valu('v_add_u32', t1, sT0, t1)]
        P += [dsr('ds_read_b32', E[tb], t1, 64*tb) for tb in range(4)]
        P += [salu('s_mul_i32', sT0, sW, 5120), salu('s_add_u32', sT0, sT0, PHIQ), valu('v_mul_u32_u24', t0, 80, t0), valu('v_add_u32', t0, sT0, t0),
              valu('v_lshrrev_b32', t1, 4, vLane), valu('v_lshl_add_u32', t1, t1, 4, t0)]
        for tb in range(4): P += [dsr('ds_read_b128', Bq[tb], t1, 1280*tb), dsr('ds_read_b64', B1[tb].sub(0, 2), t0, 1280*tb + 64)]
        cv = lambda d, x: [valu('v_cvt_pk_bf16_f32', d[0], x[0], x[1]), valu('v_cvt_pk_bf16_f32', d[1], x[2], x[3])]
        P += [valu('v_cmp_gt_u32', 'vcc', 16, vLane), salu('s_mov_b32', sT2, '0x42700000')]
        for tb in range(4):
            P += [valu('v_cndmask_b32', B1[tb][0], 0, B1[tb][0], 'vcc'), valu('v_cndmask_b32', B1[tb][1], 0, B1[tb][1], 'vcc'), valu('v_mov_b32', B1[tb][2], 0), valu('v_mov_b32', B1[tb][3], 0),
                  valu('v_min_f32', E[tb], sT2, E[tb]), valu('v_mul_f32', E[tb], sL, E[tb]), valu('v_exp_f32', E[tb], E[tb])]
        o0 = [q[2*tb] for tb in range(4)]; o1 = [q[2*tb + 1] for tb in range(4)]
        for tb in range(4): P += [mfma(o0[tb], A00, Bq[tb], 0), mfma(o1[tb], A10, Bq[tb], 0)]
        for tb in range(4): P += [mfma(o0[tb], A01, B1[tb]), mfma(o1[tb], A11, B1[tb])]
        P += [salu('s_mul_i32', sT0, sW, 5120), salu('s_add_u32', sT0, sT0, PHIQ), valu('v_lshlrev_b32', t0, 3, vLane), valu('v_add_u32', t0, sT0, t0),
              valu('v_lshlrev_b32', t1, 2, vLane), valu('v_add_u32', t1, sT0, t1), salu('s_mov_b32', sT2, '0x358637bd')]
        for tb in range(4): P += [valu('v_add_f32', o1[tb][2], sT2, o1[tb][2])]
        for tb in range(4): P += [valu('v_rcp_f32', o1[tb][2], o1[tb][2])]
        for tb in range(4): P += [valu('v_mul_f32', E[tb], E[tb], o1[tb][2])]
        for tb in range(4):
            P += [valu('v_mul_f32', o0[tb][k], o0[tb][k], E[tb]) for k in range(4)] + [valu('v_mul_f32', o1[tb][k], o1[tb][k], E[tb]) for k in range(2)]
            P += cv(o0[tb], o0[tb]) + [valu('v_cvt_pk_bf16_f32', o1[tb][0], o1[tb][0], o1[tb][1]), dsw('ds_write_b64', t0, o0[tb].sub(0, 2), 512*tb),
                  valu('v_cndmask_b32', o1[tb][0], 0, o1[tb][0], 'vcc'), dsw('ds_write_b32', t1, o1[tb][0], 2048 + 256*tb)]
        return P
    def hf(g, ks, tb): return a((ks*4 + tb)*4, 4)
    def h_reads(g, kss, vH, vH8):
        return [dsr('ds_read_b128', g.hf(ks, tb), vH8 if ks == 8 else vH, (0 if ks == 8 else ks*8192) + tb*1024) for ks in kss for tb in range(4)]
    def o_reads(g):
        t0, t1, t2 = vJ
        P = [salu('s_mul_i32', sT0, sR, 10240), salu('s_add_u32', sT0, sT0, PHIQ), valu('v_lshlrev_b32', t0, 3, vLane), valu('v_add_u32', t0, sT0, t0),
             valu('v_lshlrev_b32', t1, 2, vLane), valu('v_add_u32', t1, sT0, t1)]
        Rd = []
        for tb in range(4):
            Rd += [dsr('ds_read_b64', g.hf(9, tb).sub(0, 2), t0, 512*tb), dsr('ds_read_b64', g.hf(9, tb).sub(2, 2), t0, 5120 + 512*tb),
                   dsr('ds_read_b32', g.hf(10, tb)[0], t1, 2048 + 256*tb), dsr('ds_read_b32', g.hf(10, tb)[1], t1, 5120 + 2048 + 256*tb)]
            P += [valu('v_accvgpr_write_b32', g.hf(10, tb)[2], 0), valu('v_accvgpr_write_b32', g.hf(10, tb)[3], 0)]
        return P, Rd
    def g2_dma_addrs(g):
        t0, t1, t2 = vJ
        g.dW2 = [v(12 + i) for i in range(4)]; g.dO9 = v(1); g.dO10 = v(8)
        P = [valu('v_bfe_u32', t1, vLane, 1, 2), valu('v_lshrrev_b32', t2, 4, vLane), valu('v_xor_b32', t1, t1, t2), valu('v_lshlrev_b32', t1, 5, t1),
             valu('v_and_b32', t2, 1, vLane), valu('v_lshl_add_u32', t1, t2, 4, t1),
             salu('s_lshl_b32', sT0, sW, 3), valu('v_lshrrev_b32', t0, 3, vLane), valu('v_add_u32', t2, sT0, t0), valu('v_mul_u32_u24', t2, 1152, t2), valu('v_add_u32', g.dW2[0], t2, t1)]
        P += [valu('v_add_u32', g.dW2[q], 35840*q, g.dW2[0]) for q in range(1, 4)]
        P += [salu('s_mul_i32', sT0, sR, 2304), salu('s_add_u32', sT0, sT0, 1024), valu('v_add_u32', g.dO9, sT0, g.dW2[0]),
              valu('v_and_b32', t0, 3, t0), valu('v_lshrrev_b32', t2, 1, t0), valu('v_lshl_add_u32', t0, t2, 4, t0), valu('v_add_u32', t0, 16, t0), valu('v_mul_u32_u24', t0, 1152, t0),
              valu('v_add_u32', v(T + 20), t0, t1),
              salu('s_mul_i32', sColF, sRowF, 1152), salu('s_mul_i32', sRowH, sRowH, 1152), salu('s_mul_i32', sOffX, sJ, 41472), salu('s_mul_i32', sMx, sW, WST)]
        return P
    BUFA = [0, 1, 0, 1, 2, 0, 1, 2, 0]; BUFB = [0, 1, 2, 0, 1, 2, 0, 1, 2]
    def g2_dma(g, n, sub):
        st = ST[(g.BUFB if sub else g.BUFA)[n]]; tg = ('g2', n, sub); d = g.dW2
        if sub == 0:
            return [salu('s_add_u32', 'm0', sMx, st), salu('s_add_u32', sOff, sColF, n*128)] + [dma(d[q], sW2, sOff, off=q*1024, tag=tg) for q in range(4)] + \
                   [salu('s_add_u32', 'm0', sMx, st + 4096), salu('s_add_u32', sOff, sColF, n*128 + 147456)] + [dma(d[q], sW2, sOff, off=q*1024, tag=tg) for q in range(2)]
        return [salu('s_add_u32', 'm0', sMx, st + 4096), salu('s_add_u32', sOff, sColF, n*128 + 147456)] + [dma(d[q], sW2, sOff, off=q*1024, tag=tg) for q in (2, 3)] + \
               [salu('s_add_u32', 'm0', sMx, st + 8192), salu('s_add_u32', sOff, sRowH, n*128), dma(d[0], sW2, sOff, tag=tg),
                salu('s_add_u32', sOff, sOffX, n*128), dma(g.dO9, sWO, sOff, off=1024, tag=tg), dma(g.dO10, sWO, sOff, off=2048, tag=tg)]
    def g2_rd_addrs(g):
        t0, t1, t2 = vJ
        g.r2 = [[v(T + 24), v(T + 25)], [v(T + 26), v(T + 27)], [v(112), v(113)]]; g.r10 = [[v(T + 28), v(T + 29)], [v(T + 30), v(T + 31)], [v(114), v(115)]]
        g.vP = [v(116 + i) for i in range(4)]
        t3 = g.r2[0][0]
        P = [valu('v_lshrrev_b32', t0, 5, vLane), valu('v_mul_u32_u24', t0, WST, t0), valu('v_bfe_u32', t1, vLane, 2, 3), valu('v_lshl_add_u32', t0, t1, 7, t0),
             valu('v_and_b32', t2, 3, vLane), valu('v_lshl_add_u32', t0, t2, 3, t0), valu('v_lshrrev_b32', t1, 1, t1), salu('s_lshl_b32', sT1, sC, 1), valu('v_xor_b32', t1, sT1, t1),
             valu('v_lshlrev_b32', t1, 5, t1), valu('v_xor_b32', t3, 32, t1), valu('v_add_u32', g.r2[1][0], t0, t1), valu('v_add_u32', g.r2[1][1], t0, t3),
             valu('v_bfe_u32', t1, vLane, 2, 2), valu('v_lshlrev_b32', t0, 7, t1), valu('v_lshl_add_u32', t0, t2, 3, t0), valu('v_lshrrev_b32', t1, 1, t1), valu('v_xor_b32', t1, sT1, t1),
             valu('v_lshlrev_b32', t1, 5, t1), valu('v_xor_b32', t3, 32, t1), salu('s_mul_i32', sT0, sW, WST), salu('s_add_u32', sT0, sT0, 10240),
             valu('v_add3_u32', g.r10[1][0], t0, t1, sT0), valu('v_add3_u32', g.r10[1][1], t0, t3, sT0)]
        for e in range(2): P += [valu('v_add_u32', g.r2[0][e], ST[0], g.r2[1][e]), valu('v_add_u32', g.r10[0][e], ST[0], g.r10[1][e])]
        Q = []
        for e in range(2): Q += [valu('v_add_u32', g.r2[2][e], ST[2], g.r2[1][e]), valu('v_add_u32', g.r10[2][e], ST[2], g.r10[1][e])]
        Q += [salu('s_mul_i32', sT0, sM, 144), salu('s_lshl_b32', sT1, sC, 3), salu('s_add_u32', sT0, sT0, sT1), salu('s_lshl_b32', sT1, sR, 2), salu('s_add_u32', sT0, sT0, sT1),
              salu('s_lshl_b32', sT0, sT0, 4), salu('s_add_u32', sT0, sT0, sJ), salu('s_lshl_b32', sT0, sT0, 10), valu('v_lshlrev_b32', t0, 4, vLane), valu('v_add_u32', g.vP[0], sT0, t0)]
        Q += [valu('v_add_u32', g.vP[i], 16384*i, g.vP[0]) for i in range(1, 4)]
        return P, Q
    def red_setup(g):
        t0, t1, t2 = vJ
        g.vLd, g.vOut, g.vS, g.vPA, g.vPR, g.vFA, g.vFV = [v(120 + i) for i in range(7)]
        g.rD = v(224, 4)
        P = []; srd(P, sOUT, 22, 2048*1152)
        P += [salu('s_lshr_b32', sT0, sJ, 1), salu('s_lshl_b32', sT0, sT0, 4), valu('v_and_b32', t0, 15, vLane),
              valu('v_add_u32', t0, sT0, t0), valu('v_lshlrev_b32', t1, 2, t0), valu('v_add_u32', t1, LOGIT, t1), dsr('ds_read_b32', g.vS, t1, 0),
              salu('s_lshl_b32', sT0, sM, 7), valu('v_add_u32', t0, sT0, t0), valu('v_mul_u32_u24', t0, 1152, t0), salu('s_lshl_b32', sT0, sW, 3), valu('v_add_u32', t0, sT0, t0),
              valu('v_lshrrev_b32', t1, 5, vLane), valu('v_lshl_add_u32', t0, t1, 5, t0), valu('v_bfe_u32', t1, vLane, 4, 1), valu('v_lshl_add_u32', t0, t1, 2, t0),
              salu('s_and_b32', sT1, sJ, 1), salu('s_lshl_b32', sT0, sT1, 6), valu('v_add_u32', g.vOut, sT0, t0),
              salu('s_lshl_b32', sT1, sT1, 3), salu('s_mul_i32', sT0, sM, 144), salu('s_add_u32', sT0, sT0, sT1), salu('s_lshr_b32', sT1, sJ, 1), salu('s_add_u32', sT0, sT0, sT1),
              salu('s_lshl_b32', sT0, sT0, 14), salu('s_lshl_b32', sT1, sW, 8), salu('s_add_u32', sT0, sT0, sT1), valu('v_lshrrev_b32', t0, 4, vLane), valu('v_lshlrev_b32', t0, 10, t0),
              valu('v_and_b32', t1, 15, vLane), valu('v_lshl_add_u32', t0, t1, 4, t0), valu('v_add_u32', g.vLd, sT0, t0),
              salu('s_mov_b32', sT1, OOB), valu('v_mov_b32', t0, sT1), valu('v_mov_b32', t2, sFl), valu('v_cmp_eq_u32', 'vcc', 0, vLane), salu('s_andn2_b32', sT0, sFl, 255),
              valu('v_cndmask_b32', g.vFA, t0, t2, 'vcc'), valu('v_lshlrev_b32', t2, 2, vLane), valu('v_add_u32', t2, sT0, t2), valu('v_cmp_gt_u32', 'vcc', 16, vLane),
              salu('s_mov_b32', sT2, '0x42700000'), valu('v_cndmask_b32', g.vPA, t0, t2, 'vcc'),
              valu('v_min_f32', g.vS, sT2, g.vS), valu('v_mul_f32', g.vS, sL, g.vS), valu('v_exp_f32', g.vS, g.vS), valu('v_add_f32', g.vS, 1.0, g.vS), valu('v_rcp_f32', g.vS, g.vS),
              ]
        return P
    def rbuf(g, c, i): return a((176 + c*16 if c < 5 else (c - 5)*16 if c in g.tailc else 176 + (c - 5)*16) + 4*i, 4)
    def red_flag(g, val): return [valu('v_mov_b32', g.vFV, val), vstore('buffer_store_dword', g.vFV, g.vFA, sPART, 0, mods='sc1', tag='fl')]
    def red_poll(g): return [vload('buffer_load_dword', g.vPR, g.vPA, sPART, 0, mods='sc1', lat=30)]
    def red_ld(g, c):
        P = []
        for i in range(4): P += [salu('s_mov_b32', sT2, c*262144 + i*4096), vload('buffer_load_dwordx4', g.rbuf(c, i), g.vLd, sPART, sT2, mods='sc1', lat=36)]
        return P
    def red_m(g, c):
        D = g.rD
        return [mfma(D, g.rA, g.rbuf(c, i), 0 if i == 0 else None) for i in range(4)] + \
               [valu('v_mul_f32', D[0], D[0], g.vS), valu('v_mul_f32', D[1], D[1], g.vS), valu('v_cvt_pk_bf16_f32', D[0], D[0], D[1]), vstore('buffer_store_dword', D[0], g.vOut, sOUT, 0, off=c*128)]
    def w2f(g, q, e): return v(WF + ((q + 2) % 4)*8 + e*4, 4)
    SEQ = [(0, k) for k in range(6)] + [(1, k) for k in range(6)] + [(0, 6), (0, 7), (1, 6), (1, 7), (0, 8), (0, 9), (0, 10), (1, 8), (1, 9), (1, 10)] + [(n, k) for n in range(2, 9) for k in range(11)]
    def g2_reads(g, q):
        n, ks = g.SEQ[q]; X = []; b = (g.BUFB if ks >= 6 else g.BUFA)[n]
        for e in range(2):
            f = g.w2f(q, e)
            if ks == 10: X.append([dsr('ds_read_b64_tr_b16', f.sub(0, 2), g.r10[b][e], 0)])
            else: X.append([dsr('ds_read_b64_tr_b16', f.sub(2*z, 2), g.r2[b][e], ks*1024 + z*2*WST) for z in range(2)])
        return X
    def acc2(g, n, e, tb): return v(128 + (n % 2)*32 + (e*4 + tb)*4, 4)
    def g2_epi(g, n):
        P = [salu('s_mov_b32', sT3, n*262144)]; St = []
        for tb in range(4):
            d = v(192 + (n % 2)*16 + tb*4, 4)
            for e in range(2):
                x = g.acc2(n, e, tb)
                P += [valu('v_cvt_pk_bf16_f32', d[2*e], x[0], x[1]), valu('v_cvt_pk_bf16_f32', d[2*e + 1], x[2], x[3])]
            P += [vstore('buffer_store_dwordx4', d, g.vP[tb], sPART, sT3, tag=('part', n), mods=g.pmods)]
        return P
    def fstamp(g):
        prs = list(range(6, 22, 2)) + list(range(28, 48, 2)) + [64, 66, 68, 70]
        r = prs[g.nf]; g.nf += 1; g.fregs.append(r)
        return raw(f"s_memrealtime s[{r}:{r+1}]", 'label')
    def f0dump(g, at):
        if g.fine0 != at: return []
        P = [valu('v_lshlrev_b32', v(5), 3, vLane), valu('v_add_u32', v(5), sT4, v(5)), valu('v_mov_b32', v(6), g.vF0), valu('v_mov_b32', v(7), g.vF0), valu('v_cmp_gt_u32', 'vcc', 18, vLane),
             valu('v_mov_b32', g.vF0, OOB), valu('v_cndmask_b32', v(5), g.vF0, v(5), 'vcc'), vstore('buffer_store_dwordx2', v(6, 2), v(5), sPART, 0, off=8*14)]
        return P
    def fdump(g):
        if not g.fine: return []
        P = [raw("s_waitcnt lgkmcnt(0)", 'wait'), valu('v_mov_b32', v(5), sT4)]
        for i, r in enumerate(g.fregs): P += [valu('v_mov_b32', v(6), s(r)), valu('v_mov_b32', v(7), s(r)), vstore('buffer_store_dwordx2', v(6, 2), v(5), sPART, 0, off=8*(g.ns + i)), raw('s_nop 1', 'wait')]
        return P
    def gemm2(g, X1, X2, X3, X4, X5):
        mf = []; F = {}; st = []
        ad = lambda i, x: F.setdefault(i, []).extend(x)
        for q, (n, ks) in enumerate(g.SEQ):
            for e in range(2):
                for i in range(4):
                    tb = i if e == 0 else 3 - i
                    mf.append(mfma(g.acc2(n, e, tb), g.w2f(q, e), g.hf(ks, tb), 0 if ks == 0 else None))
            if q + 2 < 99:
                X = g.g2_reads(q + 2)
                for e in range(2):
                    for z, x in enumerate(X[e]): ad(8*q + 4*e + 2*z + 1, [x])
        bars = {4: [(1, 0)], 10: [(0, 1), (1, 1)], 14: [], 20: [(2, 0)], 26: [(2, 1)]}
        for n in range(3, 9): bars[11*n - 2] = [(n, 0)]; bars[11*n + 4] = [(n, 1)]
        bars[97] = []
        iss = {10: [(2, 0)], 14: [(3, 0)], 20: [(2, 1), (3, 1), (4, 0)], 26: [(4, 1)], 31: [(5, 0)], 37: [(5, 1)], 42: [(6, 0)], 48: [(6, 1)], 53: [(7, 0)], 59: [(7, 1)], 64: [(8, 0)], 70: [(8, 1)]}
        flg, chk, mm = g.plan
        bl = sorted(bars)
        for bi, p in enumerate(bl):
            nx = bl[bi + 1] if bi + 1 < len(bl) else 99
            tags = [('g2',) + x for x in bars[p]] + ([('part', flg[p])] if p in flg else [])
            if tags: ad(8*p - 1, [wait_vm(*tags)])
            ad(8*p, [barrier()])
            if g.fine: ad(8*p - 2, [g.fstamp()])
            if p in iss: st.append((sum([g.g2_dma(*x) for x in iss[p]], []), 8*p + 1, 8*nx - 1))
            if p in flg: st.append((g.red_flag(flg[p] + 1), 8*p + 1, 8*p + 10))
            if p in chk:
                pp, cs = chk[p]
                ck = g.check(f"r{p}", g.vPR, g.vPA, sPART, cs[-1] + 1)
                st.append((g.red_poll(), 8*pp + 12, 8*pp + 24)); st.append((ck, 8*p - 8, 8*p - 1))
                R_ = sum([g.red_ld(c) for c in cs], [])
                st.append((spaced(R_, 'ld', g.lsp), 8*p + 4, min(8*p + 14 + g.lsp*4*len(cs), 791)))
        for p, cs in mm.items(): st.append((sum([g.red_m(c) for c in cs], []), 8*p + 4, 8*p + 38))
        ends = {0: 18, 1: 21}
        for n in range(8):
            e = ends.get(n, 11*n + 10); b = 8*(e + 1)
            st.append((spaced(g.g2_epi(n), 'st', 5 if n == 0 else g.esp), b + 2, b + (23 if n == 0 else 14 + 3*g.esp)))
        st = [(X2, 0, 40)] + st + [(X1, 0, 8*14 - 2), (X3, 8*14 + 1, 8*16 - 2), (X4, 8*16, 8*19), (X5, 8*19, 8*26 - 2)]
        g.rep.append("G2")
        P = pack(mf, F, st, rep=g.rep)
        P += g.stamp()
        dl = [c for p in chk for c in chk[p][1]]; dm = [c for p in mm for c in mm[p]]
        rest = [c for c in range(7) if c not in dl]; a_, b_ = rest[:g.tpre], rest[g.tpre:]
        LD = lambda cs: sum([g.red_ld(c) for c in cs], []); M = lambda cs: sum([g.red_m(c) for c in cs], [])
        fs = lambda: [g.fstamp()] if g.fine else []
        pend = [c for c in dl if c not in dm]
        P += g.red_poll() + g.g2_epi(8) + M(pend) + g.check("t0", g.vPR, g.vPA, sPART, 7) + [barrier()] + LD(a_) + fs()
        P += [wait_vm(('part', 8)), barrier()] + g.red_flag(9) + LD(b_[:g.tmid]) + g.red_poll() + LD(b_[g.tmid:]) + fs()
        P += g.check("t2", g.vPR, g.vPA, sPART, 9) + [barrier()] + fs() + LD([7, 8]) + M(rest + [7, 8])
        return P
    def main(g):
        P = g.prologue()
        hA = g.half_addrs(); g.fixed1()
        if g.stamps:
            for r in ((96, 97, 95) if 'f' in g.dbg else (97, 95)):
                P += [valu('v_mov_b32', v(6), s(r)), valu('v_mov_b32', v(7), s(r)), valu('v_mov_b32', v(5), sT4), vstore('buffer_store_dwordx2', v(6, 2), v(5), sPART, 0, off=8*g.ns), raw('s_nop 1', 'wait')]; g.ns += 1
        P += g.stamp()
        P += [wait_vm(('w', 0), ('w', 1), ('x', 0)), barrier()] + g.pre_reads + ([] if g.early else g.dmaX(2) + g.dmaW(4) + g.dmaW(5)) + g.dmaX(3) + g.dmaW(6)
        P += g.stamp()
        phL, phP = g.phiA_loads()
        pf = g.pf
        e0 = 16*(g.U[17] + 1)
        P += g.phase1(0, [(g.late + g.gate_late + [wait_ds()], 2, 300), ((g.prefetch13(2) if pf else []) + (g.prefetchQ() if pf and g.qlate else []) + phL, max(16*g.U[17] - 6, 300), 570),
                          (g.silu(0, 0), e0 + 4, 576)]) + g.stamp() + g.f0dump(0)
        P += g.phase1(2, [(phP + (g.prefetch13(3) if pf and not g.pfp else []), 60, 280), (g.silu(1, 1), 4, 288)]) + g.stamp()
        A, Q, B, C = g.attn_post()
        P += g.phase1(3, [((g.prefetch13(3, vHf[0][0], vHf[0][1]) + g.prefetch13(4, vHf[0][0], vHf[0][1])[6:] + (g.prefetch2(vHf[0][0], vHf[0][2], vHf[0][1]) if g.pfp == 1 else []) if pf and g.pfp else []) + A + [wait_ds()], 1, g.p3b - 1), (B + C, g.p3b + 1, 280), (Q, g.p3b + 1, 288)]) + g.stamp()
        rA, rB = g.g2_rd_addrs(); g2a = g.g2_dma_addrs()
        P += g.phase1(4, [(g.flag(vJ[0], vJ[1]) + (g.prefetch13(4) + g.prefetch2(v(T), v(T+1), v(T+2)) if pf and not g.pfp else []) + hA, 43, 170), (rA + g2a + (g.prefetch2(v(T), v(T + 1), v(T + 2)) if pf and g.pfp == 3 else []), 180, 288), (g.silu(1, 2), 4, 288)],
                      extra={41: [wait_vm('kv')]}) + g.stamp()
        poll0, poll1, sel, L1, L2 = g.kv_gather()
        vH, vH8 = v(2), v(3)
        hr = [valu('v_lshlrev_b32', vH8, 4, vLane), salu('s_lshl_b32', sT3, sR, 12), valu('v_add_u32', vH, sT3, vH8), valu('v_add_u32', vH8, 65536, vH)]
        H = lambda ks: g.h_reads(ks, vH, vH8)
        for i in (16*98 + 9, 16*98 + 10): g.F1.pop(i)
        X = {135: [wait_vm(('g2', 0, 0)), wait_ds()], 136: [barrier()], 30: [valu('v_mov_b32', g.dO10, v(T + 20))]}
        rr = [x for q in range(2) for y in g.g2_reads(q) for x in y]
        for i, x in enumerate(rr): X.setdefault(137 + min(i, 6), []).append(x)
        P += g.phase1(5, [(g.g2_dma(0, 0) + g.g2_dma(1, 0), 107, 135), (poll0 + (g.prefetch2(v(T), v(T + 1), v(T + 2)) if pf and g.pfp == 2 else []) + sel + poll1, 0, 41), (hr + H([0, 1]), 16, 40), (H([2, 3]), 40, 60), (H([4, 5]), 60, 90),
                          (L1 + L2, 43, 132), (g.silu(0, 3), 4, 132)], extra=X) + g.stamp() + g.f0dump(64)
        oa, orr = g.o_reads()
        X1 = H([6, 7]) + g.o_part() + g.silu(1, 4) + oa + [wait_ds()]
        P += g.gemm2(X1, g.g2_dma(0, 1) + g.g2_dma(1, 1), H([8]) + orr, rB, g.red_setup()) + g.stamp() + g.fdump()
        import asmlib; asmlib.LOOSE = bool(g.dbg)
        if 'w' in g.dbg: P = [x for x in P if not (x.k == 'wvm')]
        if 'b' in g.dbg: P = [x for x in P if not (x.k == 'bar')]
        if 'v' in g.dbg: P = [x for x in P if not (x.k in ('trans',) or x.t.startswith('v_mul_f32') or x.t.startswith('v_add_f32') or x.t.startswith('v_cvt'))]
        if 'd' in g.dbg: P = [x for x in P if not (x.k == 'dma')]
        if 'r' in g.dbg: P = [x for x in P if not (x.t.startswith('ds_read_b64_tr'))]
        if 'c' in g.dbg: P = [x if '_spin' not in x.t else label(x.t.split('\n')[-1][:-1]) for x in P]
        if 'L' in g.dbg: P = [x for x in P if not (x.k == 'vld' and 'dwordx4 a' in x.t)]
        if 'p' in g.dbg: P = [x for x in P if not (isinstance(x.tag, tuple) and x.tag[0] == 'part')]
        rep = {}
        F = finalize(P, report=rep)
        print(rep, g.rep, file=sys.stderr)
        return text(F) + "\ns_endpgm\n" + "\n".join(g.tails) + "\nL_end:"

def build(**kw):
    g = G(**kw)
    body = g.main()
    hdr = "; gated mix: hedgehog linear attention + SwiGLU FFN fused in one launch (text emitted by my own generator script)\n"
    hdr += "; @launch grid=(256,1,1) block=(256,1,1) lds=163840\n"
    hdr += '.amdgcn_target "amdgcn-amd-amdhsa--gfx950"\n'
    return hdr + kernel_text(KN + "_kernel", body, vgpr=256, agpr=256)
if __name__ == "__main__":
    kw = {}
    out = sys.argv[1]
    for x in sys.argv[2:]:
        k, val = x.split("="); kw[k] = eval(val)
    t = build(**kw)
    open(out, "w").write(t)
```

```python
import sys
from asmlib import *
KN = "gated_mix__linear_kernel_hedgehog__glu_gated_swiglu__prompt"
H0 = 0; RING = 73728; MISC = 139264; PHIQ = MISC; LOGIT = MISC + 20480; DUMMY = MISC + 20992; KVE = MISC + 21248; KVM = 135168; GA = MISC
PHIK = 32768; VV = PHIK + 20480
S0 = 90112; ST = [S0, 0, 45056]; WST = 11264
WS_PART = 0; WS_SC = 37748736; WS_KV = WS_SC + 8192; WS_KV_BYTES = 16*2*16*1536; WS_STAMP = 48 << 20; WS_FL = 40 << 20
LOG2E = 0x3fb8aa3b; NLOG2E = 0xbfb8aa3b
OOB = 0x7ff00000
sX, sQ, sQ2, sW1, sW3, sWH, sW2, sWO, sPART, sKV, sDBG, sMI = [s(28 + 4*i, 4) for i in range(12)]
sJ, sM, sW, sR, sC = s(76), s(77), s(78), s(79), s(80)
sOff, sColF, sColH, sMb, sT0, sT1, sNL, sL, sOffX, sMx, sT2, sRowF, sRowH = [s(81 + i) for i in range(13)]
sExp = s(3); sOUT = sWH; sMask = s(94, 2); sStamp = s(96, 2); sT3 = s(98); sT4 = s(99); sFl = s(27); sXA, sXB, sFA, sFB, sQA, sQB, sHA, sHB = s(0), s(1), s(12), s(13), s(6), s(7), s(10), s(11); sPar = s(100); sSp = s(14); sIdx = s(101)
vLane, vDmaF, vRdF0, vRdF1, vHw = v(0), v(1), v(2), v(3), v(4)
vJ = [v(5), v(6), v(7)]
vPhiA = [v(8, 4), v(12, 4)]
vE = [v(16 + i) for i in range(8)]
vHf = [v(24, 4), v(28, 4)]
T = 32; WF = 64; ACC = [128, 192]
def xf(ks, tb):
    i = ks*4 + tb
    return a(4*i, 4) if i < 64 else v(96 + 4*(i - 64), 4)
def slot(G): return ((G + 7) % 8) * 8192
def srd(P, d, lo, nbytes, add=0):
    if add >= 0: P += [glue(salu('s_add_u32', d[0], s(lo), add), salu('s_addc_u32', d[1], s(lo+1), 0))]
    else: P += [glue(salu('s_sub_u32', d[0], s(lo), -add), salu('s_subb_u32', d[1], s(lo+1), 0))]
    P += [salu('s_mov_b32', d[2], nbytes), salu('s_mov_b32', d[3], '0x20000')]

class G:
    def __init__(g, stamps=False, dump=None, pf=True, dbg='', cpf=True, pmods='sc1', fine=False, plan=13, esp=8, lsp=6, tpre=1, tmid=2, xpf=False, early=0, nsh=16, lead=12, fine0=None, rot=True, tlb=False, pfp=3, qlate=True, kvlat=50, p3b=170, drate=1.4, ord=0, split=24):
        g.split = split
        g.ord = ord
        g.drate = drate
        g.kvlat = kvlat; g.p3b = p3b
        g.qlate = qlate
        g.rot = rot; g.tlb = tlb; g.pfp = pfp
        g.fine0 = fine0; g.vF0 = v(15) if fine0 == 0 else v(4)
        g.lead = lead; g.mkSA()
        g.nsh = nsh
        g.xpf = xpf; g.early = early
        g.tpre = tpre; g.tmid = tmid
        g.esp = esp; g.lsp = lsp
        F2 = {37: 1, 48: 2, 59: 3, 70: 4, 81: 5, 92: 6}
        PL = {0: ((F2, {}, {}), (7, 7)),
              1: ((F2, {75: (64, [0, 1, 2])}, {}), (7, 7)),
              2: ((F2, {75: (64, [0, 1, 2, 3])}, {}), (7, 7)),
              3: ((F2, {70: (59, [0, 1, 2]), 92: (81, [3, 4])}, {}), (7, 7)),
              4: (({**F2, 97: 7}, {75: (64, [0, 1, 2])}, {}), (7, 7)),
              5: (({**F2, 97: 7}, {75: (64, [0, 1, 2]), 92: (81, [3, 4])}, {}), (7, 7)),
              7: ((F2, {64: (53, [0, 1, 2]), 81: (70, [3]), 92: (81, [4])}, {}), (7, 7)),
              8: ((F2, {64: (53, [0, 1, 2]), 81: (75, [3, 4]), 92: (86, [5])}, {}), (7, 7)),
              9: ((F2, {64: (53, [0, 1]), 75: (64, [2, 3])}, {}), (7, 7)),
              10: (({37: 1, 48: 2, 59: 3, 92: 6}, {70: (64, [0, 1, 2, 3])}, {}), (7, 7)),
              11: (({37: 1, 48: 2, 59: 3, 70: 4, 92: 6}, {70: (64, [0, 1, 2, 3]), 86: (81, [4])}, {}), (7, 7)),
              12: (({48: 2, 92: 6}, {64: (59, [0, 1, 2])}, {}), (7, 7)),
              13: (({48: 2, 70: 4, 92: 6}, {64: (59, [0, 1, 2]), 81: (75, [3, 4])}, {}), (7, 7)),
              6: (({**F2, 97: 7}, {75: (64, [0, 1]), 86: (75, [2, 3]), 97: (86, [4])}, {}), (7, 7))}
        g.plan, g.tthr = PL[plan]; g.tailc = [c for c in range(5, 9) if c not in [x for p in g.plan[1] for x in g.plan[1][p][1]]]
        g.fine = fine; g.nf = 0; g.fregs = []
        g.pmods = pmods
        g.cpf = cpf; g.tails = []; g.rep = []
        g.dbg = dbg
        g.stamps = stamps; g.dump = dump; g.ns = 0; g.pf = pf
    def stamp(g):
        if not g.stamps: return []
        i = g.ns; g.ns += 1
        return [raw(f"s_memtime {sStamp}", 'salu', [], [sStamp]), raw(f"s_memrealtime s[4:5]", 'salu'), raw("s_waitcnt lgkmcnt(0)", 'wait'),
                valu('v_mov_b32', v(6), sStamp[0]), valu('v_mov_b32', v(7), s(4)), valu('v_mov_b32', v(5), sT4),
                vstore('buffer_store_dwordx2', v(6, 2), v(5), sPART, 0, off=8*i)]
    def prologue(g):
        P = []
        P += [scmp('s_cmp_ge_u32', s(2), 256), raw('s_cbranch_scc1 L_end')]
        if g.stamps: P += [raw('s_memrealtime s[72:73]', 'label')]
        P += [raw('s_load_dwordx16 s[4:19], s[0:1], 0'), raw('s_load_dwordx8 s[20:27], s[0:1], 64')]
        t0, t1, t2, t3, t4 = [v(T + 16 + i) for i in range(5)]
        P += [valu('v_lshrrev_b32', t0, 6, v(0)), valu('v_and_b32', vLane, 63, v(0))]
        P += [valu('v_readfirstlane_b32', sW, t0)]
        lj = {16: 1, 8: 2, 4: 3}[g.nsh]
        P += [salu('s_bfe_u32', sJ, s(2), hex(((4 - lj) << 16) | 0)), salu('s_lshl_b32', sJ, sJ, lj), salu('s_bfe_u32', sT0, s(2), hex((lj << 16) | 3)), salu('s_add_u32', sJ, sJ, sT0),
              salu('s_lshr_b32', sIdx, s(2), 3 + lj)]
        if lj > 1: P += [salu('s_bfe_u32', sM, s(2), hex(((lj - 1) << 16) | (4 - lj))), salu('s_lshl_b32', sM, sM, 5 - lj), salu('s_add_u32', sM, sM, sIdx)]
        else: P += [salu('s_mov_b32', sM, sIdx)]
        P += [salu('s_lshr_b32', sR, sW, 1), salu('s_and_b32', sC, sW, 1)]
        P += [salu('s_mov_b32', sNL, hex(NLOG2E)), salu('s_mov_b32', sL, hex(LOG2E))]
        P += [salu('s_mul_i32', sT0, sJ, 288), salu('s_and_b32', sT1, sJ, 1), salu('s_lshl_b32', sT2, sT1, 5), salu('s_add_u32', sRowF, sT0, sT2),
              salu('s_lshl_b32', sT2, sT1, 8), salu('s_add_u32', sRowH, sT0, 256), salu('s_sub_u32', sRowH, sRowH, sT2),
              salu('s_lshl_b32', sColF, sRowF, 1), salu('s_lshl_b32', sColH, sRowH, 1)]
        P += [salu('s_lshl_b32', sMb, sW, 11), salu('s_add_u32', sMb, sMb, RING), salu('s_lshl_b32', sMx, sW, 12)]
        if g.stamps: g.early_part = True; P += [salu('s_lshl_b32', sT4, s(2), 10), salu('s_lshl_b32', sT0, sW, 8), salu('s_add_u32', sT4, sT4, sT0), salu('s_add_u32', sT4, sT4, WS_STAMP)]
        P += [valu('v_lshrrev_b32', t0, 3, vLane), salu('s_lshl_b32', sT0, sW, 3), valu('v_add_u32', t0, sT0, t0), valu('v_mul_u32_u24', t0, 9216, t0),
              valu('v_bfe_u32', t1, vLane, 4, 1), salu('s_lshl_b32', sT1, sC, 1), valu('v_or_b32', t1, sT1, t1), valu('v_bfe_u32', t2, vLane, 1, 2),
              valu('v_xor_b32', t1, t1, t2) if 's' not in g.dbg else valu('v_mov_b32', t1, t2), valu('v_lshlrev_b32', t1, 5, t1), valu('v_and_b32', t2, 1, vLane), valu('v_lshlrev_b32', t2, 4, t2),
              valu('v_add3_u32', vDmaF, t0, t1, t2)]
        dX0, dX1, rX0, rX1 = [v(T + i) for i in range(4)]
        P += [salu('s_lshl_b32', sT0, sM, 7), salu('s_lshl_b32', sT1, sW, 5), salu('s_add_u32', sT0, sT0, sT1), valu('v_lshrrev_b32', t0, 3, vLane),
              valu('v_add_u32', t0, sT0, t0), valu('v_mul_u32_u24', t0, 1152, t0), valu('v_lshrrev_b32', t1, 4, vLane), valu('v_and_b32', t2, 7, vLane),
              valu('v_xor_b32', t1, t1, t2), valu('v_lshlrev_b32', t1, 4, t1), valu('v_add_u32', dX0, t0, t1), valu('v_xor_b32', t1, 64, t1), valu('v_add_u32', dX1, t0, t1)]
        P += [raw('s_waitcnt lgkmcnt(0)', 'wait')]
        if g.stamps: P += [raw('s_mov_b32 s97, s72\ns_mov_b32 s96, s72', 'label'), raw('s_memrealtime s[74:75]\ns_waitcnt lgkmcnt(0)\ns_mov_b32 s95, s74', 'label')]
        if g.stamps: srd(P, sPART, 26, 64 << 20)
        P += [salu('s_and_b32', sPar, sJ, 1 if g.rot else 0), salu('s_mul_i32', sXA, sPar, 512), salu('s_mul_i32', sXB, sPar, -640), salu('s_mul_i32', sT0, sPar, 8*294912),
              salu('s_add_u32', sFA, sColF, sT0), salu('s_mul_i32', sT1, sPar, -10*294912), salu('s_add_u32', sFB, sColF, sT1)]
        srd(P, sX, 4, 2048*1152); srd(P, sW1, 14, 576*9216); srd(P, sW3, 16, 576*9216 + 1024, -1024)
        if g.ord: P += g.prefetch13(0) + g.prefetch13(1)[6:] + g.dmaX(0) + (g.dmaX(1) if g.ord > 1 else []) + (g.dmaX(2) if g.ord > 2 else [])
        else: P += g.dmaX(0) + g.dmaW(0) + g.dmaW(1)
        if 'f' in g.dbg: P += [raw('s_memrealtime s[74:75]\ns_waitcnt lgkmcnt(0)\ns_mov_b32 s97, s74\ns_waitcnt vmcnt(0)\ns_memrealtime s[74:75]\ns_waitcnt lgkmcnt(0)\ns_mov_b32 s95, s74', 'label')]
        if g.pf and not g.xpf and not g.ord: P += g.prefetch13(0) + g.prefetch13(1)[6:]
        if g.pf and g.xpf:
            P += [salu('s_and_b32', sT1, sJ, 1), salu('s_lshl_b32', sT1, sT1, 6), salu('s_lshl_b32', sT0, sM, 7), salu('s_add_u32', sT0, sT0, sT1), salu('s_lshl_b32', sT1, sW, 4),
                  salu('s_add_u32', sT0, sT0, sT1), valu('v_and_b32', t0, 15, vLane), valu('v_add_u32', t0, sT0, t0), valu('v_mul_u32_u24', t0, 1152, t0), valu('v_lshrrev_b32', t1, 4, vLane),
                  valu('v_lshl_add_u32', t0, t1, 7, t0), vload('buffer_load_dword', v(T + 22), t0, sX, 0, off=128, tag='pf')]
            g.xpf2 = vload('buffer_load_dword', v(T + 22), t0, sX, 0, off=640, tag='pf')
            P += g.prefetch13(0) + [g.xpf2]
        if g.cpf:
            ca = v(T + 14, 2); t0 = v(T + 23)
            P += [raw('s_getpc_b64 s[72:73]\nL_pc:', 'salu', [], [s(72, 2)]), salu('s_lshr_b32', sT0, s(2), 3), salu('s_lshl_b32', sT0, sT0, 2), salu('s_add_u32', sT0, sT0, sW),
                  salu('s_mul_i32', sT0, sT0, 5), valu('v_min_u32', t0, 4, vLane), valu('v_add_u32', t0, sT0, t0), valu('v_lshlrev_b32', t0, 7, t0),
                  raw(f'v_min_u32 {t0}, L_end-L_pc-4, {t0}', 'valu', [t0], [t0]), valu('v_and_b32', t0, -4, t0), valu('v_mov_b32', ca[1], s(73)),
                  I(f'v_add_co_u32 {ca[0]}, vcc, s72, {t0}', 'valu', [t0, s(72)], [ca[0], {('s', 'vcc')}]),
                  I(f'v_addc_co_u32 {ca[1]}, vcc, 0, {ca[1]}, vcc', 'valu', [ca[1], {('s', 'vcc')}], [ca[1], {('s', 'vcc')}]),
                  I(f'global_load_dword {v(T + 22)}, {ca}, off', 'vld', [ca], [v(T + 22)], tag='pf', dep=40)]
        t0 = v(T + 16)
        srd(P, sQ, 6, 576*3456); srd(P, sQ2, 6, 576*3456 - 12800, 12800); srd(P, sW2, 18, 4608*1152); srd(P, sWO, 10, 576*1152 + 2048, -2048)
        srd(P, sKV, 26, WS_KV_BYTES, WS_KV); srd(P, sPART, 26, 64 << 20); srd(P, sDBG, 24, 256); srd(P, sMI, 20, 1152)
        P += [glue(scmp('s_cmp_ge_u32', sW, 2), salu('s_cselect_b32', sWH[0], s(16), s(14)), salu('s_cselect_b32', sWH[1], s(17), s(15))),
              salu('s_mov_b32', sWH[2], 576*9216), salu('s_mov_b32', sWH[3], '0x20000')]
        P += [salu('s_mul_i32', sQA, sPar, 8*110592), salu('s_mul_i32', sQB, sPar, -10*110592), salu('s_mul_i32', sT0, sPar, 8*294912), salu('s_add_u32', sHA, sColH, sT0),
              salu('s_mul_i32', sT0, sPar, -10*294912), salu('s_add_u32', sHB, sColH, sT0)]
        P += [salu('s_lshl_b32', sT0, sM, 8), salu('s_lshl_b32', sT1, sJ, 2), salu('s_add_u32', sT0, sT0, sT1), salu('s_add_u32', sT0, sT0, WS_FL), salu('s_mov_b32', sT1, OOB),
              glue(scmp('s_cmp_eq_u32', sW, 0), salu('s_cselect_b32', sFl, sT0, sT1), salu('s_cselect_b32', sExp, '0xffff', 0)),
              valu('v_mov_b32', t0, sT1), valu('v_mov_b32', t1, sFl), valu('v_cmp_eq_u32', 'vcc', 0, vLane), valu('v_mov_b32', t2, 0), valu('v_cndmask_b32', t0, t0, t1, 'vcc'),
              vstore('buffer_store_dword', t2, t0, sPART, 0, mods='sc1', tag='arm')]
        gv = [v(T + 8 + i) for i in range(3)]
        P += [salu('s_lshl_b32', sT0, sW, 7), valu('v_lshlrev_b32', t0, 1, vLane), valu('v_add_u32', t0, sT0, t0), salu('s_lshl_b32', sT1, sPar, 9)]
        for i in range(3):
            P += [valu('v_add_u32', t1, 512*i, t0), valu('v_add_u32', t2, sT1, t1), valu('v_subrev_u32', t3, 1152, t2), valu('v_min_u32', t2, t2, t3)]
            if i == 2: P += [valu('v_cmp_gt_u32', 'vcc', 1152, t1), valu('v_cndmask_b32', t2, t1, t2, 'vcc')]
            P += [vload('buffer_load_ushort', gv[i], t2, sMI, 0)]
        if g.pf and not g.qlate: P += g.prefetchQ()
        if g.tlb:
            P += [valu('v_mov_b32', t1, 0), salu('s_mul_i32', sT0, sJ, 331776), vload('buffer_load_dword', v(T + 22), t1, sW2, sT0, tag='pf'), salu('s_mul_i32', sT0, sJ, 41472),
                  vload('buffer_load_dword', v(T + 22), t1, sWO, sT0, off=2048, tag='pf'), salu('s_mul_i32', sT0, sJ, 49152), vload('buffer_load_dword', v(T + 22), t1, sKV, sT0, tag='pf'),
                  vload('buffer_load_dword', v(T + 22), t1, sDBG, 0, tag='pf'), salu('s_mul_i32', sT0, sM, 144*16384), valu('v_and_b32', t1, 3, vLane), valu('v_mul_u32_u24', t1, 786432 - 256, t1),
                  vload('buffer_load_dword', v(T + 22), t1, sPART, sT0, tag='pf')]
        if g.ord: P += g.dmaW(0) + g.dmaW(1)
        P += (g.dmaX(1) if g.ord < 2 else []) + g.dmaW(2) + g.dmaW(3)
        if g.early: P += g.dmaX(2) + g.dmaW(4) + g.dmaW(5)
        P += [valu('v_lshrrev_b32', t0, 4, vLane), valu('v_bfe_u32', t1, vLane, 2, 2), valu('v_lshlrev_b32', t2, 11, t0), valu('v_lshl_add_u32', t2, t1, 7, t2),
              valu('v_and_b32', t3, 3, vLane), valu('v_lshl_add_u32', t2, t3, 3, t2), valu('v_lshrrev_b32', t1, 1, t1), valu('v_and_b32', t0, 1, t0),
              valu('v_lshl_or_b32', t1, t0, 1, t1), salu('s_lshl_b32', sT1, sC, 1), valu('v_xor_b32', t1, sT1, t1), valu('v_lshlrev_b32', t1, 5, t1),
              valu('v_add_u32', t2, RING, t2), valu('v_add_u32', vRdF0, t2, t1), valu('v_xor_b32', t1, 32, t1), valu('v_add_u32', vRdF1, t2, t1)]
        P += [valu('v_and_b32', t0, 15, vLane), valu('v_lshrrev_b32', t1, 1, t0), valu('v_lshrrev_b32', t2, 4, vLane), valu('v_xor_b32', t1, t1, t2),
              valu('v_lshlrev_b32', t1, 4, t1), salu('s_lshl_b32', sT0, sR, 13), valu('v_lshlrev_b32', t0, 7, t0), valu('v_add_u32', t0, sT0, t0),
              valu('v_add_u32', rX0, t0, t1), valu('v_xor_b32', t1, 64, t1), valu('v_add_u32', rX1, t0, t1)]
        P += [salu('s_lshl_b32', sT0, sR, 12), salu('s_lshl_b32', sT1, sC, 13), salu('s_add_u32', sT0, sT0, sT1), valu('v_lshlrev_b32', t0, 4, vLane), valu('v_add_u32', vHw, sT0, t0)]
        main = P; P = []
        P += g.qkv_addrs()
        P += [salu('s_lshl_b32', sT0, sW, 8), valu('v_lshrrev_b32', t0, 5, vLane), valu('v_lshlrev_b32', t0, 7, t0), valu('v_bfe_u32', t1, vLane, 3, 2),
              valu('v_lshl_add_u32', t0, t1, 5, t0), valu('v_bfe_u32', t1, vLane, 2, 1), valu('v_lshl_add_u32', t0, t1, 10, t0), valu('v_and_b32', t1, 3, vLane),
              valu('v_lshl_add_u32', t0, t1, 3, t0), salu('s_add_u32', sT0, sT0, GA), valu('v_add_u32', t0, sT0, t0)]
        g.late = P; P = main
        g.gate_late = []
        for i in range(3):
            d = v(T + 12, 2)
            g.gate_late += [valu('v_lshl_or_b32', d[0], gv[i], 16, gv[i]), valu('v_mov_b32', d[1], d[0]), dsw('ds_write_b64', t0, d, off=2048*i)]
        return P
    def prefetch13(g, ch, t0=v(T + 21), d=v(T + 22)):
        rw = 144//g.nsh
        P = [salu('s_mul_i32', sT0, sIdx, 4*rw), salu('s_mul_i32', sT1, sW, rw), salu('s_add_u32', sT0, sT0, sT1), valu('v_min_u32', t0, rw - 1, vLane),
             valu('v_add_u32', t0, sT0, t0), valu('v_mul_u32_u24', t0, 9216, t0)]
        if ch < 4: P += [salu('s_add_u32', sT0, sColF, 128*ch)]
        else: P += [salu('s_mov_b32', sT0, sColH)]
        P += [vload('buffer_load_dword', d, t0, sW1, sT0, tag='pf'), vload('buffer_load_dword', d, t0, sW3, sT0, off=1024, tag='pf')]
        return P
    def prefetchQ(g):
        t0 = v(T + 21); t1 = v(T + 23); d = v(T + 22); d2 = v(T + 20); rw = 144//g.nsh
        P = [salu('s_mul_i32', sT0, sIdx, 4*rw), salu('s_mul_i32', sT1, sW, rw), salu('s_add_u32', sT0, sT0, sT1), valu('v_min_u32', t0, 17 if g.split else 53, vLane),
             valu('v_mul_u32_u24', t1, 43, t0), valu('v_lshrrev_b32', t1, 8, t1), valu('v_mul_u32_u24', d2, 6, t1), valu('v_sub_u32', t0, t0, d2),
             valu('v_add_u32', t1, sT0, t1), valu('v_mul_u32_u24', t1, 3456, t1), valu('v_lshrrev_b32', d2, 1, t0), valu('v_mul_u32_u24', d2, 1152, d2), valu('v_add_u32', t1, t1, d2),
             valu('v_and_b32', t0, 1, t0), valu('v_mul_u32_u24', t0, 68, t0), valu('v_add_u32', t1, t1, t0), salu('s_mul_i32', sT0, sJ, 72)]
        if g.split:
            P[-1] = salu('s_mul_i32', sSp, sJ, 72)
            for i in range(3): P += ([salu('s_add_u32', sSp, sSp, 3*3456)] if i else []) + [vload('buffer_load_dword', d, t1, sQ, sSp, tag='pf')]
            return spaced(P, 'pf', g.split)
        for i in range(rw//9): P += ([salu('s_add_u32', sT0, sT0, 9*3456)] if i else []) + [vload('buffer_load_dword', d, t1, sQ, sT0, tag='pf')]
        return P
    def prefetch2(g, t0, t1, d):
        k = 16//g.nsh
        P = [salu('s_mul_i32', sT0, sIdx, 162*k), salu('s_mul_i32', sT1, sW, 41*k), salu('s_add_u32', sT0, sT0, sT1), valu('v_min_u32', t0, 13 if g.split else 40, vLane),
             valu('v_add_u32', t0, sT0, t0), valu('v_lshlrev_b32', t0, 7, t0), salu('s_mul_i32', sT0, sJ, 331776)]
        for i in range(3 if g.split else k): P += ([salu('s_add_u32', sT0, sT0, (14 if g.split else 41)*128)] if i else []) + [vload('buffer_load_dword', d, t0, sW2, sT0, tag='pf')]
        P += [salu('s_mul_i32', sT0, sIdx, 21*k), salu('s_mul_i32', sT1, sW, 6*k), salu('s_add_u32', sT0, sT0, sT1), valu('v_min_u32', t1, 6*k - 1, vLane),
              valu('v_add_u32', t1, sT0, t1), valu('v_lshlrev_b32', t1, 7, t1), salu('s_mul_i32', sT0, sJ, 41472),
              vload('buffer_load_dword', d, t1, sWO, sT0, off=2048, tag='pf')]
        return spaced(P, 'pf', g.split) if g.split else P
    def qkv_addrs(g):
        t0, t1, t2, t3, t4 = [v(T + 16 + i) for i in range(5)]
        g.dQ = v(T + 24); g.rQ = [v(T + 25), v(T + 26), v(T + 27), v(T + 30)]; g.rQ3b = v(T + 28); g.isG = v(T + 29)
        P = []
        P += [valu('v_lshrrev_b32', t0, 4, vLane), salu('s_lshl_b32', sT1, sC, 2), valu('v_or_b32', t1, sT1, t0), valu('v_lshlrev_b32', t1, 1, t1),
              valu('v_and_b32', t2, 15, vLane), valu('v_xor_b32', t1, t1, t2),
              salu('s_lshl_b32', sT0, sW, 3), valu('v_add_u32', t0, sT0, t0), valu('v_mul_u32_u24', t0, 3456, t0),
              valu('v_cmp_le_u32', 'vcc', 6, t1), valu('v_cndmask_b32', t2, 0, v(T+31), 'vcc') ]
        P.insert(0, valu('v_mov_b32', v(T+31), 1))
        P += [valu('v_cmp_le_u32', 'vcc', 11, t1), valu('v_cndmask_b32', t3, 0, v(T+31), 'vcc'),
              valu('v_mul_u32_u24', t4, 6, t2), valu('v_sub_u32', t1, t1, t4), valu('v_mul_u32_u24', t4, 5, t3), valu('v_sub_u32', t1, t1, t4),
              valu('v_min_u32', t1, 4, t1), valu('v_add_u32', t2, t2, t3), valu('v_mul_u32_u24', t2, 1152, t2), valu('v_add_u32', t0, t0, t2),
              valu('v_lshrrev_b32', t3, 2, t1), valu('v_lshlrev_b32', t1, 4, t1), valu('v_lshlrev_b32', t3, 3, t3), valu('v_sub_u32', t1, t1, t3),
              salu('s_mul_i32', sT0, sJ, 72), valu('v_add3_u32', g.dQ, t0, t1, sT0)]
        def B(seg, n, c):
            b = 32*c + 8*n
            if b >= 64: b += 8
            return [0, 96, 176][seg] + b
        tabs = [[(0, i) for i in range(4)], [(0, 4), (2, 0), (2, 1), (2, 2)], [(1, i) for i in range(4)], [(1, 4), (2, 3), (2, 4), (2, 4)]]
        P += [valu('v_lshrrev_b32', t0, 4, vLane), valu('v_bfe_u32', t1, vLane, 2, 2), valu('v_lshlrev_b32', t2, 11, t0), valu('v_lshl_add_u32', t2, t1, 8, t2),
              valu('v_add_u32', t2, RING, t2), valu('v_and_b32', t0, 1, t0), valu('v_lshl_or_b32', t0, t0, 2, t1), valu('v_lshlrev_b32', t0, 5, t0),
              valu('v_and_b32', t1, 3, vLane), valu('v_lshlrev_b32', t1, 3, t1)]
        for b in range(4):
            pk = [sum(B(sg, n, c) << (8*i) for i, (sg, n) in enumerate(tabs[b])) for c in range(2)]
            dst = g.rQ[b] if b < 3 else g.rQ3b
            P += [salu('s_mov_b32', sT0, hex(pk[1])), glue(scmp('s_cmp_eq_u32', sC, 0), salu('s_cselect_b32', sT0, hex(pk[0]), sT0))]
            P += [valu('v_lshrrev_b32', t3, t1, sT0) if False else valu('v_bfe_u32', t3, sT0, t1, 8), valu('v_xor_b32', t3, t3, t0), valu('v_add_u32', dst, t2, t3)]
        P += [valu('v_and_b32', t1, 3, vLane), valu('v_cmp_eq_u32', 'vcc', 3, t1), valu('v_lshrrev_b32', t3, 2, vLane), valu('v_lshlrev_b32', t3, 3, t3),
              valu('v_add_u32', t3, GA, t3), valu('v_cndmask_b32', g.rQ3b, g.rQ3b, t3, 'vcc'), valu('v_cndmask_b32', g.isG, 0, v(T+31), 'vcc')]
        return P
    def dmaX(g, d):
        dX = [v(T), v(T + 1)]
        P = [salu('s_add_u32', 'm0', sMx, (d % 4)*16384)]
        for aa in range(4):
            P += [salu('s_add_u32', sOffX, sXA if d < 5 else sXB, d*128 + aa*8192), dma(dX[aa & 1], sX, sOffX, off=aa*1024, tag=('x', d))]
        return P
    def mkSA(g):
        n = 36 - g.lead; SA = []; a_ = b_ = 0
        for p in range(36):
            if a_ < 18 and (p >= n - 1 or a_*n <= p*18 or b_ >= a_): SA.append((0, a_)); a_ += 1
            else: SA.append((1, b_)); b_ += 1
        g.SA = SA; g.U = {ks: p for p, (ch, ks) in enumerate(SA) if ch == 0}
    def dmaW(g, Gk):
        ph, ks = divmod(Gk, 18)
        m0 = salu('s_add_u32', 'm0', sMb, slot(Gk))
        if Gk >= 90:
            i = Gk - 90
            return [m0, salu('s_add_u32', sOff, sHA if i < 5 else sHB, 2*i*32*9216), dma(g.dH0, sWH, sOff, tag=('w', Gk)), dma(g.dH1, sWH, sOff, off=1024, tag=('w', Gk))]
        if ph == 2:
            return [m0, salu('s_add_u32', sOff, sQA if ks < 10 else sQB, ks*32*3456), dma(g.dQ, sQ, sOff, tag=('w', Gk)), dma(g.dQ, sQ2, sOff, off=1024, tag=('w', Gk))]
        ch = [0, 1, None, 2, 3][ph]
        if Gk < 36: ch, ks = g.SA[Gk]
        return [m0, salu('s_add_u32', sOff, sFA if ks < 10 else sFB, ks*32*9216 + ch*128), dma(vDmaF, sW1, sOff, tag=('w', Gk)), dma(vDmaF, sW3, sOff, off=1024, tag=('w', Gk))]
    def wfrag(g, Gk, fi): return v(WF + (Gk % 2)*16 + fi*4, 4)
    def readsW(g, Gk):
        ph = Gk // 18; R_ = []
        for fi in range(4):
            f = g.wfrag(Gk, fi); pre = []
            if Gk >= 90: ad = g.rH; o = slot(Gk) + (fi >> 1)*1024 + (fi & 1)*4096; zo = 256
            elif ph == 2:
                ad = g.rQ[fi]; o = slot(Gk); zo = 1024
                if fi == 3:
                    ks = Gk - 36; c = (ks >> 3)*2048 + (ks & 7)*128 - slot(Gk)
                    pre = [salu('s_mov_b32', sT3, c), valu('v_mad_i32_i24', ad, g.isG, sT3, g.rQ3b)]
            else: ad = [vRdF0, vRdF1][fi >> 1]; o = slot(Gk) + (fi & 1)*1024; zo = 512
            R_.append((pre, dsr('ds_read_b64_tr_b16', f.sub(0, 2), ad, o), dsr('ds_read_b64_tr_b16', f.sub(2, 2), ad, o + zo)))
        return R_
    def readsX(g, ks):
        return [dsr('ds_read_b128', xf(ks, tb), v(T + 2 + (ks & 1)), ((ks >> 1) % 4)*16384 + tb*2048, tag=('x', ks)) for tb in range(4)]
    def accq(g, st, fi, tb): return v(ACC[st] + (fi*4 + tb)*4, 4)
    def fixed1(g):
        F = {}; ad = lambda i, x: F.setdefault(i, []).extend(x)
        g.pre_reads = []
        g.xiss = {}; g.xbusy = set()
        for d in range(4, 9):
            last = g.U[2*(d - 4) + 1] - 1; Gb = last + (last % 2)
            while Gb + 1 in g.xiss: Gb += 2
            g.xiss[Gb + 1] = d; g.xbusy.add(Gb + 2)
            assert Gb + 2 < g.U[2*d] - 3, (d, Gb, g.U)
        for Gk in range(99):
            b = 16*Gk
            for fi, (pre, r0, r1) in enumerate(g.readsW(Gk)):
                for z, r in enumerate((r0, r1)):
                    p = b - 16 + 4*fi - 5 + 2*z
                    if p < 0: g.pre_reads.append(r)
                    else: ad(p, [r])
                if pre: ad(b - 16 + 5, pre)
            xd = Gk in g.xbusy
            if Gk % 2 == 0:
                tags = [('w', Gk + 2), ('w', Gk + 3)] + [('x', ks//2) for ks, u in g.U.items() if u in (Gk + 2, Gk + 3)]
                wx = [wait_rd(('x', ks)) for ks, u in g.U.items() if u == Gk + 1]
                ad(b + 9, [wait_vm(*tags)] + wx); ad(b + 10, [barrier()])
                if g.fine0 is not None and g.fine0 <= Gk < g.fine0 + 36:
                    ad(b + 8, [raw(f"s_memrealtime s[96:97]\ns_waitcnt lgkmcnt(0)\nv_writelane_b32 v4, s96, {(Gk - g.fine0)//2}" if False else f"s_memrealtime s[96:97]\ns_waitcnt lgkmcnt(0)\nv_mov_b32 v6, s96\nv_mov_b32 v7, s96\nv_mov_b32 v5, s99\nds_write_b64 v5, v[6:7] offset:{8*((Gk - g.fine0)//2)}", 'label')]) if False else None
                    ad(b + 8, [raw(f"s_memrealtime s[96:97]\ns_waitcnt lgkmcnt(0)\nv_writelane_b32 {g.vF0}, s96, {(Gk - g.fine0)//2}", 'label')])
                if Gk + 7 <= 98:
                    m0, so, d0, d1 = g.dmaW(Gk + 7)
                    if xd: ad(b + 11, [m0, so])
                    else: ad(b + 7, [m0]); ad(b + 11, [so])
                    ad(b + 12, [d0]); ad(b + 14, [d1])
            elif Gk + 7 <= 98:
                xr = Gk < 36
                m0, so, d0, d1 = g.dmaW(Gk + 7)
                ad(b + 1, [m0]); ad(b + 3, [so]); ad(b + (8 if xr else 4), [d0]); ad(b + (10 if xr else 8), [d1])
            if Gk in g.xiss:
                D = g.dmaX(g.xiss[Gk])
                ad(b + 11, D[0:2]); ad(b + 12, D[2:3]); ad(b + 13, D[3:4]); ad(b + 14, D[4:5]); ad(b + 15, D[5:6]); ad(b + 16, D[6:7]); ad(b + 16 + 7, D[7:8]); ad(b + 16 + 8, D[8:9])
        for ks, u in g.U.items():
            for tb, x in enumerate(g.readsX(ks)):
                if u == 0: g.pre_reads.append(x)
                else: ad(16*(u - 1) + 2*tb, [x])
        g.F1 = F
    def phase1(g, ph, streams, extra={}):
        G0 = ph*18; nk = {0: 36, 5: 9}.get(ph, 18); st = ph % 2; mf = []
        for k in range(nk):
            for fi in range(4):
                for q in range(4):
                    tb = q if fi % 2 == 0 else 3 - q
                    if ph == 5: ks = 2*k + (fi >> 1); d = g.accq(st, fi & 1, tb); first = (k == 0 and fi < 2)
                    elif ph == 0: st, ks = g.SA[k]; d = g.accq(st, fi, tb); first = (ks == 0)
                    else: ks = k; d = g.accq(st, fi, tb); first = (k == 0)
                    mf.append(mfma(d, g.wfrag(G0 + k, fi), xf(ks, tb), 0 if first else None))
        fx = {i - 16*G0: list(x) for i, x in g.F1.items() if 16*G0 <= i < 16*(G0 + nk)}
        for i, x in extra.items(): fx[i] = x + fx.get(i, [])
        g.rep.append(f"P{ph}")
        return pack(mf, fx, streams, rep=g.rep)
    def silu(g, st, ch):
        P = []; n = 0
        half = (ch == 4)
        for tb in range(4):
            hf = vHf[tb % 2]
            for e in range(1 if half else 2):
                gq = g.accq(st, 2*e, tb); uq = g.accq(st, 2*e + 1, tb); t = vE[4*(n % 2):4*(n % 2) + 4]; n += 1
                P += [valu('v_mul_f32', t[i], sNL, gq[i]) for i in range(4)]
                P += [valu('v_exp_f32', t[0], t[0]), valu('v_mul_f32', gq[0], gq[0], uq[0]), valu('v_exp_f32', t[1], t[1]), valu('v_mul_f32', gq[1], gq[1], uq[1]),
                      valu('v_exp_f32', t[2], t[2]), valu('v_mul_f32', gq[2], gq[2], uq[2]), valu('v_exp_f32', t[3], t[3]), valu('v_mul_f32', gq[3], gq[3], uq[3])]
                P += [valu('v_add_f32', t[i], 1.0, t[i]) for i in range(4)]
                P += [valu('v_rcp_f32', t[i], t[i]) for i in range(4)]
                P += [valu('v_mul_f32', gq[i], gq[i], t[i]) for i in range(4)]
                P += [valu('v_cvt_pk_bf16_f32', hf[2*e], gq[0], gq[1]), valu('v_cvt_pk_bf16_f32', hf[2*e + 1], gq[2], gq[3])]
                if not half: P += [dsw('ds_write_b64', vHw, hf.sub(2*e, 2), ch*16384 + tb*1024 + 8*e)]
            if half: P += [dsw('ds_write_b64', g.vHh, hf.sub(0, 2), tb*1024)]
            for e in range(0 if half else 2): pass
        return P
    def phiA_loads(g):
        t0, t1, t2 = vJ
        P = []; srd(P, sMI, 8, 32*648)
        P += [salu('s_lshl_b32', sT0, sJ, 1), salu('s_add_u32', sT0, sT0, sC), salu('s_mul_i32', sT0, sT0, 648), salu('s_mul_i32', sT1, sC, 72), salu('s_sub_u32', sT0, sT0, sT1),
              salu('s_mov_b32', sT2, OOB)]
        for ob in range(2):
            F = vPhiA[ob]
            P += [valu('v_and_b32', t2, 15, vLane)]
            if ob == 1: P += [valu('v_and_b32', t0, 11, t2), valu('v_cmp_eq_u32', 'vcc', 0, t0), valu('v_lshrrev_b32', t2, 2, t2), valu('v_add_u32', t2, 16, t2),
                              valu('v_mov_b32', t0, sT2), valu('v_lshlrev_b32', t2, 1, t2), valu('v_cndmask_b32', t2, t0, t2, 'vcc')]
            else: P += [valu('v_lshlrev_b32', t2, 1, t2)]
            P += [valu('v_add_u32', t2, sT0, t2), valu('v_lshrrev_b32', t0, 4, vLane), valu('v_cmp_eq_u32', 'vcc', 0, t0), valu('v_mul_u32_u24', t0, 144, t0),
                  valu('v_add_u32', t0, t0, t2), valu('v_mov_b32', t1, sT2), valu('v_add_u32', t2, 576, t2), valu('v_cndmask_b32', t1, t1, t2, 'vcc')]
            gl = glue(scmp('s_cmp_eq_u32', sC, 1), salu('s_cselect_b64', sMask, 'vcc', 0)); gl.rd |= {('s', 'vcc')}
            P += [gl, valu('v_mov_b32', t2, sT2), valu('v_cndmask_b32', t2, t0, t2, sMask)]
            for e in range(4): P += [vload('buffer_load_ushort', v(T + 8*ob + e), t2 if e < 2 else t0, sMI, 0, off=36*e)]
            P += [glue(scmp('s_cmp_eq_u32', sC, 0), salu('s_cselect_b32', sT1, sT2, 0)), valu('v_max_u32', t0, sT1, t1)]
            for e in range(4): P += [vload('buffer_load_ushort', v(T + 8*ob + 4 + e), t1 if e < 2 else t0, sMI, 0, off=36*e)]
        pk = [valu('v_lshl_or_b32', vPhiA[i >> 2][i & 3], v(T + 2*i + 1), 16, v(T + 2*i)) for i in range(8)]
        return P, pk
    def softmax(g, x, tmp, outq, mx, mn, s0, s1):
        P = []
        P += [valu('v_max3_f32', mx, x[0], x[1], x[2]), valu('v_min3_f32', mn, x[0], x[1], x[2])]
        for i in range(3, 17, 2): P += [valu('v_max3_f32', mx, mx, x[i], x[i+1]), valu('v_min3_f32', mn, mn, x[i], x[i+1])]
        P += [valu('v_max_f32', mx, mx, x[17]), valu('v_min_f32', mn, mn, x[17]), valu('v_mul_f32', mx, sNL, mx), valu('v_mul_f32', mn, sL, mn)]
        for i in range(18): P += [valu('v_fma_f32', tmp[i], x[i], sNL, mn), valu('v_fma_f32', x[i], x[i], sL, mx)]
        for i in range(18):
            P += [valu('v_exp_f32', x[i], x[i]), valu('v_exp_f32', tmp[i], tmp[i])]
            if i == 2: P += [valu('v_add_f32', s0, x[0], x[1]), valu('v_add_f32', s1, tmp[0], tmp[1])]
            if i > 2: P += [valu('v_add_f32', s0, s0, x[i-1]), valu('v_add_f32', s1, s1, tmp[i-1])]
        P += [valu('v_add_f32', s0, s0, x[17]), valu('v_add_f32', s1, s1, tmp[17]), valu('v_rcp_f32', s0, s0), valu('v_rcp_f32', s1, s1)]
        for i in range(18): P += [valu('v_mul_f32', x[i], x[i], s0), valu('v_mul_f32', tmp[i], tmp[i], s1)]
        P += [valu('v_cvt_pk_bf16_f32', outq[8], x[16], x[17])]
        for i in range(8): P += [valu('v_cvt_pk_bf16_f32', outq[i], x[2*i], x[2*i+1])]
        for i in range(9): P += [valu('v_cvt_pk_bf16_f32', outq[9 + i], tmp[2*i], tmp[2*i+1])]
        return P
    def attn_post(g):
        t0, t1, t2 = vJ; A = []
        blk = lambda b, tb: g.accq(0, b, tb)
        A += [salu('s_lshl_b32', sT0, sR, 8), salu('s_add_u32', sT0, sT0, LOGIT - 192), valu('v_lshlrev_b32', t1, 2, vLane), valu('v_add_u32', t0, sT0, t1),
              valu('v_add_u32', t1, DUMMY, t1), valu('v_cmp_le_u32', 'vcc', 48, vLane), valu('v_cndmask_b32', t0, t1, t0, 'vcc')]
        A += [dsw('ds_write_b32', t0, blk(3, tb)[0], 64*tb) for tb in range(4)]
        Pq = [v(T + 8*tb, 4) for tb in range(4)]; Pk = [v(T + 8*tb + 4, 4) for tb in range(4)]
        A += [salu('s_mul_i32', sT0, sC, 128*72), salu('s_mul_i32', sT1, sR, 64*72), salu('s_add_u32', sT0, sT0, sT1), salu('s_add_u32', sT0, sT0, VV),
              salu('s_lshl_b32', sT1, sC, 2), salu('s_sub_u32', sT1, sT0, sT1),
              valu('v_and_b32', t0, 15, vLane), valu('v_mul_u32_u24', t0, 72, t0), valu('v_lshrrev_b32', t1, 4, vLane), valu('v_lshl_add_u32', t1, t1, 3, t0),
              valu('v_add_u32', t1, sT1, t1), valu('v_add_u32', t0, sT0, t0), valu('v_add_u32', t2, 24, t1), valu('v_add_u32', vE[0], 48, t0),
              valu('v_cmp_gt_u32', 'vcc', 16, vLane), valu('v_cndmask_b32', t1, t1, vE[0], 'vcc'), valu('v_cndmask_b32', t2, t2, vE[0], 'vcc'),
              valu('v_cmp_le_u32', 'vcc', 48, vLane), valu('v_mov_b32', vE[1], '0x3f80'), valu('v_cndmask_b32', t2, t2, vE[0], 'vcc')]
        for tb in range(4):
            for b in range(4):
                d = (Pq if b < 2 else Pk)[tb]; q = blk(b, tb)
                A += [valu('v_cvt_pk_bf16_f32', d[2*(b & 1)], q[0], q[1]), valu('v_cvt_pk_bf16_f32', d[2*(b & 1) + 1], q[2], q[3])]
            if tb > 0: A += [valu('v_add_u32', t1, 1152, t1), valu('v_add_u32', t2, 1152, t2)]
            A += [dsw2(t1, Pq[tb][2], Pq[tb][3], 0, 1), dsw2(t2, Pk[tb][2], Pk[tb][3], 0, 1), dsw('ds_write_b32', t0, vE[1], 1152*tb + 44)]
            A += [mfma(blk(2, tb), vPhiA[0], Pk[tb], 0), mfma(blk(3, tb), vPhiA[1], Pk[tb], 0), mfma(blk(0, tb), vPhiA[0], Pq[tb], 0), mfma(blk(1, tb), vPhiA[1], Pq[tb], 0)]
        def transp(b, r):
            R_ = [blk(b, tb)[r] for tb in range(4)]
            return [perm('v_permlane32_swap_b32', R_[0], R_[2]), perm('v_permlane32_swap_b32', R_[1], R_[3]), perm('v_permlane16_swap_b32', R_[0], R_[1]), perm('v_permlane16_swap_b32', R_[2], R_[3])]
        segs = []
        for (b0, base, who) in ((2, PHIK, 'k'), (0, PHIQ, 'q')):
            Sg = []
            tr = [transp(b0, r) for r in range(4)] + [transp(b0 + 1, 0)]
            for i in range(4):
                for x in tr: Sg.append(x[i])
            x = [blk(b0, i >> 2)[i & 3] for i in range(16)] + [blk(b0 + 1, 0)[0], blk(b0 + 1, 1)[0]]
            tmp = [v(T + i) for i in range(18)]
            oq = [blk(b0 + 1, 2), blk(b0 + 1, 3), v(T + 20, 4), blk(b0 + 1, 0), blk(b0 + 1, 1)]
            outq = [oq[i >> 2][i & 3] for i in range(18)]
            Sg += g.softmax(x, tmp, outq, vE[0], vE[1], vE[2], vE[3])
            ta_ = vE[5]
            if who == 'q': Sg += [salu('s_mul_i32', sT3, sW, 5120), salu('s_add_u32', sT3, sT3, base)]
            else: Sg += [salu('s_lshl_b32', sT3, sC, 1), salu('s_add_u32', sT3, sT3, sR), salu('s_mul_i32', sT3, sT3, 5120), salu('s_add_u32', sT3, sT3, base)]
            Sg += [valu('v_mul_u32_u24', ta_, 80, vLane), valu('v_add_u32', ta_, sT3, ta_)]
            Sg += [dsw('ds_write_b64', ta_, oq[i >> 1].sub(2*(i & 1), 2), 8*i) for i in range(9)]
            segs.append(Sg)
        A += segs[0]; Q = segs[1]
        B = []
        ta, tb_, tv = vHf[0][0], vHf[0][1], vHf[0][2]
        B += [valu('v_lshrrev_b32', t0, 4, vLane), valu('v_bfe_u32', t1, vLane, 2, 2), valu('v_lshl_add_u32', t0, t0, 3, t1),
              valu('v_and_b32', t1, 3, vLane), salu('s_mul_i32', sT0, sC, 10240), salu('s_add_u32', sT0, sT0, PHIK), valu('v_mul_u32_u24', t2, 80, t0),
              valu('v_add_u32', tb_, sT0, t2), valu('v_lshl_add_u32', ta, t1, 4, tb_),
              salu('s_mul_i32', sT0, sC, 128*72), salu('s_add_u32', sT0, sT0, VV + 8), salu('s_lshl_b32', sT1, sR, 5), salu('s_add_u32', sT0, sT0, sT1),
              salu('s_sub_u32', sT1, 1, sR), valu('v_mul_u32_u24', t1, sT1, t1), valu('v_mul_u32_u24', t0, 72, t0), valu('v_lshl_add_u32', t0, t1, 3, t0), valu('v_add_u32', tv, sT0, t0)]
        D = [blk(2, 0), blk(2, 1), blk(2, 2)]
        fr = lambda ks, i: (v(ACC[0] + 48 + 4*i, 4) if ks % 2 == 0 else v(T + 24 + 4*(i & 1), 4) if i < 2 else v(ACC[0] + 44, 4) if i == 2 else vHf[1])
        def rd(ks):
            X = []
            for z in range(2):
                o = (32*ks + 4*z)
                X += [dsr('ds_read_b64_tr_b16', fr(ks, 3).sub(2*z, 2), tv, o*72), dsr('ds_read_b64_tr_b16', fr(ks, 0).sub(2*z, 2), ta, o*80),
                      dsr('ds_read_b64_tr_b16', fr(ks, 1).sub(2*z, 2), ta, o*80 + 8), dsr('ds_read_b64_tr_b16', fr(ks, 2).sub(2*z, 2), tb_, o*80 + 64)]
            return X
        mm = lambda ks: [mfma(D[i], fr(ks, i), fr(ks, 3), 0 if ks == 0 else None) for i in range(3)]
        B += rd(0) + rd(1) + mm(0) + rd(2) + mm(1) + rd(3) + mm(2) + mm(3)
        C = []
        q1, q2_ = vHf[1], v(ACC[0] + 44, 4)
        C += [salu('s_lshl_b32', sT0, sJ, 1), salu('s_add_u32', sT0, sT0, sC), salu('s_lshl_b32', sT0, sT0, 4), salu('s_add_u32', sT0, sT0, sM), salu('s_mul_i32', sT0, sT0, 1536),
              salu('s_mov_b32', sT2, OOB), glue(scmp('s_cmp_eq_u32', sR, 1), salu('s_cselect_b64', sMask, -1, 0)),
              valu('v_lshlrev_b32', t0, 4, vLane), valu('v_and_b32', t1, 15, vLane), valu('v_lshrrev_b32', t2, 4, vLane), valu('v_cmp_gt_u32', 'vcc', 3, t1),
              valu('v_mul_u32_u24', t2, 3, t2), valu('v_add_u32', t1, t1, t2), valu('v_lshlrev_b32', t1, 4, t1), valu('v_add_u32', t1, 1024 + 256, t1), valu('v_mov_b32', t2, sT2),
              valu('v_cndmask_b32', t1, t2, t1, 'vcc'), valu('v_cndmask_b32', ta, t0, t1, sMask),
              valu('v_add_u32', t0, 1024, t0), valu('v_add_u32', t1, 192, t1), valu('v_cndmask_b32', t0, t0, t1, sMask), valu('v_cmp_gt_u32', 'vcc', 16, vLane), valu('v_cndmask_b32', tb_, t2, t0, 'vcc')]
        cv = lambda d, x, y: valu('v_cvt_pk_bf16_f32', d, x, y)
        C += [cv(q1[0], D[0][0], D[0][1]), cv(q1[1], D[0][2], D[0][3]), cv(q1[2], D[1][0], D[1][1]), cv(q1[3], D[1][2], D[1][3]),
              cv(q2_[0], D[2][0], D[2][1]), cv(q2_[1], D[2][2], D[2][3]), cv(q2_[2], D[2][0], D[2][1]), cv(q2_[3], D[2][2], D[2][3]),
              vstore('buffer_store_dwordx4', q1, ta, sKV, sT0, mods='sc1', tag='kv'), vstore('buffer_store_dwordx4', q2_, tb_, sKV, sT0, mods='sc1', tag='kv')]
        return A, Q, B, C
    def flag(g, t0, t1):
        return [salu('s_lshl_b32', sT0, sJ, 4), salu('s_mov_b32', sT1, OOB), glue(scmp('s_cmp_eq_u32', sW, 0), salu('s_cselect_b32', sT0, sT0, sT1)),
                valu('v_mov_b32', t0, sT1), valu('v_cmp_eq_u32', 'vcc', 0, vLane), valu('v_mov_b32', t1, sT0), valu('v_cndmask_b32', t0, t0, t1, 'vcc'), valu('v_mov_b32', t1, 1),
                I(f"buffer_atomic_add {t1}, {t0}, {sDBG}, 0 offen", 'vst', [t0, t1, sDBG], [], tag='flag', dep=set())]
    def half_addrs(g):
        t0, t1, t2 = vJ
        g.dH0, g.dH1, g.rH, g.vHh = v(8), v(9), v(10), v(11)
        P = [salu('s_lshl_b32', sT0, sC, 4), valu('v_lshrrev_b32', t0, 2, vLane), valu('v_add_u32', t0, sT0, t0), valu('v_mul_u32_u24', t0, 9216, t0),
             valu('v_bfe_u32', t1, vLane, 1, 1), valu('v_lshrrev_b32', t2, 5, vLane), valu('v_xor_b32', t1, t1, t2), valu('v_lshl_add_u32', t0, t1, 5, t0),
             valu('v_and_b32', t1, 1, vLane), valu('v_lshl_add_u32', g.dH0, t1, 4, t0), valu('v_add_u32', g.dH1, 32*9216 - 1024, g.dH0),
             valu('v_lshrrev_b32', t0, 5, vLane), valu('v_lshlrev_b32', t0, 11, t0), valu('v_bfe_u32', t1, vLane, 4, 1), valu('v_lshl_add_u32', t0, t1, 9, t0),
             valu('v_xor_b32', t1, sC, t1), valu('v_lshl_add_u32', t0, t1, 5, t0), valu('v_bfe_u32', t1, vLane, 2, 2), valu('v_lshl_add_u32', t0, t1, 6, t0),
             valu('v_and_b32', t1, 3, vLane), valu('v_lshl_add_u32', t0, t1, 3, t0), valu('v_add_u32', g.rH, RING, t0),
             salu('s_lshl_b32', sT0, sR, 12), salu('s_lshl_b32', sT1, sC, 3), salu('s_add_u32', sT0, sT0, sT1), salu('s_add_u32', sT0, sT0, 65536),
             valu('v_lshlrev_b32', t0, 4, vLane), valu('v_add_u32', g.vHh, sT0, t0)]
        return P

    def check(g, name, res, addr, srd_, thr):
        g.tails.append("\n".join([f"L_{name}_spin:", "s_mov_b32 s4, 0x40000", f"L_{name}_s2:", f"buffer_load_dword {res}, {addr}, {srd_}, 0 offen sc1", "s_waitcnt vmcnt(0)",
                          f"v_cmp_le_u32 vcc, {thr}, {res}", "s_sub_u32 s4, s4, 1", "s_cmp_eq_u32 s4, 0", f"s_cbranch_scc1 L_{name}_ok", "s_nop 1",
                          f"s_cmp_eq_u32 vcc_lo, {sExp}", f"s_cbranch_scc0 L_{name}_s2", f"s_branch L_{name}_ok"]))
        return [valu('v_cmp_le_u32', 'vcc', thr, res),
                raw(f"s_cmp_eq_u32 vcc_lo, {sExp}\ns_cbranch_scc0 L_{name}_spin\nL_{name}_ok:", 'salu', [{('s', 'vcc')}, res, addr], [res], cost=2)]
    def kv_gather(g):
        t0, t1, t2 = vJ
        poll0 = [salu('s_mov_b32', sT1, OOB), glue(scmp('s_cmp_eq_u32', sW, 0), salu('s_cselect_b32', sT0, 0, sT1)), valu('v_lshlrev_b32', t0, 4, vLane), valu('v_max_u32', t0, sT0, t0),
                 vload('buffer_load_dword', t1, t0, sDBG, 0, mods='sc1', lat=30)]
        poll1 = g.check('kv', t1, t0, sDBG, 16)
        buf = [v(T + 4*i, 4) for i in range(6)] + [v(232 + 4*i, 4) for i in range(6)]
        g.rA = v(228, 4)
        e0, e1, e2 = v(224), v(225), v(226)
        sel = [valu('v_and_b32', e0, 1, vLane), valu('v_lshlrev_b32', e0, 4, e0), valu('v_mov_b32', e2, '0x3f80'), valu('v_lshlrev_b32', e0, e0, e2), valu('v_and_b32', e1, 14, vLane)]
        for d in range(4): sel += [valu('v_cmp_eq_u32', 'vcc', 4*d, e1), valu('v_cndmask_b32', g.rA[d], 0, e0, 'vcc')]
        L1 = [salu('s_lshl_b32', sT0, sJ, 1), salu('s_add_u32', sT0, sT0, sC), salu('s_mul_i32', sT0, sT0, 24576), salu('s_mul_i32', sT1, sR, 768), salu('s_add_u32', sT0, sT0, sT1),
              valu('v_lshrrev_b32', t0, 4, vLane), valu('v_mul_u32_u24', t0, 1536, t0), valu('v_and_b32', t1, 15, vLane), valu('v_lshl_add_u32', t0, t1, 4, t0)]
        for i in range(4):
            if i: L1 += [salu('s_add_u32', sT0, sT0, 6144)]
            L1 += [vload('buffer_load_dwordx4', buf[4*gr + i], t0, sKV, sT0, off=256*gr, mods='sc1', lat=g.kvlat) for gr in range(3)]
        D = [v(224, 4), buf[0], buf[1]]
        L2 = [salu('s_mul_i32', sT0, sC, 1536), salu('s_mul_i32', sT1, sR, 768), salu('s_add_u32', sT0, sT0, sT1), salu('s_add_u32', sT0, sT0, KVE),
              valu('v_lshrrev_b32', t2, 4, vLane), valu('v_lshlrev_b32', t2, 2, t2), valu('v_lshl_add_u32', t2, t1, 4, t2), valu('v_add_u32', t2, sT0, t2)]
        for gr in range(3): L2 += [mfma(D[gr], g.rA, buf[4*gr + i], 0 if i == 0 else None) for i in range(4)]
        for gr in range(3): L2 += [valu('v_cvt_pk_bf16_f32', D[gr][0], D[gr][0], D[gr][1]), dsw('ds_write_b32', t2, D[gr][0], 256*gr)]
        return poll0, poll1, sel, L1, L2
    def o_part(g):
        t0, t1, t2 = vJ; P = []
        R_ = v(104, 12); A01, A11, A00, A10 = R_.sub(0, 4), R_.sub(2, 4), R_.sub(4, 4), R_.sub(8, 4)
        q = [v(T + 4*i, 4) for i in range(6)] + [v(96, 4), v(100, 4)]
        P += [salu('s_mul_i32', sT0, sC, 1536), salu('s_add_u32', sT0, sT0, KVE), valu('v_lshlrev_b32', t0, 4, vLane), valu('v_add_u32', t0, sT0, t0), dsr('ds_read_b128', A00, t0, 0),
              valu('v_and_b32', t0, 3, vLane), valu('v_min_u32', t0, 2, t0), valu('v_lshrrev_b32', t1, 4, vLane), valu('v_mul_u32_u24', t1, 3, t1), valu('v_add_u32', t1, t1, t0),
              valu('v_lshlrev_b32', t1, 4, t1), valu('v_add_u32', t1, sT0, t1), valu('v_lshlrev_b32', t0, 4, t0), valu('v_add_u32', t0, sT0, t0),
              valu('v_and_b32', t2, 15, vLane), valu('v_lshlrev_b32', t2, 4, t2), valu('v_add_u32', t2, sT0, t2),
              dsr('ds_read_b128', A10, t1, 1024 + 256), dsr('ds_read_b64', A01.sub(0, 2), t2, 1024), dsr('ds_read_b64', A11.sub(0, 2), t0, 1024 + 448)]
        E = [v(236 + i) for i in range(4)]; Bq = [a(176 + 4*i, 4) for i in range(4)]; B1 = [v(240 + 4*i, 4) for i in range(4)]
        P += [salu('s_lshl_b32', sT0, sR, 8), salu('s_add_u32', sT0, sT0, LOGIT), valu('v_and_b32', t0, 15, vLane), valu('v_lshlrev_b32', t1, 2, t0), valu('v_add_u32', t1, sT0, t1)]
        P += [dsr('ds_read_b32', E[tb], t1, 64*tb) for tb in range(4)]
        P += [salu('s_mul_i32', sT0, sW, 5120), salu('s_add_u32', sT0, sT0, PHIQ), valu('v_mul_u32_u24', t0, 80, t0), valu('v_add_u32', t0, sT0, t0),
              valu('v_lshrrev_b32', t1, 4, vLane), valu('v_lshl_add_u32', t1, t1, 4, t0)]
        for tb in range(4): P += [dsr('ds_read_b128', Bq[tb], t1, 1280*tb), dsr('ds_read_b64', B1[tb].sub(0, 2), t0, 1280*tb + 64)]
        cv = lambda d, x: [valu('v_cvt_pk_bf16_f32', d[0], x[0], x[1]), valu('v_cvt_pk_bf16_f32', d[1], x[2], x[3])]
        P += [valu('v_cmp_gt_u32', 'vcc', 16, vLane), salu('s_mov_b32', sT2, '0x42700000')]
        for tb in range(4):
            P += [valu('v_cndmask_b32', B1[tb][0], 0, B1[tb][0], 'vcc'), valu('v_cndmask_b32', B1[tb][1], 0, B1[tb][1], 'vcc'), valu('v_mov_b32', B1[tb][2], 0), valu('v_mov_b32', B1[tb][3], 0),
                  valu('v_min_f32', E[tb], sT2, E[tb]), valu('v_mul_f32', E[tb], sL, E[tb]), valu('v_exp_f32', E[tb], E[tb])]
        o0 = [q[2*tb] for tb in range(4)]; o1 = [q[2*tb + 1] for tb in range(4)]
        for tb in range(4): P += [mfma(o0[tb], A00, Bq[tb], 0), mfma(o1[tb], A10, Bq[tb], 0)]
        for tb in range(4): P += [mfma(o0[tb], A01, B1[tb]), mfma(o1[tb], A11, B1[tb])]
        P += [salu('s_mul_i32', sT0, sW, 5120), salu('s_add_u32', sT0, sT0, PHIQ), valu('v_lshlrev_b32', t0, 3, vLane), valu('v_add_u32', t0, sT0, t0),
              valu('v_lshlrev_b32', t1, 2, vLane), valu('v_add_u32', t1, sT0, t1), salu('s_mov_b32', sT2, '0x358637bd')]
        for tb in range(4): P += [valu('v_add_f32', o1[tb][2], sT2, o1[tb][2])]
        for tb in range(4): P += [valu('v_rcp_f32', o1[tb][2], o1[tb][2])]
        for tb in range(4): P += [valu('v_mul_f32', E[tb], E[tb], o1[tb][2])]
        for tb in range(4):
            P += [valu('v_mul_f32', o0[tb][k], o0[tb][k], E[tb]) for k in range(4)] + [valu('v_mul_f32', o1[tb][k], o1[tb][k], E[tb]) for k in range(2)]
            P += cv(o0[tb], o0[tb]) + [valu('v_cvt_pk_bf16_f32', o1[tb][0], o1[tb][0], o1[tb][1]), dsw('ds_write_b64', t0, o0[tb].sub(0, 2), 512*tb),
                  valu('v_cndmask_b32', o1[tb][0], 0, o1[tb][0], 'vcc'), dsw('ds_write_b32', t1, o1[tb][0], 2048 + 256*tb)]
        return P
    def hf(g, ks, tb): return a((ks*4 + tb)*4, 4)
    def h_reads(g, kss, vH, vH8):
        return [dsr('ds_read_b128', g.hf(ks, tb), vH8 if ks == 8 else vH, (0 if ks == 8 else ks*8192) + tb*1024) for ks in kss for tb in range(4)]
    def o_reads(g):
        t0, t1, t2 = vJ
        P = [salu('s_mul_i32', sT0, sR, 10240), salu('s_add_u32', sT0, sT0, PHIQ), valu('v_lshlrev_b32', t0, 3, vLane), valu('v_add_u32', t0, sT0, t0),
             valu('v_lshlrev_b32', t1, 2, vLane), valu('v_add_u32', t1, sT0, t1)]
        Rd = []
        for tb in range(4):
            Rd += [dsr('ds_read_b64', g.hf(9, tb).sub(0, 2), t0, 512*tb), dsr('ds_read_b64', g.hf(9, tb).sub(2, 2), t0, 5120 + 512*tb),
                   dsr('ds_read_b32', g.hf(10, tb)[0], t1, 2048 + 256*tb), dsr('ds_read_b32', g.hf(10, tb)[1], t1, 5120 + 2048 + 256*tb)]
            P += [valu('v_accvgpr_write_b32', g.hf(10, tb)[2], 0), valu('v_accvgpr_write_b32', g.hf(10, tb)[3], 0)]
        return P, Rd
    def g2_dma_addrs(g):
        t0, t1, t2 = vJ
        g.dW2 = [v(12 + i) for i in range(4)]; g.dO9 = v(1); g.dO10 = v(13)
        P = [valu('v_bfe_u32', t1, vLane, 1, 2), valu('v_lshrrev_b32', t2, 4, vLane), valu('v_xor_b32', t1, t1, t2), valu('v_lshlrev_b32', t1, 5, t1),
             valu('v_and_b32', t2, 1, vLane), valu('v_lshl_add_u32', t1, t2, 4, t1),
             salu('s_lshl_b32', sT0, sW, 3), valu('v_lshrrev_b32', t0, 3, vLane), valu('v_add_u32', t2, sT0, t0), valu('v_mul_u32_u24', t2, 1152, t2), valu('v_add_u32', g.dW2[0], t2, t1)]
        P += [salu('s_mul_i32', sT0, sR, 2304), salu('s_add_u32', sT0, sT0, 2048), valu('v_add_u32', g.dO9, sT0, g.dW2[0]),
              valu('v_and_b32', t0, 3, t0), valu('v_lshrrev_b32', t2, 1, t0), valu('v_lshl_add_u32', t0, t2, 4, t0), valu('v_add_u32', t0, 16, t0), valu('v_mul_u32_u24', t0, 1152, t0),
              valu('v_add_u32', t0, 2048, t0), valu('v_add_u32', g.dO10, t0, t1),
              salu('s_mul_i32', sColF, sRowF, 1152), salu('s_mul_i32', sRowH, sRowH, 1152), salu('s_mul_i32', sOffX, sJ, 41472), salu('s_lshl_b32', sMx, sW, 10)]
        return P
    RB = [RING, 0, 98304]
    BARS = [4, 10, 14, 20, 26] + [x for n in range(3, 9) for x in (11*n - 2, 11*n + 4)] + [97]
    def g2_dma(g, q):
        n, ks = g.SEQ[q]; tg = ('g2', q); P = [salu('s_add_u32', 'm0', sMx, g.SL[q])]
        if ks >= 9: return P + [salu('s_add_u32', sOff, sOffX, n*128), dma(g.dO9 if ks == 9 else g.dO10, sWO, sOff, tag=tg)]
        return P + [salu('s_add_u32', sOff, sColF if ks < 8 else sRowH, n*128 + (ks*36864 if ks < 8 else 0)), dma(g.dW2[0], sW2, sOff, tag=tg)]
    def plan_slots(g):
        A_ = [RING + 4096*i for i in range(16)]; free = A_[4:] + [4096*i for i in range(12)]; g.SL = {}; g.ISS = {}; q = 0; N = 99; used = []
        for b in [-2, -1] + g.BARS:
            if b == -1: free += A_[:4]
            if b == 14: free += [4096*i for i in range(12, 16)]
            if b == 26: free += [MISC + 4096*i for i in range(6)]
            if b >= 0:
                free += [sl for (p, sl) in used if p <= b - 1]; used = [(p, sl) for (p, sl) in used if p > b - 1]
            nx = next((x for x in g.BARS if x > b), N); lim = {-2: 12, -1: 6}.get(b, int((nx - b)*g.drate + 0.5))
            L = []
            while free and q < N and len(L) < lim: sl = free.pop(0); g.SL[q] = sl; used.append((q, sl)); L.append(q); q += 1
            g.ISS[b] = L
        assert q == N
    def g2_rd_addrs(g):
        t0, t1, t2 = vJ
        g.r2 = [[v(T + 24), v(T + 25)], [v(T + 26), v(T + 27)], [v(112), v(113)]]; g.r10 = [[v(T + 28), v(T + 29)], [v(T + 30), v(T + 31)], [v(114), v(115)]]
        g.vP = [v(116 + i) for i in range(4)]
        t3 = g.r2[0][0]
        P = [valu('v_lshrrev_b32', t0, 5, vLane), valu('v_lshlrev_b32', t0, 10, t0), valu('v_bfe_u32', t1, vLane, 2, 3), valu('v_lshl_add_u32', t0, t1, 7, t0),
             valu('v_and_b32', t2, 3, vLane), valu('v_lshl_add_u32', t0, t2, 3, t0), valu('v_lshrrev_b32', t1, 1, t1), salu('s_lshl_b32', sT1, sC, 1), valu('v_xor_b32', t1, sT1, t1),
             valu('v_lshlrev_b32', t1, 5, t1), valu('v_xor_b32', t3, 32, t1), valu('v_add_u32', g.r2[1][0], t0, t1), valu('v_add_u32', g.r2[1][1], t0, t3),
             valu('v_bfe_u32', t1, vLane, 2, 2), valu('v_lshlrev_b32', t0, 7, t1), valu('v_lshl_add_u32', t0, t2, 3, t0), valu('v_lshrrev_b32', t1, 1, t1), valu('v_xor_b32', t1, sT1, t1),
             valu('v_lshlrev_b32', t1, 5, t1), valu('v_xor_b32', t3, 32, t1), salu('s_lshl_b32', sT0, sW, 10),
             valu('v_add3_u32', g.r10[1][0], t0, t1, sT0), valu('v_add3_u32', g.r10[1][1], t0, t3, sT0)]
        for e in range(2): P += [valu('v_add_u32', g.r2[0][e], g.RB[0], g.r2[1][e]), valu('v_add_u32', g.r10[0][e], g.RB[0], g.r10[1][e])]
        Q = []
        for e in range(2): Q += [valu('v_add_u32', g.r2[2][e], g.RB[2], g.r2[1][e]), valu('v_add_u32', g.r10[2][e], g.RB[2], g.r10[1][e])]
        Q += [salu('s_mul_i32', sT0, sM, 144), salu('s_lshl_b32', sT1, sC, 3), salu('s_add_u32', sT0, sT0, sT1), salu('s_lshl_b32', sT1, sR, 2), salu('s_add_u32', sT0, sT0, sT1),
              salu('s_lshl_b32', sT0, sT0, 4), salu('s_add_u32', sT0, sT0, sJ), salu('s_lshl_b32', sT0, sT0, 10), valu('v_lshlrev_b32', t0, 4, vLane), valu('v_add_u32', g.vP[0], sT0, t0)]
        Q += [valu('v_add_u32', g.vP[i], 16384*i, g.vP[0]) for i in range(1, 4)]
        return P, Q
    def red_setup(g):
        t0, t1, t2 = vJ
        g.vLd, g.vOut, g.vS, g.vPA, g.vPR, g.vFA, g.vFV = [v(120 + i) for i in range(7)]
        g.rD = v(224, 4)
        P = []; srd(P, sOUT, 22, 2048*1152)
        P += [salu('s_lshr_b32', sT0, sJ, 1), salu('s_lshl_b32', sT0, sT0, 4), valu('v_and_b32', t0, 15, vLane),
              valu('v_add_u32', t0, sT0, t0), valu('v_lshlrev_b32', t1, 2, t0), valu('v_add_u32', t1, LOGIT, t1), dsr('ds_read_b32', g.vS, t1, 0),
              salu('s_lshl_b32', sT0, sM, 7), valu('v_add_u32', t0, sT0, t0), valu('v_mul_u32_u24', t0, 1152, t0), salu('s_lshl_b32', sT0, sW, 3), valu('v_add_u32', t0, sT0, t0),
              valu('v_lshrrev_b32', t1, 5, vLane), valu('v_lshl_add_u32', t0, t1, 5, t0), valu('v_bfe_u32', t1, vLane, 4, 1), valu('v_lshl_add_u32', t0, t1, 2, t0),
              salu('s_and_b32', sT1, sJ, 1), salu('s_lshl_b32', sT0, sT1, 6), valu('v_add_u32', g.vOut, sT0, t0),
              salu('s_lshl_b32', sT1, sT1, 3), salu('s_mul_i32', sT0, sM, 144), salu('s_add_u32', sT0, sT0, sT1), salu('s_lshr_b32', sT1, sJ, 1), salu('s_add_u32', sT0, sT0, sT1),
              salu('s_lshl_b32', sT0, sT0, 14), salu('s_lshl_b32', sT1, sW, 8), salu('s_add_u32', sT0, sT0, sT1), valu('v_lshrrev_b32', t0, 4, vLane), valu('v_lshlrev_b32', t0, 10, t0),
              valu('v_and_b32', t1, 15, vLane), valu('v_lshl_add_u32', t0, t1, 4, t0), valu('v_add_u32', g.vLd, sT0, t0),
              salu('s_mov_b32', sT1, OOB), valu('v_mov_b32', t0, sT1), valu('v_mov_b32', t2, sFl), valu('v_cmp_eq_u32', 'vcc', 0, vLane), salu('s_andn2_b32', sT0, sFl, 255),
              valu('v_cndmask_b32', g.vFA, t0, t2, 'vcc'), valu('v_lshlrev_b32', t2, 2, vLane), valu('v_add_u32', t2, sT0, t2), valu('v_cmp_gt_u32', 'vcc', 16, vLane),
              salu('s_mov_b32', sT2, '0x42700000'), valu('v_cndmask_b32', g.vPA, t0, t2, 'vcc'),
              valu('v_min_f32', g.vS, sT2, g.vS), valu('v_mul_f32', g.vS, sL, g.vS), valu('v_exp_f32', g.vS, g.vS), valu('v_add_f32', g.vS, 1.0, g.vS), valu('v_rcp_f32', g.vS, g.vS),
              ]
        return P
    def rbuf(g, c, i): return v(T + 4*i, 4) if (c == 5 and c not in g.tailc) else a((176 + c*16 if c < 5 else (c - 5)*16) + 4*i, 4)
    def red_flag(g, val): return [valu('v_mov_b32', g.vFV, val), vstore('buffer_store_dword', g.vFV, g.vFA, sPART, 0, mods='sc1', tag='fl')]
    def red_poll(g): return [vload('buffer_load_dword', g.vPR, g.vPA, sPART, 0, mods='sc1', lat=30)]
    def red_ld(g, c):
        P = []
        for i in range(4): P += [salu('s_mov_b32', sT2, c*262144 + i*4096), vload('buffer_load_dwordx4', g.rbuf(c, i), g.vLd, sPART, sT2, mods='sc1', lat=36)]
        return P
    def red_m(g, c):
        D = g.rD
        return [mfma(D, g.rA, g.rbuf(c, i), 0 if i == 0 else None) for i in range(4)] + \
               [valu('v_mul_f32', D[0], D[0], g.vS), valu('v_mul_f32', D[1], D[1], g.vS), valu('v_cvt_pk_bf16_f32', D[0], D[0], D[1]), vstore('buffer_store_dword', D[0], g.vOut, sOUT, 0, off=c*128)]
    def w2f(g, q, e): return v(WF + ((q + 2) % 4)*8 + e*4, 4)
    SEQ = [(0, k) for k in range(6)] + [(1, k) for k in range(6)] + [(0, 6), (0, 7), (1, 6), (1, 7), (0, 8), (0, 9), (0, 10), (1, 8), (1, 9), (1, 10)] + [(n, k) for n in range(2, 9) for k in range(11)]
    def g2_reads(g, q):
        n, ks = g.SEQ[q]; X = []; ad_ = g.SL[q]; b = 1 if ad_ < RING else 0 if ad_ < MISC else 2; o = ad_ - g.RB[b]
        for e in range(2):
            f = g.w2f(q, e)
            if ks == 10: X.append([dsr('ds_read_b64_tr_b16', f.sub(0, 2), g.r10[b][e], o)])
            else: X.append([dsr('ds_read_b64_tr_b16', f.sub(2*z, 2), g.r2[b][e], o + z*2048) for z in range(2)])
        return X
    def acc2(g, n, e, tb): return v(128 + (n % 2)*32 + (e*4 + tb)*4, 4)
    def g2_epi(g, n):
        P = [salu('s_mov_b32', sT3, n*262144)]; St = []
        for tb in range(4):
            d = v(192 + (n % 2)*16 + tb*4, 4)
            for e in range(2):
                x = g.acc2(n, e, tb)
                P += [valu('v_cvt_pk_bf16_f32', d[2*e], x[0], x[1]), valu('v_cvt_pk_bf16_f32', d[2*e + 1], x[2], x[3])]
            P += [vstore('buffer_store_dwordx4', d, g.vP[tb], sPART, sT3, tag=('part', n), mods=g.pmods)]
        return P
    def fstamp(g):
        prs = list(range(6, 22, 2)) + list(range(28, 48, 2)) + [64, 66, 68, 70]
        r = prs[g.nf]; g.nf += 1; g.fregs.append(r)
        return raw(f"s_memrealtime s[{r}:{r+1}]", 'label')
    def f0dump(g, at):
        if g.fine0 != at: return []
        P = [valu('v_lshlrev_b32', v(5), 3, vLane), valu('v_add_u32', v(5), sT4, v(5)), valu('v_mov_b32', v(6), g.vF0), valu('v_mov_b32', v(7), g.vF0), valu('v_cmp_gt_u32', 'vcc', 18, vLane),
             valu('v_mov_b32', g.vF0, OOB), valu('v_cndmask_b32', v(5), g.vF0, v(5), 'vcc'), vstore('buffer_store_dwordx2', v(6, 2), v(5), sPART, 0, off=8*14)]
        return P
    def fdump(g):
        if not g.fine: return []
        P = [raw("s_waitcnt lgkmcnt(0)", 'wait'), valu('v_mov_b32', v(5), sT4)]
        for i, r in enumerate(g.fregs): P += [valu('v_mov_b32', v(6), s(r)), valu('v_mov_b32', v(7), s(r)), vstore('buffer_store_dwordx2', v(6, 2), v(5), sPART, 0, off=8*(g.ns + i)), raw('s_nop 1', 'wait')]
        return P
    def gemm2(g, X1, X2, X3, X4, X5):
        mf = []; F = {}; st = []
        ad = lambda i, x: F.setdefault(i, []).extend(x)
        for q, (n, ks) in enumerate(g.SEQ):
            for e in range(2):
                for i in range(4):
                    tb = i if e == 0 else 3 - i
                    mf.append(mfma(g.acc2(n, e, tb), g.w2f(q, e), g.hf(ks, tb), 0 if ks == 0 else None))
            if q + 2 < 99:
                X = g.g2_reads(q + 2)
                for e in range(2):
                    for z, x in enumerate(X[e]): ad(8*q + 4*e + 2*z + 1, [x])
        flg, chk, mm = g.plan; bl = g.BARS
        for bi, p in enumerate(bl):
            nx = bl[bi + 1] if bi + 1 < len(bl) else 99
            tags = [('g2', q) for q in range(p + 2, min(nx + 2, 99))] + ([('part', flg[p])] if p in flg else [])
            if tags: ad(8*p - 1, [wait_vm(*tags)])
            ad(8*p, [barrier()])
            if g.fine: ad(8*p - 2, [g.fstamp()])
            if g.ISS[p]: st.append((sum([g.g2_dma(q) for q in g.ISS[p]], []), 8*p + 1, 8*nx - 1))
            if p in flg: st.append((g.red_flag(flg[p] + 1), 8*p + 1, 8*p + 10))
            if p in chk:
                pp, cs = chk[p]
                ck = g.check(f"r{p}", g.vPR, g.vPA, sPART, cs[-1] + 1)
                st.append((g.red_poll(), 8*pp + 12, 8*pp + 24)); st.append((ck, 8*p - 8, 8*p - 1))
                R_ = sum([g.red_ld(c) for c in cs], [])
                st.append((spaced(R_, 'ld', g.lsp), 8*p + 4, min(8*p + 14 + g.lsp*4*len(cs), 791)))
        for p, cs in mm.items(): st.append((sum([g.red_m(c) for c in cs], []), 8*p + 4, 8*p + 38))
        ends = {0: 18, 1: 21}
        for n in range(8):
            e = ends.get(n, 11*n + 10); b = 8*(e + 1)
            st.append((spaced(g.g2_epi(n), 'st', 5 if n == 0 else g.esp), b + 2, b + (23 if n == 0 else 14 + 3*g.esp)))
        st = [(X2, 0, 31)] + st + [(X1, 0, 8*14 - 2), (X3, 8*14 + 1, 8*16 - 2), (X4, 8*16, 8*19), (X5, 8*19, 8*26 - 2)]
        g.rep.append("G2")
        P = pack(mf, F, st, rep=g.rep)
        P += g.stamp()
        dl = [c for p in chk for c in chk[p][1]]; dm = [c for p in mm for c in mm[p]]
        f7 = 7 in flg.values()
        rest = [c for c in range(7) if c not in dl]; a_, b_ = rest[:g.tpre], rest[g.tpre:]
        LD = lambda cs: sum([g.red_ld(c) for c in cs], []); M = lambda cs: sum([g.red_m(c) for c in cs], [])
        fs = lambda: [g.fstamp()] if g.fine else []
        pend = [c for c in dl if c not in dm]
        P += g.red_poll() + g.g2_epi(8) + M(pend) + g.check("t0", g.vPR, g.vPA, sPART, 7) + [barrier()] + LD(a_) + fs()
        if f7:
            P += g.red_poll() + [wait_vm(('part', 8))] + g.check("t1", g.vPR, g.vPA, sPART, 8) + [barrier()] + g.red_flag(9) + LD(b_[:g.tmid]) + g.red_poll() + LD(b_[g.tmid:] + [7]) + fs()
            P += g.check("t2", g.vPR, g.vPA, sPART, 9) + [barrier()] + fs() + LD([8]) + M(rest + [7, 8])
        else:
            P += [wait_vm(('part', 8)), barrier()] + g.red_flag(9) + LD(b_[:g.tmid]) + g.red_poll() + LD(b_[g.tmid:]) + fs()
            P += g.check("t2", g.vPR, g.vPA, sPART, 9) + [barrier()] + fs() + LD([7, 8]) + M(rest + [7, 8])
        return P
    def main(g):
        P = g.prologue()
        hA = g.half_addrs(); g.fixed1()
        if g.stamps:
            for r in ((96, 97, 95) if 'f' in g.dbg else (97, 95)):
                P += [valu('v_mov_b32', v(6), s(r)), valu('v_mov_b32', v(7), s(r)), valu('v_mov_b32', v(5), sT4), vstore('buffer_store_dwordx2', v(6, 2), v(5), sPART, 0, off=8*g.ns), raw('s_nop 1', 'wait')]; g.ns += 1
        P += g.stamp()
        P += [wait_vm(('w', 0), ('w', 1), ('x', 0)), barrier()] + g.pre_reads + ([] if g.early else (g.dmaX(2) if g.ord < 3 else []) + g.dmaW(4) + g.dmaW(5)) + g.dmaX(3) + g.dmaW(6)
        P += g.stamp()
        phL, phP = g.phiA_loads()
        pf = g.pf
        e0 = 16*(g.U[17] + 1)
        P += g.phase1(0, [(g.late + g.gate_late + [wait_ds()] + (g.prefetchQ() if g.split else []), 2, 350), ((g.prefetch13(2) if pf else []) + (g.prefetchQ() if pf and g.qlate and not g.split else []) + phL, max(16*g.U[17] - 6, 350), 570),
                          (g.silu(0, 0), e0 + 4, 576)]) + g.stamp() + g.f0dump(0)
        P += g.phase1(2, [(phP + (g.prefetch13(3) if pf and not g.pfp else []), 60, 280), (g.silu(1, 1), 4, 288)]) + g.stamp()
        A, Q, B, C = g.attn_post()
        P += g.phase1(3, [((g.prefetch13(3, vHf[0][0], vHf[0][1]) + g.prefetch13(4, vHf[0][0], vHf[0][1])[6:] + (g.prefetch2(vHf[0][0], vHf[0][2], vHf[0][1]) if g.pfp == 1 else []) if pf and g.pfp else []) + A + [wait_ds()], 1, g.p3b - 1), (g.prefetch2(vHf[1][0], vHf[1][1], vHf[1][2]) if pf and g.pfp == 4 else [], 80, 110), (B + C, g.p3b + 1, 280), (Q, g.p3b + 1, 288)]) + g.stamp()
        rA, rB = g.g2_rd_addrs(); g2a = g.g2_dma_addrs()
        P += g.phase1(4, [(g.flag(vJ[0], vJ[1]) + (g.prefetch13(4) + g.prefetch2(v(T), v(T+1), v(T+2)) if pf and not g.pfp else []) + hA + (g.prefetch2(v(T), v(T + 1), v(T + 2)) if g.split else []), 43, 230 if g.split else 170), (rA + g2a + (g.prefetch2(v(T), v(T + 1), v(T + 2)) if pf and g.pfp == 3 and not g.split else []), 230 if g.split else 180, 288), (g.silu(1, 2), 4, 288)],
                      extra={41: [wait_vm('kv')]}) + g.stamp() + g.f0dump(54)
        poll0, poll1, sel, L1, L2 = g.kv_gather()
        vH, vH8 = v(2), v(3)
        hr = [valu('v_lshlrev_b32', vH8, 4, vLane), salu('s_lshl_b32', sT3, sR, 12), valu('v_add_u32', vH, sT3, vH8), valu('v_add_u32', vH8, 65536, vH)]
        H = lambda ks: g.h_reads(ks, vH, vH8)
        for i in (16*98 + 9, 16*98 + 10): g.F1.pop(i)
        g.plan_slots()
        X = {135: [wait_vm(*[('g2', q) for q in range(6)]), wait_ds()], 136: [barrier()]}
        rr = [x for q in range(2) for y in g.g2_reads(q) for x in y]
        for i, x in enumerate(rr): X.setdefault(137 + min(i, 6), []).append(x)
        P += g.phase1(5, [(sum([g.g2_dma(q) for q in g.ISS[-2]], []), 107, 135), (poll0 + (g.prefetch2(v(T), v(T + 1), v(T + 2)) if pf and g.pfp == 2 else []) + sel + poll1, 0, 41), (hr + H([0, 1]), 16, 40), (H([2, 3]), 40, 60), (H([4, 5]), 60, 90),
                          (L1 + (g.prefetch2(v(224), v(225), v(226)) if pf and g.pfp == 5 else []) + L2, 43, 132), (g.silu(0, 3), 4, 132)], extra=X) + g.stamp() + g.f0dump(64)
        oa, orr = g.o_reads()
        X1 = H([6, 7]) + g.o_part() + g.silu(1, 4) + oa + [wait_ds()]
        P += g.gemm2(X1, sum([g.g2_dma(q) for q in g.ISS[-1]], []), H([8]) + orr, rB, g.red_setup()) + g.stamp() + g.fdump()
        import asmlib; asmlib.LOOSE = bool(g.dbg)
        if 'w' in g.dbg: P = [x for x in P if not (x.k == 'wvm')]
        if 'b' in g.dbg: P = [x for x in P if not (x.k == 'bar')]
        if 'v' in g.dbg: P = [x for x in P if not (x.k in ('trans',) or x.t.startswith('v_mul_f32') or x.t.startswith('v_add_f32') or x.t.startswith('v_cvt'))]
        if 'd' in g.dbg: P = [x for x in P if not (x.k == 'dma')]
        if 'r' in g.dbg: P = [x for x in P if not (x.t.startswith('ds_read_b64_tr'))]
        if 'c' in g.dbg: P = [x if '_spin' not in x.t else label(x.t.split('\n')[-1][:-1]) for x in P]
        if 'L' in g.dbg: P = [x for x in P if not (x.k == 'vld' and 'dwordx4 a' in x.t)]
        if 'k' in g.dbg: P = [x for x in P if x.tag != 'kv']
        if 'W' in g.dbg: P = [x for x in P if x.k != 'dsw']
        if 'P' in g.dbg: P = [x for x in P if x.k != 'perm']
        if 'p' in g.dbg: P = [x for x in P if not (isinstance(x.tag, tuple) and x.tag[0] == 'part')]
        rep = {}
        F = finalize(P, report=rep)
        print(rep, g.rep, file=sys.stderr)
        return text(F) + "\ns_endpgm\n" + "\n".join(g.tails) + "\nL_end:"

def build(**kw):
    g = G(**kw)
    body = g.main()
    hdr = "; gated mix: hedgehog linear attention + SwiGLU FFN fused in one launch (text emitted by my own generator script)\n"
    hdr += "; @launch grid=(256,1,1) block=(256,1,1) lds=163840\n"
    hdr += '.amdgcn_target "amdgcn-amd-amdhsa--gfx950"\n'
    return hdr + kernel_text(KN + "_kernel", body, vgpr=256, agpr=256)
if __name__ == "__main__":
    kw = {}
    out = sys.argv[1]
    for x in sys.argv[2:]:
        k, val = x.split("="); kw[k] = eval(val)
    t = build(**kw)
    open(out, "w").write(t)
```

```python
import re

def R(kind, a, n=1):
    return {(kind, a + i) for i in range(n)}
def V(a, n=1): return R('v', a, n)
def A_(a, n=1): return R('a', a, n)
def S(a, n=1): return R('s', a, n)
def rs(kind, a, n):
    return f"{kind}{a}" if n == 1 else f"{kind}[{a}:{a+n-1}]"
class Reg:
    def __init__(s, kind, a, n=1): s.k, s.a, s.n = kind, a, n
    def __str__(s): return rs(s.k, s.a, s.n)
    def set(s): return R(s.k, s.a, s.n)
    def sub(s, off, n=1):
        assert off + n <= s.n
        return Reg(s.k, s.a + off, n)
    def __getitem__(s, i): return s.sub(i, 1)
def v(a, n=1): return Reg('v', a, n)
def a(a_, n=1): return Reg('a', a_, n)
def s(a_, n=1): return Reg('s', a_, n)

class I:
    __slots__ = ('t', 'k', 'rd', 'wr', 'cost', 'tag', 'srcc', 'dep', 'wide', 'space')
    def __init__(x, t, k, rd=(), wr=(), cost=1, tag=None, srcc=None, dep=None, wide=False):
        x.t, x.k, x.cost, x.tag, x.dep, x.wide = t, k, cost, tag, dep, wide
        x.rd = set().union(*[r.set() if isinstance(r, Reg) else r for r in rd]) if rd else set()
        x.wr = set().union(*[r.set() if isinstance(r, Reg) else r for r in wr]) if wr else set()
        x.srcc = srcc; x.space = None

TRANS = ('v_exp_f32', 'v_rcp_f32', 'v_log_f32', 'v_rsq_f32', 'v_sqrt_f32')
def _regs(ops): return [o for o in ops if isinstance(o, Reg)]
def valu(op, dst, *src, mods=''):
    k = 'trans' if op in TRANS else 'valu'
    rd = _regs(src); wr = [dst] if isinstance(dst, Reg) else []
    txt = f"{op} {dst}, " + ", ".join(str(x) for x in src) + (" " + mods if mods else "")
    if op.startswith('v_fmac') : rd = rd + [dst]
    extra_rd = set(); extra_wr = set()
    if 'vcc' in [str(x) for x in src]: extra_rd = {('s', 'vcc')}
    if str(dst) == 'vcc': extra_wr = {('s', 'vcc')}
    return I(txt, k, rd + [extra_rd], wr + [extra_wr], cost=2 if k == 'trans' else 1)
class Neg:
    def __init__(s, r): s.r = r
def vneg(op, dst, *src):
    rd = []; t = []
    for x in src:
        if isinstance(x, tuple): rd.append(x[0]); t.append(f"-{x[0]}")
        else:
            if isinstance(x, Reg): rd.append(x)
            t.append(str(x))
    k = 'trans' if op in TRANS else 'valu'
    return I(f"{op} {dst}, " + ", ".join(t), k, rd, [dst], cost=2 if k == 'trans' else 1)
def perm(op, x, y): return I(f"{op} {x}, {y}", 'perm', [x, y], [x, y])
def salu(op, dst, *src):
    wr = [dst] if isinstance(dst, Reg) else ([{('s', 'm0')}] if dst == 'm0' else ([{('s','exec')}] if dst == 'exec' else []))
    return I(f"{op} {dst}, " + ", ".join(str(x) for x in src), 'salu', _regs(src), wr)
def scmp(op, x, y): return I(f"{op} {x}, {y}", 'salu', _regs([x, y]), [])
def mfma(d, A, B, c=None):
    cc = d if c is None else c
    rd = [A, B] + ([cc] if isinstance(cc, Reg) else [])
    return I(f"v_mfma_f32_16x16x32_bf16 {d}, {A}, {B}, {cc}", 'mfma', rd, [d], cost=2, srcc=(cc if isinstance(cc, Reg) else None))
def mfma4b(d, A, B):
    x = I(f"v_mfma_f32_16x16x4_4b_bf16 {d}, {A}, {B}, {d}", 'mfma', [A, B, d], [d], cost=2, srcc=d); x.wide = True
    return x
def dsr(op, dst, addr, off=0, tag=None):
    assert 0 <= off < 65536, off
    return I(f"{op} {dst}, {addr}" + (f" offset:{off}" if off else ""), 'dsr', [addr], [dst], tag=tag)
def dsw(op, addr, data, off=0):
    assert 0 <= off < 65536, off
    return I(f"{op} {addr}, {data}" + (f" offset:{off}" if off else ""), 'dsw', [addr, data], [])
def dsw2(addr, d0, d1, o0, o1):
    return I(f"ds_write2_b32 {addr}, {d0}, {d1} offset0:{o0} offset1:{o1}", 'dsw', [addr, d0, d1], [])
def dma(voff, srd, soff, off=0, tag=None):
    assert 0 <= off < 4096
    return I(f"buffer_load_dwordx4 {voff}, {srd}, {soff} offen" + (f" offset:{off}" if off else "") + " lds", 'dma',
             _regs([voff, srd, soff]) + [{('s', 'm0')}], [], tag=tag)
def vload(op, dst, voff, srd, soff=0, off=0, mods='', tag=None, rmw=False, lat=40):
    assert 0 <= off < 4096
    return I(f"{op} {dst}, {voff}, {srd}, {soff} offen" + (f" offset:{off}" if off else "") + (" " + mods if mods else ""), 'vld',
             _regs([voff, srd, soff]) + ([dst] if rmw else []), [dst], tag=tag, dep=lat)
def vstore(op, data, voff, srd, soff=0, off=0, mods='', tag=None):
    assert 0 <= off < 4096
    return I(f"{op} {data}, {voff}, {srd}, {soff} offen" + (f" offset:{off}" if off else "") + (" " + mods if mods else ""), 'vst',
             _regs([data, voff, srd, soff]), [], tag=tag, wide=(data.n >= 3), dep=data.set())
def wait_vm(*tags): return I('', 'wvm', dep=tags, cost=1)
def wait_ds(): return I('', 'wds', cost=1)
def wait_rd(tag): return I('', 'wrd', dep=tag, cost=1)
def wait_dsall(): return I('s_waitcnt lgkmcnt(0)', 'wdsall', cost=1)
def barrier(): return I('s_barrier', 'bar', cost=1)
def raw(t, k='salu', rd=(), wr=(), cost=1): return I(t, k, rd, wr, cost)
def glue(*xs):
    y = I("\n".join(x.t for x in xs), 'salu', [set().union(*[x.rd for x in xs])], [set().union(*[x.wr for x in xs])], cost=sum(x.cost for x in xs))
    return y
def spaced(xs, name, d, kinds=('vst', 'vld', 'dma')):
    for x in xs:
        if x.k in kinds: x.space = (name, d)
    return xs
def label(n): return I(n + ':', 'label', cost=0)
def comment(t): return I('; ' + t, 'label', cost=0)

def weave(mf, fixed_after, fixed_before, streams, cap=2):
    n = len(mf)
    after = {i: list(fixed_after.get(i, [])) for i in range(n)}
    used = [sum(x.cost for x in after[i]) + sum(x.cost for x in fixed_before.get(i + 1, [])) for i in range(n)]
    for insts, lo, hi in streams:
        hi = min(hi, n)
        tot = sum(x.cost for x in insts)
        if tot == 0 and not insts: continue
        L = cap
        free = lambda L: sum(max(0.0, L - used[i]) for i in range(lo, hi))
        if free(L) < tot:
            while free(L) < tot: L += 0.125
            w = [max(0.0, L - used[i]) for i in range(lo, hi)]
        else:
            f = free(L); w = [max(0.0, L - used[i]) * tot / f for i in range(lo, hi)]
        acc = 0.0; done = 0.0; q = list(insts);
        for g in range(lo, hi):
            acc += w[g - lo]
            while q and (done + q[0].cost * 0.5 <= acc + 1e-9 or g == hi - 1):
                x = q.pop(0); after[g].append(x); done += x.cost; used[g] += x.cost
    out = []
    for i in range(n):
        out += fixed_before.get(i, [])
        out.append(mf[i]); out += after[i]
    return out


RANK = {'nop':0,'wrd':0,'salu':0,'wait':0,'wvm':0,'wds':0,'wdsall':0,'bar':0,'label':0,'dsr':1,'vld':1,'dma':1,'vst':1,'dsw':1,'valu':2,'trans':2,'perm':2,'mfma':3}
class Gap:
    def __init__(g, m): g.m = m; g.s = []; g.v = []
    def vused(g): return sum(1 if x.k in ('dsr', 'vld', 'valu') else 2 for x in g.v) + (2 if any(x.k == 'bar' for x in g.s) else 0)
    def sused(g): return sum(x.cost for x in g.s) + (1 if any(x.k == 'dma' for x in g.v) else 0)
    def fits(g, x):
        r = RANK[x.k]
        if r == 0:
            if x.k == 'label': return True
            if x.k == 'bar': return g.sused() == 0 and g.vused() == 0
            return g.sused() == 0
        if x.k == 'dma': return g.vused() == 0 and g.sused() == 0
        if x.k in ('dsr', 'vld'): return g.vused() == 0 or (g.vused() == 1 and g.v[0].k == 'valu')
        if x.k == 'valu': return g.vused() <= 1
        return g.vused() == 0
    def put(g, x):
        (g.s if RANK[x.k] == 0 else g.v).append(x)
    def emit(g):
        return ([g.m] if g.m is not None else []) + g.s + [x for x in g.v if RANK[x.k] == 1] + [x for x in g.v if RANK[x.k] == 2]
def vcost(x): return 0 if RANK[x.k] in (0, 3) else (1 if x.k in ('dsr', 'vld', 'valu') else 2)
def _ord(x):
    rd, wr = set(x.rd), set(x.wr)
    if x.k in ('dsr', 'dsw', 'wds', 'wdsall', 'wrd'): wr.add(('o', 'ds'))
    if x.k in ('vld', 'vst', 'dma', 'wvm'): wr.add(('o', 'vm'))
    if x.space: wr.add(('o', x.space[0]))
    if x.k in ('bar', 'label') or 'cbranch' in x.t: wr |= {('o', 'ds'), ('o', 'vm')}
    return rd, wr
def lat(p, x, reg):
    pk, k = p.k, x.k
    if reg[0] == 'o':
        if x.space and reg[1] == x.space[0]: return x.space[1]
        if k == 'wds' and pk == 'dsw': return 4
        if k == 'wdsall': return 6
        return 0
    if pk == 'dsr': return 7
    if pk == 'vld': return 0 if (p.tag == 'pf' and x.tag == 'pf') else p.dep if isinstance(p.dep, int) else 40
    if pk == 'mfma': return 0 if (k == 'mfma' and x.srcc is not None and reg in x.srcc.set()) else 4
    if pk in ('valu', 'trans', 'perm'):
        if reg[0] == 's': return 3 if RANK[k] == 1 else 2
        if k == 'perm': return 2 if pk == 'perm' else 1
        if k == 'mfma' or pk != 'valu' or 'readfirstlane' in x.t: return 1
        return 0
    return 0
def pack(mf, fixed, streams, window=14, rep=None):
    n = len(mf); gaps = [Gap(m) for m in mf]
    for i, xs in fixed.items():
        for x in xs: gaps[i].put(x)
    free = [max(0, 2 - g.vused()) for g in gaps]
    suff = [0]*(n + 1)
    for i in range(n - 1, -1, -1): suff[i] = suff[i + 1] + free[i]
    st = [dict(q=[(x,) + _ord(x) for x in insts], lo=lo, hi=min(hi, n)) for insts, lo, hi in streams]
    wt = {}; rt = {}; out = []; t = 0; over = 0
    def ready(sq, k, g):
        x, rd, wr = sq[k]
        for (y, yr, yw) in sq[:k]:
            if (rd & yw) or (wr & yr) or (wr & yw): return False
        for r in rd | wr:
            if r in wt:
                tp, p = wt[r]; L = lat(p, x, r) if (r in rd or r[0] == 'o' or p.k in ('dsr', 'vld', 'mfma')) else 0
                if RANK[x.k] < RANK[p.k] and p.k != 'mfma': L = max(L, 1)
                if t < tp + L: return False
        for r in wr:
            if r in rt:
                tp, p = rt[r]
                if RANK[x.k] < RANK[p.k] and p.k != 'mfma' and t < tp + 1: return False
        return True
    def note(x, rd, wr):
        for r in rd: rt[r] = (t, x)
        for r in wr: wt[r] = (t, x)
    for i in range(n):
        g = gaps[i]
        act = [S_ for S_ in st if S_['lo'] <= i < S_['hi'] and S_['q']]
        while True:
            prog = True
            while prog:
                prog = False
                for S_ in act:
                    q = S_['q']
                    for k in range(min(window, len(q))):
                        x = q[k][0]
                        if x.k != 'mfma' and g.fits(x) and ready(q, k, g):
                            g.put(x); note(*q[k]); q.pop(k); prog = True; break
                    if prog: break
            for S_ in act:
                q = S_['q']
                same = [U for U in st if U['hi'] <= S_['hi'] and U['lo'] <= i]
                rem = sum(vcost(y[0]) for U in same for y in U['q']); cap = suff[i + 1] - suff[S_['hi']]
                if 'ov' not in S_: S_['ov'] = max(0, rem - cap); S_['i0'] = i
                allowed = S_['ov'] * (S_['hi'] - 1 - i) / max(1, S_['hi'] - S_['i0'])
                while q and rem - cap > allowed:
                    kk = next((k for k in range(min(window, len(q))) if q[k][0].k != 'mfma' and (RANK[q[k][0].k] != 1 or not any(RANK[y.k] == 1 for y in g.v)) and ready(q, k, g)), None)
                    if kk is None: break
                    x = q[kk][0]; g.put(x); note(*q[kk]); q.pop(kk); rem -= vcost(x); over += vcost(x)
            out += g.emit(); t += 1
            nxt = None
            for S_ in act:
                q = S_['q']
                for k in range(min(window, len(q))):
                    if q[k][0].k == 'mfma' and ready(q, k, g): nxt = (q, k); break
                if nxt: break
            if not nxt: break
            q, k = nxt; g = Gap(q[k][0]); note(*q[k]); q.pop(k)
        for S_ in act:
            if i == S_['hi'] - 1 and S_['q']:
                over += sum(vcost(y[0]) for y in S_['q']); left = len(S_['q'])
                if rep is not None: rep.append(f"flush {left} at {i}")
                out += [y[0] for y in S_['q']]; S_['q'] = []
    if rep is not None: rep.append(f"overflow {over}")
    return out

LOOSE = False
def finalize(prog, ds_slack=6, report=None):
    waited = set()
    for x in prog:
        if x.k == 'wvm': waited |= {t for t in x.dep if isinstance(t, tuple) or t in ('kv', 'h1', 'h2', 'ph1', 'ph2')}
        elif x.k in ('dma', 'vst', 'vld') and x.tag in waited: raise AssertionError(f"{x.tag} issued after its wait: {x.t}")
    out = []
    vm = []
    ds = []
    hist = []
    pos = 0
    nn = 0; nw = 0
    def emit(x, states=1):
        nonlocal pos
        out.append(x); hist.append((x, states)); pos += (1 if x.k == 'mfma' else 0) + (0.01 if x.k != 'label' else 0)
        if len(hist) > 40: hist.pop(0)
    def dist_need(x):
        need = 0; d = 0
        for (p, st) in reversed(hist):
            if p.k == 'label': continue
            req = 0
            k, pk = x.k, p.k
            isv = lambda z: z in ('valu', 'trans', 'perm')
            if pk == 'mfma':
                if k == 'mfma':
                    if x.srcc is not None and (x.srcc.set() & p.wr):
                        if not (x.srcc.set() == p.wr): req = max(req, 10 if p.wide else 6)
                    ab = x.rd - (x.srcc.set() if x.srcc is not None else set())
                    if ab & p.wr: req = max(req, 12 if p.wide else 8)
                    if (x.wr & p.wr) and not (x.srcc is not None and x.srcc.set() == p.wr): req = max(req, 12 if p.wide else 8)
                else:
                    if (x.rd | x.wr) & p.wr: req = max(req, 12 if p.wide else 8)
                    if isv(k) and p.srcc is not None and (x.wr & p.srcc.set()): req = max(req, 7 if p.wide else 3)
            if isv(pk):
                vw = {r for r in p.wr if r[0] != 's'}; sw = {r for r in p.wr if r[0] == 's'}
                if k == 'mfma' and (x.rd & vw): req = max(req, 2)
                if k == 'perm' and (x.rd & vw): req = max(req, 2)
                if pk == 'trans' and isv(k) and (x.rd & vw): req = max(req, 1)
                if 'readfirstlane' in x.t or 'readlane' in x.t:
                    if x.rd & vw: req = max(req, 1)
                if 'dpp' in x.t and (x.rd & vw): req = max(req, 2)
                if isv(k) and (x.rd & sw): req = max(req, 2)
                if k in ('dma', 'vld', 'vst') and (x.rd & sw): req = max(req, 5)
                if k == 'salu' and (x.rd & sw): req = max(req, 4)
            if pk == 'salu' and ('s', 'm0') in p.wr and k == 'dma': req = max(req, 1)
            if pk == 'vst' and p.wide and (x.wr & p.dep): req = max(req, 2)
            if pk == 'dsw' and isv(k) and False: pass
            if req > d: need = max(need, req - d)
            d += st
            if d >= 13: break
        return need
    for x in prog:
        nvm = None; nds = None
        if x.k == 'wvm':
            idx = [i for i, o in enumerate(vm) if o.tag in x.dep]
            if idx: nvm = len(vm) - 1 - max(idx)
        elif x.k == 'wds':
            idx = [i for i, (o, p) in enumerate(ds) if o.k == 'dsw']
            if idx: nds = len(ds) - 1 - max(idx)
        elif x.k == 'wrd':
            idx = [i for i, (o, p) in enumerate(ds) if o.tag == x.dep]
            if idx: nds = len(ds) - 1 - max(idx)
        elif x.k == 'wdsall':
            if ds: nds = 0
        else:
            touch = x.rd | x.wr
            idx = [i for i, o in enumerate(vm) if o.k == 'vld' and (o.wr & touch) and not (o.tag == 'pf' and x.tag == 'pf')]
            if idx: nvm = len(vm) - 1 - max(idx)
            idx = [i for i, (o, p) in enumerate(ds) if o.k == 'dsr' and (o.wr & touch)]
            if idx:
                m = max(idx)
                while m + 1 < len(ds) and pos - ds[m + 1][1] >= ds_slack: m += 1
                nds = len(ds) - 1 - m
        if nvm is not None or nds is not None:
            at = len(out); hv, hd = nvm, nds
            if out and out[-1].k != 'mfma' and x.k not in ('wvm', 'wds', 'wdsall', 'wrd'):
                cv = cd = 0; seen = 0; p = len(out) - 1
                while p >= 0 and seen < 3:
                    y = out[p]
                    if y.k in ('label', 'bar') or 'cbranch' in y.t: break
                    if y.k == 'mfma':
                        seen += 1
                        nx = out[p + 1] if p + 1 < len(out) else None
                        if (nvm is None or cv <= nvm) and (nds is None or cd <= nds):
                            if nx is not None and RANK.get(nx.k, 0) != 0 and nx.k != 'dma':
                                at = p + 1; hv = None if nvm is None else nvm - cv; hd = None if nds is None else nds - cd; break
                        else: break
                    if y.k in ('dma', 'vld', 'vst'): cv += 1
                    if y.k in ('dsr', 'dsw'): cd += 1
                    p -= 1
            t = 's_waitcnt'
            if nvm is not None:
                k_ = min(hv, 63); t += f' vmcnt({k_})'; keep = k_ + (nvm - hv); vm = vm[len(vm) - keep:] if keep else []
            if nds is not None:
                k_ = min(hd, 15); t += f' lgkmcnt({k_})'; keep = k_ + (nds - hd); ds = ds[len(ds) - keep:] if keep else []
            if at == len(out): emit(I(t, 'wait'))
            else: out.insert(at, I(t, 'wait'))
            nw += 1
        if x.k in ('wvm', 'wds', 'wdsall', 'wrd'): continue
        if x.k != 'label':
            need = dist_need(x)
            if need:
                emit(I(f's_nop {need-1}', 'nop'), need); nn += need
        emit(x)
        if x.k in ('dma', 'vld', 'vst'):
            vm.append(x)
            if len(vm) > 48:
                assert LOOSE, "vmcnt overflow"
                emit(I('s_waitcnt vmcnt(40)', 'wait')); vm = vm[-40:]
        if x.k in ('dsr', 'dsw'): ds.append((x, pos))
        if x.k == 'drain': vm = []; ds = []
    mo = []
    for x in out:
        if x.k == 'wait' and mo and mo[-1].k == 'wait' and x.t.startswith('s_waitcnt') and mo[-1].t.startswith('s_waitcnt'):
            f = dict(re.findall(r'(\w+cnt)\((\d+)\)', mo[-1].t))
            for k_, n_ in re.findall(r'(\w+cnt)\((\d+)\)', x.t): f[k_] = min(int(n_), int(f.get(k_, 99)))
            mo[-1] = I('s_waitcnt ' + ' '.join(f'{k_}({n_})' for k_, n_ in f.items()), 'wait')
        else: mo.append(x)
    out = mo
    if report is not None: report.update(nops=nn, waits=nw, n=len(out))
    return out

def text(prog): return "\n".join(x.t for x in prog)

def kernel_text(name, body, vgpr=256, agpr=0, sgpr=102):
    acc = (vgpr + 3) // 4 * 4
    nfv = acc + agpr if agpr else vgpr
    return f""".text
.globl {name}
.p2align 8
.type {name},@function
{name}:
{body}
s_endpgm
.section .rodata,"a"
.p2align 6
.amdhsa_kernel {name}
  .amdhsa_next_free_vgpr {nfv}
  .amdhsa_next_free_sgpr {sgpr}
  .amdhsa_accum_offset {acc}
  .amdhsa_group_segment_fixed_size 0
  .amdhsa_kernarg_size 96
  .amdhsa_user_sgpr_count 2
  .amdhsa_user_sgpr_kernarg_segment_ptr 1
  .amdhsa_system_sgpr_workgroup_id_x 1
  .amdhsa_float_denorm_mode_32 3
.end_amdhsa_kernel
"""
```

```python
import sys
from asmlib import *
KN = "gated_mix__linear_kernel_hedgehog__glu_gated_swiglu__prompt"
H0 = 0; RING = 73728; MISC = 139264; PHIQ = MISC; LOGIT = MISC + 20480; DUMMY = MISC + 20992; KVE = MISC + 21248; KVM = 135168; OWN = MISC + 8192; GA = MISC
PHIK = 32768; VV = PHIK + 20480
S0 = 90112; ST = [S0, 0, 45056]; WST = 11264
WS_PART = 0; WS_SC = 37748736; WS_KV = WS_SC + 8192; WS_KV_BYTES = 16*2*16*1536; WS_STAMP = 48 << 20; WS_FL = 40 << 20
LOG2E = 0x3fb8aa3b; NLOG2E = 0xbfb8aa3b
OOB = 0x7ff00000
sX, sQ, sQ2, sW1, sW3, sWH, sW2, sWO, sPART, sKV, sDBG, sMI = [s(28 + 4*i, 4) for i in range(12)]
sJ, sM, sW, sR, sC = s(76), s(77), s(78), s(79), s(80)
sOff, sColF, sColH, sMb, sT0, sT1, sNL, sL, sOffX, sMx, sT2, sRowF, sRowH = [s(81 + i) for i in range(13)]
sExp = s(3); sOUT = sWH; sMask = s(94, 2); sStamp = s(96, 2); sT3 = s(98); sT4 = s(99); sFl = s(27); sXA, sXB, sFA, sFB, sQA, sQB, sHA, sHB = s(0), s(1), s(12), s(13), s(6), s(7), s(10), s(11); sPar = s(100); sSp = s(14); sIdx = s(101)
vLane, vDmaF, vRdF0, vRdF1, vHw = v(0), v(1), v(2), v(3), v(4)
vJ = [v(5), v(6), v(7)]
vPhiA = [v(8, 4), v(12, 4)]
vE = [v(16 + i) for i in range(8)]
vHf = [v(24, 4), v(28, 4)]
T = 32; WF = 64; ACC = [128, 192]
def xf(ks, tb):
    i = ks*4 + tb
    return a(4*i, 4) if i < 64 else v(96 + 4*(i - 64), 4)
def slot(G): return ((G + 7) % 8) * 8192
def srd(P, d, lo, nbytes, add=0):
    if add >= 0: P += [glue(salu('s_add_u32', d[0], s(lo), add), salu('s_addc_u32', d[1], s(lo+1), 0))]
    else: P += [glue(salu('s_sub_u32', d[0], s(lo), -add), salu('s_subb_u32', d[1], s(lo+1), 0))]
    P += [salu('s_mov_b32', d[2], nbytes), salu('s_mov_b32', d[3], '0x20000')]

class G:
    def __init__(g, stamps=False, dump=None, pf=True, dbg='', cpf=True, pmods='sc1', fine=False, plan=12, esp=8, lsp=6, tpre=1, tmid=2, xpf=False, early=0, nsh=16, lead=12, fine0=None, rot=True, tlb=False, pfp=3, qlate=True, kvlat=50, p3b=170, drate=1.4, ord=0, split=24, tokm=True, omods='nt', own=True, lazy=True, k4=True):
        g.k4 = k4
        g.lazy = lazy
        g.own = own
        g.tokm = tokm; g.omods = omods
        g.split = split
        g.ord = ord
        g.drate = drate
        g.kvlat = kvlat; g.p3b = p3b
        g.qlate = qlate
        g.rot = rot; g.tlb = tlb; g.pfp = pfp
        g.fine0 = fine0; g.vF0 = v(15) if fine0 == 0 else v(4)
        g.lead = lead; g.mkSA()
        g.nsh = nsh
        g.xpf = xpf; g.early = early
        g.tpre = tpre; g.tmid = tmid
        g.esp = esp; g.lsp = lsp
        F2 = {37: 1, 48: 2, 59: 3, 70: 4, 81: 5, 92: 6}
        PL = {0: ((F2, {}, {}), (7, 7)),
              1: ((F2, {75: (64, [0, 1, 2])}, {}), (7, 7)),
              2: ((F2, {75: (64, [0, 1, 2, 3])}, {}), (7, 7)),
              3: ((F2, {70: (59, [0, 1, 2]), 92: (81, [3, 4])}, {}), (7, 7)),
              4: (({**F2, 97: 7}, {75: (64, [0, 1, 2])}, {}), (7, 7)),
              5: (({**F2, 97: 7}, {75: (64, [0, 1, 2]), 92: (81, [3, 4])}, {}), (7, 7)),
              7: ((F2, {64: (53, [0, 1, 2]), 81: (70, [3]), 92: (81, [4])}, {}), (7, 7)),
              8: ((F2, {64: (53, [0, 1, 2]), 81: (75, [3, 4]), 92: (86, [5])}, {}), (7, 7)),
              9: ((F2, {64: (53, [0, 1]), 75: (64, [2, 3])}, {}), (7, 7)),
              10: (({37: 1, 48: 2, 59: 3, 92: 6}, {70: (64, [0, 1, 2, 3])}, {}), (7, 7)),
              11: (({37: 1, 48: 2, 59: 3, 70: 4, 92: 6}, {70: (64, [0, 1, 2, 3]), 86: (81, [4])}, {}), (7, 7)),
              12: (({48: 2, 92: 6}, {64: (59, [0, 1, 2])}, {}), (7, 7)),
              13: (({48: 2, 70: 4, 92: 6}, {64: (59, [0, 1, 2]), 81: (75, [3, 4])}, {}), (7, 7)),
              6: (({**F2, 97: 7}, {75: (64, [0, 1]), 86: (75, [2, 3]), 97: (86, [4])}, {}), (7, 7))}
        g.plan, g.tthr = PL[plan]; g.tailc = [c for c in range(5, 9) if c not in [x for p in g.plan[1] for x in g.plan[1][p][1]]]
        g.fine = fine; g.nf = 0; g.fregs = []
        g.pmods = pmods
        g.cpf = cpf; g.tails = []; g.rep = []
        g.dbg = dbg
        g.stamps = stamps; g.dump = dump; g.ns = 0; g.pf = pf
    def stamp(g):
        if not g.stamps: return []
        i = g.ns; g.ns += 1
        return [raw(f"s_memtime {sStamp}", 'salu', [], [sStamp]), raw(f"s_memrealtime s[4:5]", 'salu'), raw("s_waitcnt lgkmcnt(0)", 'wait'),
                valu('v_mov_b32', v(6), sStamp[0]), valu('v_mov_b32', v(7), s(4)), valu('v_mov_b32', v(5), sT4),
                vstore('buffer_store_dwordx2', v(6, 2), v(5), sPART, 0, off=8*i)]
    def prologue(g):
        P = []
        P += [scmp('s_cmp_ge_u32', s(2), 256), raw('s_cbranch_scc1 L_end')]
        if g.stamps: P += [raw('s_memrealtime s[72:73]', 'label')]
        P += [raw('s_load_dwordx16 s[4:19], s[0:1], 0'), raw('s_load_dwordx8 s[20:27], s[0:1], 64')]
        t0, t1, t2, t3, t4 = [v(T + 16 + i) for i in range(5)]
        P += [valu('v_lshrrev_b32', t0, 6, v(0)), valu('v_and_b32', vLane, 63, v(0))]
        P += [valu('v_readfirstlane_b32', sW, t0)]
        lj = {16: 1, 8: 2, 4: 3}[g.nsh]
        P += [salu('s_bfe_u32', sJ, s(2), hex(((4 - lj) << 16) | 0)), salu('s_lshl_b32', sJ, sJ, lj), salu('s_bfe_u32', sT0, s(2), hex((lj << 16) | 3)), salu('s_add_u32', sJ, sJ, sT0),
              salu('s_lshr_b32', sIdx, s(2), 3 + lj)]
        if lj > 1: P += [salu('s_bfe_u32', sM, s(2), hex(((lj - 1) << 16) | (4 - lj))), salu('s_lshl_b32', sM, sM, 5 - lj), salu('s_add_u32', sM, sM, sIdx)]
        else: P += [salu('s_mov_b32', sM, sIdx)]
        P += [salu('s_lshr_b32', sR, sW, 1), salu('s_and_b32', sC, sW, 1)]
        P += [salu('s_mov_b32', sNL, hex(NLOG2E)), salu('s_mov_b32', sL, hex(LOG2E))]
        P += [salu('s_mul_i32', sT0, sJ, 288), salu('s_and_b32', sT1, sJ, 1), salu('s_lshl_b32', sT2, sT1, 5), salu('s_add_u32', sRowF, sT0, sT2),
              salu('s_lshl_b32', sT2, sT1, 8), salu('s_add_u32', sRowH, sT0, 256), salu('s_sub_u32', sRowH, sRowH, sT2),
              salu('s_lshl_b32', sColF, sRowF, 1), salu('s_lshl_b32', sColH, sRowH, 1)]
        P += [salu('s_lshl_b32', sMb, sW, 11), salu('s_add_u32', sMb, sMb, RING), salu('s_lshl_b32', sMx, sW, 12)]
        if g.stamps: g.early_part = True; P += [salu('s_lshl_b32', sT4, s(2), 10), salu('s_lshl_b32', sT0, sW, 8), salu('s_add_u32', sT4, sT4, sT0), salu('s_add_u32', sT4, sT4, WS_STAMP)]
        P += [valu('v_lshrrev_b32', t0, 3, vLane), salu('s_lshl_b32', sT0, sW, 3), valu('v_add_u32', t0, sT0, t0), valu('v_mul_u32_u24', t0, 9216, t0),
              valu('v_bfe_u32', t1, vLane, 4, 1), salu('s_lshl_b32', sT1, sC, 1), valu('v_or_b32', t1, sT1, t1), valu('v_bfe_u32', t2, vLane, 1, 2),
              valu('v_xor_b32', t1, t1, t2) if 's' not in g.dbg else valu('v_mov_b32', t1, t2), valu('v_lshlrev_b32', t1, 5, t1), valu('v_and_b32', t2, 1, vLane), valu('v_lshlrev_b32', t2, 4, t2),
              valu('v_add3_u32', vDmaF, t0, t1, t2)]
        dX0, dX1, rX0, rX1 = [v(T + i) for i in range(4)]
        P += [salu('s_lshl_b32', sT0, sM, 7), salu('s_lshl_b32', sT1, sW, 5), salu('s_add_u32', sT0, sT0, sT1), valu('v_lshrrev_b32', t0, 3, vLane),
              valu('v_add_u32', t0, sT0, t0), valu('v_mul_u32_u24', t0, 1152, t0), valu('v_lshrrev_b32', t1, 4, vLane), valu('v_and_b32', t2, 7, vLane),
              valu('v_xor_b32', t1, t1, t2), valu('v_lshlrev_b32', t1, 4, t1), valu('v_add_u32', dX0, t0, t1), valu('v_xor_b32', t1, 64, t1), valu('v_add_u32', dX1, t0, t1)]
        P += [raw('s_waitcnt lgkmcnt(0)', 'wait')]
        if g.stamps: P += [raw('s_mov_b32 s97, s72\ns_mov_b32 s96, s72', 'label'), raw('s_memrealtime s[74:75]\ns_waitcnt lgkmcnt(0)\ns_mov_b32 s95, s74', 'label')]
        if g.stamps: srd(P, sPART, 26, 64 << 20)
        P += [salu('s_and_b32', sPar, sJ, 1 if g.rot else 0), salu('s_mul_i32', sXA, sPar, 512), salu('s_mul_i32', sXB, sPar, -640), salu('s_mul_i32', sT0, sPar, 8*294912),
              salu('s_add_u32', sFA, sColF, sT0), salu('s_mul_i32', sT1, sPar, -10*294912), salu('s_add_u32', sFB, sColF, sT1)]
        srd(P, sX, 4, 2048*1152); srd(P, sW1, 14, 576*9216); srd(P, sW3, 16, 576*9216 + 1024, -1024)
        if g.ord: P += g.prefetch13(0) + g.prefetch13(1)[6:] + g.dmaX(0) + (g.dmaX(1) if g.ord > 1 else []) + (g.dmaX(2) if g.ord > 2 else [])
        else: P += g.dmaX(0) + g.dmaW(0) + g.dmaW(1)
        if 'f' in g.dbg: P += [raw('s_memrealtime s[74:75]\ns_waitcnt lgkmcnt(0)\ns_mov_b32 s97, s74\ns_waitcnt vmcnt(0)\ns_memrealtime s[74:75]\ns_waitcnt lgkmcnt(0)\ns_mov_b32 s95, s74', 'label')]
        if g.pf and not g.xpf and not g.ord: P += g.prefetch13(0) + g.prefetch13(1)[6:]
        if g.pf and g.xpf:
            P += [salu('s_and_b32', sT1, sJ, 1), salu('s_lshl_b32', sT1, sT1, 6), salu('s_lshl_b32', sT0, sM, 7), salu('s_add_u32', sT0, sT0, sT1), salu('s_lshl_b32', sT1, sW, 4),
                  salu('s_add_u32', sT0, sT0, sT1), valu('v_and_b32', t0, 15, vLane), valu('v_add_u32', t0, sT0, t0), valu('v_mul_u32_u24', t0, 1152, t0), valu('v_lshrrev_b32', t1, 4, vLane),
                  valu('v_lshl_add_u32', t0, t1, 7, t0), vload('buffer_load_dword', v(T + 22), t0, sX, 0, off=128, tag='pf')]
            g.xpf2 = vload('buffer_load_dword', v(T + 22), t0, sX, 0, off=640, tag='pf')
            P += g.prefetch13(0) + [g.xpf2]
        if g.cpf:
            ca = v(T + 14, 2); t0 = v(T + 23)
            P += [raw('s_getpc_b64 s[72:73]\nL_pc:', 'salu', [], [s(72, 2)]), salu('s_lshr_b32', sT0, s(2), 3), salu('s_lshl_b32', sT0, sT0, 2), salu('s_add_u32', sT0, sT0, sW),
                  salu('s_mul_i32', sT0, sT0, 5), valu('v_min_u32', t0, 4, vLane), valu('v_add_u32', t0, sT0, t0), valu('v_lshlrev_b32', t0, 7, t0),
                  raw(f'v_min_u32 {t0}, L_end-L_pc-4, {t0}', 'valu', [t0], [t0]), valu('v_and_b32', t0, -4, t0), valu('v_mov_b32', ca[1], s(73)),
                  I(f'v_add_co_u32 {ca[0]}, vcc, s72, {t0}', 'valu', [t0, s(72)], [ca[0], {('s', 'vcc')}]),
                  I(f'v_addc_co_u32 {ca[1]}, vcc, 0, {ca[1]}, vcc', 'valu', [ca[1], {('s', 'vcc')}], [ca[1], {('s', 'vcc')}]),
                  I(f'global_load_dword {v(T + 22)}, {ca}, off', 'vld', [ca], [v(T + 22)], tag='pf', dep=40)]
        t0 = v(T + 16)
        srd(P, sQ, 6, 576*3456); srd(P, sQ2, 6, 576*3456 - 12800, 12800); srd(P, sW2, 18, 4608*1152); srd(P, sWO, 10, 576*1152 + 2048, -2048)
        srd(P, sKV, 26, WS_KV_BYTES, WS_KV); srd(P, sPART, 26, 64 << 20); srd(P, sDBG, 24, 256); srd(P, sMI, 20, 1152)
        P += [glue(scmp('s_cmp_ge_u32', sW, 2), salu('s_cselect_b32', sWH[0], s(16), s(14)), salu('s_cselect_b32', sWH[1], s(17), s(15))),
              salu('s_mov_b32', sWH[2], 576*9216), salu('s_mov_b32', sWH[3], '0x20000')]
        P += [salu('s_mul_i32', sQA, sPar, 8*110592), salu('s_mul_i32', sQB, sPar, -10*110592), salu('s_mul_i32', sT0, sPar, 8*294912), salu('s_add_u32', sHA, sColH, sT0),
              salu('s_mul_i32', sT0, sPar, -10*294912), salu('s_add_u32', sHB, sColH, sT0)]
        P += [salu('s_lshl_b32', sT0, sM, 8), salu('s_lshl_b32', sT1, sJ, 2), salu('s_add_u32', sT0, sT0, sT1), salu('s_add_u32', sT0, sT0, WS_FL), salu('s_mov_b32', sT1, OOB),
              glue(scmp('s_cmp_eq_u32', sW, 0), salu('s_cselect_b32', sFl, sT0, sT1), salu('s_cselect_b32', sExp, '0xffff', 0)),
              valu('v_mov_b32', t0, sT1), valu('v_mov_b32', t1, sFl), valu('v_cmp_eq_u32', 'vcc', 0, vLane), valu('v_mov_b32', t2, 0), valu('v_cndmask_b32', t0, t0, t1, 'vcc'),
              vstore('buffer_store_dword', t2, t0, sPART, 0, mods='sc1', tag='arm')]
        gv = [v(T + 8 + i) for i in range(3)]
        P += [salu('s_lshl_b32', sT0, sW, 7), valu('v_lshlrev_b32', t0, 1, vLane), valu('v_add_u32', t0, sT0, t0), salu('s_lshl_b32', sT1, sPar, 9)]
        for i in range(3):
            P += [valu('v_add_u32', t1, 512*i, t0), valu('v_add_u32', t2, sT1, t1), valu('v_subrev_u32', t3, 1152, t2), valu('v_min_u32', t2, t2, t3)]
            if i == 2: P += [valu('v_cmp_gt_u32', 'vcc', 1152, t1), valu('v_cndmask_b32', t2, t1, t2, 'vcc')]
            P += [vload('buffer_load_ushort', gv[i], t2, sMI, 0)]
        if g.pf and not g.qlate: P += g.prefetchQ()
        if g.tlb:
            P += [valu('v_mov_b32', t1, 0), salu('s_mul_i32', sT0, sJ, 331776), vload('buffer_load_dword', v(T + 22), t1, sW2, sT0, tag='pf'), salu('s_mul_i32', sT0, sJ, 41472),
                  vload('buffer_load_dword', v(T + 22), t1, sWO, sT0, off=2048, tag='pf'), salu('s_mul_i32', sT0, sJ, 49152), vload('buffer_load_dword', v(T + 22), t1, sKV, sT0, tag='pf'),
                  vload('buffer_load_dword', v(T + 22), t1, sDBG, 0, tag='pf'), salu('s_mul_i32', sT0, sM, 144*16384), valu('v_and_b32', t1, 3, vLane), valu('v_mul_u32_u24', t1, 786432 - 256, t1),
                  vload('buffer_load_dword', v(T + 22), t1, sPART, sT0, tag='pf')]
        if g.ord: P += g.dmaW(0) + g.dmaW(1)
        P += (g.dmaX(1) if g.ord < 2 else []) + g.dmaW(2) + g.dmaW(3)
        if g.early: P += g.dmaX(2) + g.dmaW(4) + g.dmaW(5)
        P += [valu('v_lshrrev_b32', t0, 4, vLane), valu('v_bfe_u32', t1, vLane, 2, 2), valu('v_lshlrev_b32', t2, 11, t0), valu('v_lshl_add_u32', t2, t1, 7, t2),
              valu('v_and_b32', t3, 3, vLane), valu('v_lshl_add_u32', t2, t3, 3, t2), valu('v_lshrrev_b32', t1, 1, t1), valu('v_and_b32', t0, 1, t0),
              valu('v_lshl_or_b32', t1, t0, 1, t1), salu('s_lshl_b32', sT1, sC, 1), valu('v_xor_b32', t1, sT1, t1), valu('v_lshlrev_b32', t1, 5, t1),
              valu('v_add_u32', t2, RING, t2), valu('v_add_u32', vRdF0, t2, t1), valu('v_xor_b32', t1, 32, t1), valu('v_add_u32', vRdF1, t2, t1)]
        P += [valu('v_and_b32', t0, 15, vLane), valu('v_lshrrev_b32', t1, 1, t0), valu('v_lshrrev_b32', t2, 4, vLane), valu('v_xor_b32', t1, t1, t2),
              valu('v_lshlrev_b32', t1, 4, t1), salu('s_lshl_b32', sT0, sR, 13), valu('v_lshlrev_b32', t0, 7, t0), valu('v_add_u32', t0, sT0, t0),
              valu('v_add_u32', rX0, t0, t1), valu('v_xor_b32', t1, 64, t1), valu('v_add_u32', rX1, t0, t1)]
        P += [salu('s_lshl_b32', sT0, sR, 12), salu('s_lshl_b32', sT1, sC, 13), salu('s_add_u32', sT0, sT0, sT1), valu('v_lshlrev_b32', t0, 4, vLane), valu('v_add_u32', vHw, sT0, t0)]
        main = P; P = []
        P += g.qkv_addrs()
        P += [salu('s_lshl_b32', sT0, sW, 8), valu('v_lshrrev_b32', t0, 5, vLane), valu('v_lshlrev_b32', t0, 7, t0), valu('v_bfe_u32', t1, vLane, 3, 2),
              valu('v_lshl_add_u32', t0, t1, 5, t0), valu('v_bfe_u32', t1, vLane, 2, 1), valu('v_lshl_add_u32', t0, t1, 10, t0), valu('v_and_b32', t1, 3, vLane),
              valu('v_lshl_add_u32', t0, t1, 3, t0), salu('s_add_u32', sT0, sT0, GA), valu('v_add_u32', t0, sT0, t0)]
        g.late = P; P = main
        g.gate_late = []
        for i in range(3):
            d = v(T + 12, 2)
            g.gate_late += [valu('v_lshl_or_b32', d[0], gv[i], 16, gv[i]), valu('v_mov_b32', d[1], d[0]), dsw('ds_write_b64', t0, d, off=2048*i)]
        return P
    def prefetch13(g, ch, t0=v(T + 21), d=v(T + 22)):
        rw = 144//g.nsh
        P = [salu('s_mul_i32', sT0, sIdx, 4*rw), salu('s_mul_i32', sT1, sW, rw), salu('s_add_u32', sT0, sT0, sT1), valu('v_min_u32', t0, rw - 1, vLane),
             valu('v_add_u32', t0, sT0, t0), valu('v_mul_u32_u24', t0, 9216, t0)]
        if ch < 4: P += [salu('s_add_u32', sT0, sColF, 128*ch)]
        else: P += [salu('s_mov_b32', sT0, sColH)]
        P += [vload('buffer_load_dword', d, t0, sW1, sT0, tag='pf'), vload('buffer_load_dword', d, t0, sW3, sT0, off=1024, tag='pf')]
        return P
    def prefetchQ(g):
        t0 = v(T + 21); t1 = v(T + 23); d = v(T + 22); d2 = v(T + 20); rw = 144//g.nsh
        P = [salu('s_mul_i32', sT0, sIdx, 4*rw), salu('s_mul_i32', sT1, sW, rw), salu('s_add_u32', sT0, sT0, sT1), valu('v_min_u32', t0, 17 if g.split else 53, vLane),
             valu('v_mul_u32_u24', t1, 43, t0), valu('v_lshrrev_b32', t1, 8, t1), valu('v_mul_u32_u24', d2, 6, t1), valu('v_sub_u32', t0, t0, d2),
             valu('v_add_u32', t1, sT0, t1), valu('v_mul_u32_u24', t1, 3456, t1), valu('v_lshrrev_b32', d2, 1, t0), valu('v_mul_u32_u24', d2, 1152, d2), valu('v_add_u32', t1, t1, d2),
             valu('v_and_b32', t0, 1, t0), valu('v_mul_u32_u24', t0, 68, t0), valu('v_add_u32', t1, t1, t0), salu('s_mul_i32', sT0, sJ, 72)]
        if g.split:
            P[-1] = salu('s_mul_i32', sSp, sJ, 72)
            for i in range(3): P += ([salu('s_add_u32', sSp, sSp, 3*3456)] if i else []) + [vload('buffer_load_dword', d, t1, sQ, sSp, tag='pf')]
            return spaced(P, 'pf', g.split)
        for i in range(rw//9): P += ([salu('s_add_u32', sT0, sT0, 9*3456)] if i else []) + [vload('buffer_load_dword', d, t1, sQ, sT0, tag='pf')]
        return P
    def prefetch2(g, t0, t1, d):
        k = 16//g.nsh
        P = [salu('s_mul_i32', sT0, sIdx, 162*k), salu('s_mul_i32', sT1, sW, 41*k), salu('s_add_u32', sT0, sT0, sT1), valu('v_min_u32', t0, 13 if g.split else 40, vLane),
             valu('v_add_u32', t0, sT0, t0), valu('v_lshlrev_b32', t0, 7, t0), salu('s_mul_i32', sT0, sJ, 331776)]
        for i in range(3 if g.split else k): P += ([salu('s_add_u32', sT0, sT0, (14 if g.split else 41)*128)] if i else []) + [vload('buffer_load_dword', d, t0, sW2, sT0, tag='pf')]
        P += [salu('s_mul_i32', sT0, sIdx, 21*k), salu('s_mul_i32', sT1, sW, 6*k), salu('s_add_u32', sT0, sT0, sT1), valu('v_min_u32', t1, 6*k - 1, vLane),
              valu('v_add_u32', t1, sT0, t1), valu('v_lshlrev_b32', t1, 7, t1), salu('s_mul_i32', sT0, sJ, 41472),
              vload('buffer_load_dword', d, t1, sWO, sT0, off=2048, tag='pf')]
        return spaced(P, 'pf', g.split) if g.split else P
    def qkv_addrs(g):
        t0, t1, t2, t3, t4 = [v(T + 16 + i) for i in range(5)]
        g.dQ = v(T + 24); g.rQ = [v(T + 25), v(T + 26), v(T + 27), v(T + 30)]; g.rQ3b = v(T + 28); g.isG = v(T + 29)
        P = []
        P += [valu('v_lshrrev_b32', t0, 4, vLane), salu('s_lshl_b32', sT1, sC, 2), valu('v_or_b32', t1, sT1, t0), valu('v_lshlrev_b32', t1, 1, t1),
              valu('v_and_b32', t2, 15, vLane), valu('v_xor_b32', t1, t1, t2),
              salu('s_lshl_b32', sT0, sW, 3), valu('v_add_u32', t0, sT0, t0), valu('v_mul_u32_u24', t0, 3456, t0),
              valu('v_cmp_le_u32', 'vcc', 6, t1), valu('v_cndmask_b32', t2, 0, v(T+31), 'vcc') ]
        P.insert(0, valu('v_mov_b32', v(T+31), 1))
        P += [valu('v_cmp_le_u32', 'vcc', 11, t1), valu('v_cndmask_b32', t3, 0, v(T+31), 'vcc'),
              valu('v_mul_u32_u24', t4, 6, t2), valu('v_sub_u32', t1, t1, t4), valu('v_mul_u32_u24', t4, 5, t3), valu('v_sub_u32', t1, t1, t4),
              valu('v_min_u32', t1, 4, t1), valu('v_add_u32', t2, t2, t3), valu('v_mul_u32_u24', t2, 1152, t2), valu('v_add_u32', t0, t0, t2),
              valu('v_lshrrev_b32', t3, 2, t1), valu('v_lshlrev_b32', t1, 4, t1), valu('v_lshlrev_b32', t3, 3, t3), valu('v_sub_u32', t1, t1, t3),
              salu('s_mul_i32', sT0, sJ, 72), valu('v_add3_u32', g.dQ, t0, t1, sT0)]
        def B(seg, n, c):
            b = 32*c + 8*n
            if b >= 64: b += 8
            return [0, 96, 176][seg] + b
        tabs = [[(0, i) for i in range(4)], [(0, 4), (2, 0), (2, 1), (2, 2)], [(1, i) for i in range(4)], [(1, 4), (2, 3), (2, 4), (2, 4)]]
        P += [valu('v_lshrrev_b32', t0, 4, vLane), valu('v_bfe_u32', t1, vLane, 2, 2), valu('v_lshlrev_b32', t2, 11, t0), valu('v_lshl_add_u32', t2, t1, 8, t2),
              valu('v_add_u32', t2, RING, t2), valu('v_and_b32', t0, 1, t0), valu('v_lshl_or_b32', t0, t0, 2, t1), valu('v_lshlrev_b32', t0, 5, t0),
              valu('v_and_b32', t1, 3, vLane), valu('v_lshlrev_b32', t1, 3, t1)]
        for b in range(4):
            pk = [sum(B(sg, n, c) << (8*i) for i, (sg, n) in enumerate(tabs[b])) for c in range(2)]
            dst = g.rQ[b] if b < 3 else g.rQ3b
            P += [salu('s_mov_b32', sT0, hex(pk[1])), glue(scmp('s_cmp_eq_u32', sC, 0), salu('s_cselect_b32', sT0, hex(pk[0]), sT0))]
            P += [valu('v_lshrrev_b32', t3, t1, sT0) if False else valu('v_bfe_u32', t3, sT0, t1, 8), valu('v_xor_b32', t3, t3, t0), valu('v_add_u32', dst, t2, t3)]
        P += [valu('v_and_b32', t1, 3, vLane), valu('v_cmp_eq_u32', 'vcc', 3, t1), valu('v_lshrrev_b32', t3, 2, vLane), valu('v_lshlrev_b32', t3, 3, t3),
              valu('v_add_u32', t3, GA, t3), valu('v_cndmask_b32', g.rQ3b, g.rQ3b, t3, 'vcc'), valu('v_cndmask_b32', g.isG, 0, v(T+31), 'vcc')]
        return P
    def dmaX(g, d):
        dX = [v(T), v(T + 1)]
        P = [salu('s_add_u32', 'm0', sMx, (d % 4)*16384)]
        for aa in range(4):
            P += [salu('s_add_u32', sOffX, sXA if d < 5 else sXB, d*128 + aa*8192), dma(dX[aa & 1], sX, sOffX, off=aa*1024, tag=('x', d))]
        return P
    def mkSA(g):
        n = 36 - g.lead; SA = []; a_ = b_ = 0
        for p in range(36):
            if a_ < 18 and (p >= n - 1 or a_*n <= p*18 or b_ >= a_): SA.append((0, a_)); a_ += 1
            else: SA.append((1, b_)); b_ += 1
        g.SA = SA; g.U = {ks: p for p, (ch, ks) in enumerate(SA) if ch == 0}
    def dmaW(g, Gk):
        ph, ks = divmod(Gk, 18)
        m0 = salu('s_add_u32', 'm0', sMb, slot(Gk))
        if Gk >= 90:
            i = Gk - 90
            return [m0, salu('s_add_u32', sOff, sHA if i < 5 else sHB, 2*i*32*9216), dma(g.dH0, sWH, sOff, tag=('w', Gk)), dma(g.dH1, sWH, sOff, off=1024, tag=('w', Gk))]
        if ph == 2:
            return [m0, salu('s_add_u32', sOff, sQA if ks < 10 else sQB, ks*32*3456), dma(g.dQ, sQ, sOff, tag=('w', Gk)), dma(g.dQ, sQ2, sOff, off=1024, tag=('w', Gk))]
        ch = [0, 1, None, 2, 3][ph]
        if Gk < 36: ch, ks = g.SA[Gk]
        return [m0, salu('s_add_u32', sOff, sFA if ks < 10 else sFB, ks*32*9216 + ch*128), dma(vDmaF, sW1, sOff, tag=('w', Gk)), dma(vDmaF, sW3, sOff, off=1024, tag=('w', Gk))]
    def wfrag(g, Gk, fi): return v(WF + (Gk % 2)*16 + fi*4, 4)
    def readsW(g, Gk):
        ph = Gk // 18; R_ = []
        for fi in range(4):
            f = g.wfrag(Gk, fi); pre = []
            if Gk >= 90: ad = g.rH; o = slot(Gk) + (fi >> 1)*1024 + (fi & 1)*4096; zo = 256
            elif ph == 2:
                ad = g.rQ[fi]; o = slot(Gk); zo = 1024
                if fi == 3:
                    ks = Gk - 36; c = (ks >> 3)*2048 + (ks & 7)*128 - slot(Gk)
                    pre = [salu('s_mov_b32', sT3, c), valu('v_mad_i32_i24', ad, g.isG, sT3, g.rQ3b)]
            else: ad = [vRdF0, vRdF1][fi >> 1]; o = slot(Gk) + (fi & 1)*1024; zo = 512
            R_.append((pre, dsr('ds_read_b64_tr_b16', f.sub(0, 2), ad, o), dsr('ds_read_b64_tr_b16', f.sub(2, 2), ad, o + zo)))
        return R_
    def readsX(g, ks):
        return [dsr('ds_read_b128', xf(ks, tb), v(T + 2 + (ks & 1)), ((ks >> 1) % 4)*16384 + tb*2048, tag=('x', ks)) for tb in range(4)]
    def accq(g, st, fi, tb): return v(ACC[st] + (fi*4 + tb)*4, 4)
    def fixed1(g):
        F = {}; ad = lambda i, x: F.setdefault(i, []).extend(x)
        g.pre_reads = []
        g.xiss = {}; g.xbusy = set()
        if g.lazy:
            g.xiss = {1: 2, 3: 3}; g.xbusy = {0, 2, 4}
            for i, Gk in enumerate((4, 5, 6)):
                m0, so, d0, d1 = g.dmaW(Gk)
                if i == 0: g.pre_reads += [m0, so]
                else: ad(3*i - 1, [m0, so])
                ad(3*i, [d0]); ad(3*i + 1 + (i < 2), [d1]) if False else ad(3*i + 1, [d1])
        for d in range(4, 9):
            last = g.U[2*(d - 4) + 1] - 1; Gb = last + (last % 2)
            while Gb + 1 in g.xiss: Gb += 2
            g.xiss[Gb + 1] = d; g.xbusy.add(Gb + 2)
            assert Gb + 2 < g.U[2*d] - 3, (d, Gb, g.U)
        for Gk in range(99):
            b = 16*Gk
            for fi, (pre, r0, r1) in enumerate(g.readsW(Gk)):
                for z, r in enumerate((r0, r1)):
                    p = b - 16 + 4*fi - 5 + 2*z
                    if p < 0: g.pre_reads.append(r)
                    else: ad(p, [r])
                if pre: ad(b - 16 + 5, pre)
            xd = Gk in g.xbusy
            if Gk % 2 == 0:
                tags = [('w', Gk + 2), ('w', Gk + 3)] + [('x', ks//2) for ks, u in g.U.items() if u in (Gk + 2, Gk + 3)]
                wx = [wait_rd(('x', ks)) for ks, u in g.U.items() if u == Gk + 1]
                ad(b + 9, [wait_vm(*tags)] + wx); ad(b + 10, [barrier()])
                if g.fine0 is not None and g.fine0 <= Gk < g.fine0 + 36:
                    ad(b + 8, [raw(f"s_memrealtime s[96:97]\ns_waitcnt lgkmcnt(0)\nv_writelane_b32 v4, s96, {(Gk - g.fine0)//2}" if False else f"s_memrealtime s[96:97]\ns_waitcnt lgkmcnt(0)\nv_mov_b32 v6, s96\nv_mov_b32 v7, s96\nv_mov_b32 v5, s99\nds_write_b64 v5, v[6:7] offset:{8*((Gk - g.fine0)//2)}", 'label')]) if False else None
                    ad(b + 8, [raw(f"s_memrealtime s[96:97]\ns_waitcnt lgkmcnt(0)\nv_writelane_b32 {g.vF0}, s96, {(Gk - g.fine0)//2}", 'label')])
                if Gk + 7 <= 98:
                    m0, so, d0, d1 = g.dmaW(Gk + 7)
                    if xd: ad(b + 11, [m0, so])
                    else: ad(b + 7, [m0]); ad(b + 11, [so])
                    ad(b + 12, [d0]); ad(b + 14, [d1])
            elif Gk + 7 <= 98:
                xr = Gk < 36
                m0, so, d0, d1 = g.dmaW(Gk + 7)
                ad(b + 1, [m0]); ad(b + 3, [so]); ad(b + (8 if xr else 4), [d0]); ad(b + (10 if xr else 8), [d1])
            if Gk in g.xiss:
                D = g.dmaX(g.xiss[Gk])
                ad(b + 11, D[0:2]); ad(b + 12, D[2:3]); ad(b + 13, D[3:4]); ad(b + 14, D[4:5]); ad(b + 15, D[5:6]); ad(b + 16, D[6:7]); ad(b + 16 + 7, D[7:8]); ad(b + 16 + 8, D[8:9])
        for ks, u in g.U.items():
            for tb, x in enumerate(g.readsX(ks)):
                if u == 0: g.pre_reads.append(x)
                else: ad(16*(u - 1) + 2*tb, [x])
        g.F1 = F
    def phase1(g, ph, streams, extra={}):
        G0 = ph*18; nk = {0: 36, 5: 9}.get(ph, 18); st = ph % 2; mf = []
        for k in range(nk):
            for fi in range(4):
                for q in range(4):
                    tb = q if fi % 2 == 0 else 3 - q
                    if ph == 5: ks = 2*k + (fi >> 1); d = g.accq(st, fi & 1, tb); first = (k == 0 and fi < 2)
                    elif ph == 0: st, ks = g.SA[k]; d = g.accq(st, fi, tb); first = (ks == 0)
                    else: ks = k; d = g.accq(st, fi, tb); first = (k == 0)
                    mf.append(mfma(d, g.wfrag(G0 + k, fi), xf(ks, tb), 0 if first else None))
        fx = {i - 16*G0: list(x) for i, x in g.F1.items() if 16*G0 <= i < 16*(G0 + nk)}
        for i, x in extra.items(): fx[i] = x + fx.get(i, [])
        g.rep.append(f"P{ph}")
        return pack(mf, fx, streams, rep=g.rep)
    def silu(g, st, ch):
        P = []; n = 0
        half = (ch == 4)
        for tb in range(4):
            hf = vHf[tb % 2]
            for e in range(1 if half else 2):
                gq = g.accq(st, 2*e, tb); uq = g.accq(st, 2*e + 1, tb); t = vE[4*(n % 2):4*(n % 2) + 4]; n += 1
                P += [valu('v_mul_f32', t[i], sNL, gq[i]) for i in range(4)]
                P += [valu('v_exp_f32', t[0], t[0]), valu('v_mul_f32', gq[0], gq[0], uq[0]), valu('v_exp_f32', t[1], t[1]), valu('v_mul_f32', gq[1], gq[1], uq[1]),
                      valu('v_exp_f32', t[2], t[2]), valu('v_mul_f32', gq[2], gq[2], uq[2]), valu('v_exp_f32', t[3], t[3]), valu('v_mul_f32', gq[3], gq[3], uq[3])]
                P += [valu('v_add_f32', t[i], 1.0, t[i]) for i in range(4)]
                P += [valu('v_rcp_f32', t[i], t[i]) for i in range(4)]
                P += [valu('v_mul_f32', gq[i], gq[i], t[i]) for i in range(4)]
                P += [valu('v_cvt_pk_bf16_f32', hf[2*e], gq[0], gq[1]), valu('v_cvt_pk_bf16_f32', hf[2*e + 1], gq[2], gq[3])]
                if not half: P += [dsw('ds_write_b64', vHw, hf.sub(2*e, 2), ch*16384 + tb*1024 + 8*e)]
            if half: P += [dsw('ds_write_b64', g.vHh, hf.sub(0, 2), tb*1024)]
            for e in range(0 if half else 2): pass
        return P
    def phiA_loads(g):
        t0, t1, t2 = vJ
        P = []; srd(P, sMI, 8, 32*648)
        P += [salu('s_lshl_b32', sT0, sJ, 1), salu('s_add_u32', sT0, sT0, sC), salu('s_mul_i32', sT0, sT0, 648), salu('s_mul_i32', sT1, sC, 72), salu('s_sub_u32', sT0, sT0, sT1),
              salu('s_mov_b32', sT2, OOB)]
        for ob in range(2):
            F = vPhiA[ob]
            P += [valu('v_and_b32', t2, 15, vLane)]
            if ob == 1: P += [valu('v_and_b32', t0, 11, t2), valu('v_cmp_eq_u32', 'vcc', 0, t0), valu('v_lshrrev_b32', t2, 2, t2), valu('v_add_u32', t2, 16, t2),
                              valu('v_mov_b32', t0, sT2), valu('v_lshlrev_b32', t2, 1, t2), valu('v_cndmask_b32', t2, t0, t2, 'vcc')]
            else: P += [valu('v_lshlrev_b32', t2, 1, t2)]
            P += [valu('v_add_u32', t2, sT0, t2), valu('v_lshrrev_b32', t0, 4, vLane), valu('v_cmp_eq_u32', 'vcc', 0, t0), valu('v_mul_u32_u24', t0, 144, t0),
                  valu('v_add_u32', t0, t0, t2), valu('v_mov_b32', t1, sT2), valu('v_add_u32', t2, 576, t2), valu('v_cndmask_b32', t1, t1, t2, 'vcc')]
            gl = glue(scmp('s_cmp_eq_u32', sC, 1), salu('s_cselect_b64', sMask, 'vcc', 0)); gl.rd |= {('s', 'vcc')}
            P += [gl, valu('v_mov_b32', t2, sT2), valu('v_cndmask_b32', t2, t0, t2, sMask)]
            for e in range(4): P += [vload('buffer_load_ushort', v(T + 8*ob + e), t2 if e < 2 else t0, sMI, 0, off=36*e)]
            P += [glue(scmp('s_cmp_eq_u32', sC, 0), salu('s_cselect_b32', sT1, sT2, 0)), valu('v_max_u32', t0, sT1, t1)]
            for e in range(4): P += [vload('buffer_load_ushort', v(T + 8*ob + 4 + e), t1 if e < 2 else t0, sMI, 0, off=36*e)]
        pk = [valu('v_lshl_or_b32', vPhiA[i >> 2][i & 3], v(T + 2*i + 1), 16, v(T + 2*i)) for i in range(8)]
        return P, pk
    def softmax(g, x, tmp, outq, mx, mn, s0, s1):
        P = []
        P += [valu('v_max3_f32', mx, x[0], x[1], x[2]), valu('v_min3_f32', mn, x[0], x[1], x[2])]
        for i in range(3, 17, 2): P += [valu('v_max3_f32', mx, mx, x[i], x[i+1]), valu('v_min3_f32', mn, mn, x[i], x[i+1])]
        P += [valu('v_max_f32', mx, mx, x[17]), valu('v_min_f32', mn, mn, x[17]), valu('v_mul_f32', mx, sNL, mx), valu('v_mul_f32', mn, sL, mn)]
        for i in range(18): P += [valu('v_fma_f32', tmp[i], x[i], sNL, mn), valu('v_fma_f32', x[i], x[i], sL, mx)]
        for i in range(18):
            P += [valu('v_exp_f32', x[i], x[i]), valu('v_exp_f32', tmp[i], tmp[i])]
            if i == 2: P += [valu('v_add_f32', s0, x[0], x[1]), valu('v_add_f32', s1, tmp[0], tmp[1])]
            if i > 2: P += [valu('v_add_f32', s0, s0, x[i-1]), valu('v_add_f32', s1, s1, tmp[i-1])]
        P += [valu('v_add_f32', s0, s0, x[17]), valu('v_add_f32', s1, s1, tmp[17]), valu('v_rcp_f32', s0, s0), valu('v_rcp_f32', s1, s1)]
        for i in range(18): P += [valu('v_mul_f32', x[i], x[i], s0), valu('v_mul_f32', tmp[i], tmp[i], s1)]
        P += [valu('v_cvt_pk_bf16_f32', outq[8], x[16], x[17])]
        for i in range(8): P += [valu('v_cvt_pk_bf16_f32', outq[i], x[2*i], x[2*i+1])]
        for i in range(9): P += [valu('v_cvt_pk_bf16_f32', outq[9 + i], tmp[2*i], tmp[2*i+1])]
        return P
    def attn_post(g):
        t0, t1, t2 = vJ; A = []
        blk = lambda b, tb: g.accq(0, b, tb)
        A += [salu('s_lshl_b32', sT0, sR, 8), salu('s_add_u32', sT0, sT0, LOGIT - 192), valu('v_lshlrev_b32', t1, 2, vLane), valu('v_add_u32', t0, sT0, t1),
              valu('v_add_u32', t1, DUMMY, t1), valu('v_cmp_le_u32', 'vcc', 48, vLane), valu('v_cndmask_b32', t0, t1, t0, 'vcc')]
        A += [dsw('ds_write_b32', t0, blk(3, tb)[0], 64*tb) for tb in range(4)]
        Pq = [v(T + 8*tb, 4) for tb in range(4)]; Pk = [v(T + 8*tb + 4, 4) for tb in range(4)]
        A += [salu('s_mul_i32', sT0, sC, 128*72), salu('s_mul_i32', sT1, sR, 64*72), salu('s_add_u32', sT0, sT0, sT1), salu('s_add_u32', sT0, sT0, VV),
              salu('s_lshl_b32', sT1, sC, 2), salu('s_sub_u32', sT1, sT0, sT1),
              valu('v_and_b32', t0, 15, vLane), valu('v_mul_u32_u24', t0, 72, t0), valu('v_lshrrev_b32', t1, 4, vLane), valu('v_lshl_add_u32', t1, t1, 3, t0),
              valu('v_add_u32', t1, sT1, t1), valu('v_add_u32', t0, sT0, t0), valu('v_add_u32', t2, 24, t1), valu('v_add_u32', vE[0], 48, t0),
              valu('v_cmp_gt_u32', 'vcc', 16, vLane), valu('v_cndmask_b32', t1, t1, vE[0], 'vcc'), valu('v_cndmask_b32', t2, t2, vE[0], 'vcc'),
              valu('v_cmp_le_u32', 'vcc', 48, vLane), valu('v_mov_b32', vE[1], '0x3f80'), valu('v_cndmask_b32', t2, t2, vE[0], 'vcc')]
        for tb in range(4):
            for b in range(4):
                d = (Pq if b < 2 else Pk)[tb]; q = blk(b, tb)
                A += [valu('v_cvt_pk_bf16_f32', d[2*(b & 1)], q[0], q[1]), valu('v_cvt_pk_bf16_f32', d[2*(b & 1) + 1], q[2], q[3])]
            if tb > 0: A += [valu('v_add_u32', t1, 1152, t1), valu('v_add_u32', t2, 1152, t2)]
            A += [dsw2(t1, Pq[tb][2], Pq[tb][3], 0, 1), dsw2(t2, Pk[tb][2], Pk[tb][3], 0, 1), dsw('ds_write_b32', t0, vE[1], 1152*tb + 44)]
            A += [mfma(blk(2, tb), vPhiA[0], Pk[tb], 0), mfma(blk(3, tb), vPhiA[1], Pk[tb], 0), mfma(blk(0, tb), vPhiA[0], Pq[tb], 0), mfma(blk(1, tb), vPhiA[1], Pq[tb], 0)]
        def transp(b, r):
            R_ = [blk(b, tb)[r] for tb in range(4)]
            return [perm('v_permlane32_swap_b32', R_[0], R_[2]), perm('v_permlane32_swap_b32', R_[1], R_[3]), perm('v_permlane16_swap_b32', R_[0], R_[1]), perm('v_permlane16_swap_b32', R_[2], R_[3])]
        segs = []
        for (b0, base, who) in ((2, PHIK, 'k'), (0, PHIQ, 'q')):
            Sg = []
            tr = [transp(b0, r) for r in range(4)] + [transp(b0 + 1, 0)]
            for i in range(4):
                for x in tr: Sg.append(x[i])
            x = [blk(b0, i >> 2)[i & 3] for i in range(16)] + [blk(b0 + 1, 0)[0], blk(b0 + 1, 1)[0]]
            tmp = [v(T + i) for i in range(18)]
            oq = [blk(b0 + 1, 2), blk(b0 + 1, 3), v(T + 20, 4), blk(b0 + 1, 0), blk(b0 + 1, 1)]
            outq = [oq[i >> 2][i & 3] for i in range(18)]
            Sg += g.softmax(x, tmp, outq, vE[0], vE[1], vE[2], vE[3])
            ta_ = vE[5]
            if who == 'q': Sg += [salu('s_mul_i32', sT3, sW, 5120), salu('s_add_u32', sT3, sT3, base)]
            else: Sg += [salu('s_lshl_b32', sT3, sC, 1), salu('s_add_u32', sT3, sT3, sR), salu('s_mul_i32', sT3, sT3, 5120), salu('s_add_u32', sT3, sT3, base)]
            Sg += [valu('v_mul_u32_u24', ta_, 80, vLane), valu('v_add_u32', ta_, sT3, ta_)]
            Sg += [dsw('ds_write_b64', ta_, oq[i >> 1].sub(2*(i & 1), 2), 8*i) for i in range(9)]
            segs.append(Sg)
        A += segs[0]; Q = segs[1]
        B = []
        ta, tb_, tv = vHf[0][0], vHf[0][1], vHf[0][2]
        B += [valu('v_lshrrev_b32', t0, 4, vLane), valu('v_bfe_u32', t1, vLane, 2, 2), valu('v_lshl_add_u32', t0, t0, 3, t1),
              valu('v_and_b32', t1, 3, vLane), salu('s_mul_i32', sT0, sC, 10240), salu('s_add_u32', sT0, sT0, PHIK), valu('v_mul_u32_u24', t2, 80, t0),
              valu('v_add_u32', tb_, sT0, t2), valu('v_lshl_add_u32', ta, t1, 4, tb_),
              salu('s_mul_i32', sT0, sC, 128*72), salu('s_add_u32', sT0, sT0, VV + 8), salu('s_lshl_b32', sT1, sR, 5), salu('s_add_u32', sT0, sT0, sT1),
              salu('s_sub_u32', sT1, 1, sR), valu('v_mul_u32_u24', t1, sT1, t1), valu('v_mul_u32_u24', t0, 72, t0), valu('v_lshl_add_u32', t0, t1, 3, t0), valu('v_add_u32', tv, sT0, t0)]
        D = [blk(2, 0), blk(2, 1), blk(2, 2)]
        fr = lambda ks, i: (v(ACC[0] + 48 + 4*i, 4) if ks % 2 == 0 else v(T + 24 + 4*(i & 1), 4) if i < 2 else v(ACC[0] + 44, 4) if i == 2 else vHf[1])
        def rd(ks):
            X = []
            for z in range(2):
                o = (32*ks + 4*z)
                X += [dsr('ds_read_b64_tr_b16', fr(ks, 3).sub(2*z, 2), tv, o*72), dsr('ds_read_b64_tr_b16', fr(ks, 0).sub(2*z, 2), ta, o*80),
                      dsr('ds_read_b64_tr_b16', fr(ks, 1).sub(2*z, 2), ta, o*80 + 8), dsr('ds_read_b64_tr_b16', fr(ks, 2).sub(2*z, 2), tb_, o*80 + 64)]
            return X
        mm = lambda ks: [mfma(D[i], fr(ks, i), fr(ks, 3), 0 if ks == 0 else None) for i in range(3)]
        B += rd(0) + rd(1) + mm(0) + rd(2) + mm(1) + rd(3) + mm(2) + mm(3)
        C = []
        q1, q2_ = vHf[1], v(ACC[0] + 44, 4)
        C += [salu('s_lshl_b32', sT0, sJ, 1), salu('s_add_u32', sT0, sT0, sC), salu('s_lshl_b32', sT0, sT0, 4), salu('s_add_u32', sT0, sT0, sM), salu('s_mul_i32', sT0, sT0, 1536),
              salu('s_mov_b32', sT2, OOB), glue(scmp('s_cmp_eq_u32', sR, 1), salu('s_cselect_b64', sMask, -1, 0)),
              valu('v_lshlrev_b32', t0, 4, vLane), valu('v_and_b32', t1, 15, vLane), valu('v_lshrrev_b32', t2, 4, vLane), valu('v_cmp_gt_u32', 'vcc', 3, t1),
              valu('v_mul_u32_u24', t2, 3, t2), valu('v_add_u32', t1, t1, t2), valu('v_lshlrev_b32', t1, 4, t1), valu('v_add_u32', t1, 1024 + 256, t1), valu('v_mov_b32', t2, sT2),
              valu('v_cndmask_b32', t1, t2, t1, 'vcc'), valu('v_cndmask_b32', ta, t0, t1, sMask),
              valu('v_add_u32', t0, 1024, t0), valu('v_add_u32', t1, 192, t1), valu('v_cndmask_b32', t0, t0, t1, sMask), valu('v_cmp_gt_u32', 'vcc', 16, vLane), valu('v_cndmask_b32', tb_, t2, t0, 'vcc')]
        cv = lambda d, x, y: valu('v_cvt_pk_bf16_f32', d, x, y)
        C += [cv(q1[0], D[0][0], D[0][1]), cv(q1[1], D[0][2], D[0][3]), cv(q1[2], D[1][0], D[1][1]), cv(q1[3], D[1][2], D[1][3]),
              cv(q2_[0], D[2][0], D[2][1]), cv(q2_[1], D[2][2], D[2][3]), cv(q2_[2], D[2][0], D[2][1]), cv(q2_[3], D[2][2], D[2][3]),
              vstore('buffer_store_dwordx4', q1, ta, sKV, sT0, mods='sc1', tag='kv'), vstore('buffer_store_dwordx4', q2_, tb_, sKV, sT0, mods='sc1', tag='kv')]
        return A, Q, B, C
    def flag(g, t0, t1):
        return [salu('s_lshl_b32', sT0, sJ, 4), salu('s_mov_b32', sT1, OOB), glue(scmp('s_cmp_eq_u32', sW, 0), salu('s_cselect_b32', sT0, sT0, sT1)),
                valu('v_mov_b32', t0, sT1), valu('v_cmp_eq_u32', 'vcc', 0, vLane), valu('v_mov_b32', t1, sT0), valu('v_cndmask_b32', t0, t0, t1, 'vcc'), valu('v_mov_b32', t1, 1),
                I(f"buffer_atomic_add {t1}, {t0}, {sDBG}, 0 offen", 'vst', [t0, t1, sDBG], [], tag='flag', dep=set())]
    def half_addrs(g):
        t0, t1, t2 = vJ
        g.dH0, g.dH1, g.rH, g.vHh = v(8), v(9), v(10), v(11)
        P = [salu('s_lshl_b32', sT0, sC, 4), valu('v_lshrrev_b32', t0, 2, vLane), valu('v_add_u32', t0, sT0, t0), valu('v_mul_u32_u24', t0, 9216, t0),
             valu('v_bfe_u32', t1, vLane, 1, 1), valu('v_lshrrev_b32', t2, 5, vLane), valu('v_xor_b32', t1, t1, t2), valu('v_lshl_add_u32', t0, t1, 5, t0),
             valu('v_and_b32', t1, 1, vLane), valu('v_lshl_add_u32', g.dH0, t1, 4, t0), valu('v_add_u32', g.dH1, 32*9216 - 1024, g.dH0),
             valu('v_lshrrev_b32', t0, 5, vLane), valu('v_lshlrev_b32', t0, 11, t0), valu('v_bfe_u32', t1, vLane, 4, 1), valu('v_lshl_add_u32', t0, t1, 9, t0),
             valu('v_xor_b32', t1, sC, t1), valu('v_lshl_add_u32', t0, t1, 5, t0), valu('v_bfe_u32', t1, vLane, 2, 2), valu('v_lshl_add_u32', t0, t1, 6, t0),
             valu('v_and_b32', t1, 3, vLane), valu('v_lshl_add_u32', t0, t1, 3, t0), valu('v_add_u32', g.rH, RING, t0),
             salu('s_lshl_b32', sT0, sR, 12), salu('s_lshl_b32', sT1, sC, 3), salu('s_add_u32', sT0, sT0, sT1), salu('s_add_u32', sT0, sT0, 65536),
             valu('v_lshlrev_b32', t0, 4, vLane), valu('v_add_u32', g.vHh, sT0, t0)]
        return P

    def check(g, name, res, addr, srd_, thr):
        g.tails.append("\n".join([f"L_{name}_spin:", "s_mov_b32 s4, 0x40000", f"L_{name}_s2:", f"buffer_load_dword {res}, {addr}, {srd_}, 0 offen sc1", "s_waitcnt vmcnt(0)",
                          f"v_cmp_le_u32 vcc, {thr}, {res}", "s_sub_u32 s4, s4, 1", "s_cmp_eq_u32 s4, 0", f"s_cbranch_scc1 L_{name}_ok", "s_nop 1",
                          f"s_cmp_eq_u32 vcc_lo, {sExp}", f"s_cbranch_scc0 L_{name}_s2", f"s_branch L_{name}_ok"]))
        return [valu('v_cmp_le_u32', 'vcc', thr, res),
                raw(f"s_cmp_eq_u32 vcc_lo, {sExp}\ns_cbranch_scc0 L_{name}_spin\nL_{name}_ok:", 'salu', [{('s', 'vcc')}, res, addr], [res], cost=2)]
    def kv_gather(g):
        t0, t1, t2 = vJ
        poll0 = [salu('s_mov_b32', sT1, OOB), glue(scmp('s_cmp_eq_u32', sW, 0), salu('s_cselect_b32', sT0, 0, sT1)), valu('v_lshlrev_b32', t0, 4, vLane), valu('v_max_u32', t0, sT0, t0),
                 vload('buffer_load_dword', t1, t0, sDBG, 0, mods='sc1', lat=30)]
        poll1 = g.check('kv', t1, t0, sDBG, 16)
        buf = [v(T + 4*i, 4) for i in range(6)] + [v(232 + 4*i, 4) for i in range(6)]
        g.rA = v(228, 4)
        e0, e1, e2 = v(224), v(225), v(226)
        sel = [valu('v_and_b32', e0, 1, vLane), valu('v_lshlrev_b32', e0, 4, e0), valu('v_mov_b32', e2, '0x3f80'), valu('v_lshlrev_b32', e0, e0, e2), valu('v_and_b32', e1, 14, vLane)]
        for d in range(4): sel += [valu('v_cmp_eq_u32', 'vcc', 4*d, e1), valu('v_cndmask_b32', g.rA[d], 0, e0, 'vcc')]
        L1 = [salu('s_lshl_b32', sT0, sJ, 1), salu('s_add_u32', sT0, sT0, sC), salu('s_mul_i32', sT0, sT0, 24576), salu('s_mul_i32', sT1, sR, 768), salu('s_add_u32', sT0, sT0, sT1),
              valu('v_lshrrev_b32', t0, 4, vLane), valu('v_mul_u32_u24', t0, 1536, t0), valu('v_and_b32', t1, 15, vLane), valu('v_lshl_add_u32', t0, t1, 4, t0)]
        for i in range(4):
            if i: L1 += [salu('s_add_u32', sT0, sT0, 6144)]
            L1 += [vload('buffer_load_dwordx4', buf[4*gr + i], t0, sKV, sT0, off=256*gr, mods='sc1', lat=g.kvlat) for gr in range(3)]
        D = [v(224, 4), buf[0], buf[1]]
        L2 = [salu('s_mul_i32', sT0, sC, 1536), salu('s_mul_i32', sT1, sR, 768), salu('s_add_u32', sT0, sT0, sT1), salu('s_add_u32', sT0, sT0, KVE),
              valu('v_lshrrev_b32', t2, 4, vLane), valu('v_lshlrev_b32', t2, 2, t2), valu('v_lshl_add_u32', t2, t1, 4, t2), valu('v_add_u32', t2, sT0, t2)]
        for gr in range(3): L2 += [mfma(D[gr], g.rA, buf[4*gr + i], 0 if i == 0 else None) for i in range(4)]
        for gr in range(3): L2 += [valu('v_cvt_pk_bf16_f32', D[gr][0], D[gr][0], D[gr][1]), dsw('ds_write_b32', t2, D[gr][0], 256*gr)]
        return poll0, poll1, sel, L1, L2
    def o_part(g):
        t0, t1, t2 = vJ; P = []
        R_ = v(104, 12); A01, A11, A00, A10 = R_.sub(0, 4), R_.sub(2, 4), R_.sub(4, 4), R_.sub(8, 4)
        q = [v(T + 4*i, 4) for i in range(6)] + [v(96, 4), v(100, 4)]
        P += [salu('s_mul_i32', sT0, sC, 1536), salu('s_add_u32', sT0, sT0, KVE), valu('v_lshlrev_b32', t0, 4, vLane), valu('v_add_u32', t0, sT0, t0), dsr('ds_read_b128', A00, t0, 0),
              valu('v_and_b32', t0, 3, vLane), valu('v_min_u32', t0, 2, t0), valu('v_lshrrev_b32', t1, 4, vLane), valu('v_mul_u32_u24', t1, 3, t1), valu('v_add_u32', t1, t1, t0),
              valu('v_lshlrev_b32', t1, 4, t1), valu('v_add_u32', t1, sT0, t1), valu('v_lshlrev_b32', t0, 4, t0), valu('v_add_u32', t0, sT0, t0),
              valu('v_and_b32', t2, 15, vLane), valu('v_lshlrev_b32', t2, 4, t2), valu('v_add_u32', t2, sT0, t2),
              dsr('ds_read_b128', A10, t1, 1024 + 256), dsr('ds_read_b64', A01.sub(0, 2), t2, 1024), dsr('ds_read_b64', A11.sub(0, 2), t0, 1024 + 448)]
        E = [v(236 + i) for i in range(4)]; Bq = [a(176 + 4*i, 4) for i in range(4)]; B1 = [v(240 + 4*i, 4) for i in range(4)]
        P += [salu('s_lshl_b32', sT0, sR, 8), salu('s_add_u32', sT0, sT0, LOGIT), valu('v_and_b32', t0, 15, vLane), valu('v_lshlrev_b32', t1, 2, t0), valu('v_add_u32', t1, sT0, t1)]
        P += [dsr('ds_read_b32', E[tb], t1, 64*tb) for tb in range(4)]
        P += [salu('s_mul_i32', sT0, sW, 5120), salu('s_add_u32', sT0, sT0, PHIQ), valu('v_mul_u32_u24', t0, 80, t0), valu('v_add_u32', t0, sT0, t0),
              valu('v_lshrrev_b32', t1, 4, vLane), valu('v_lshl_add_u32', t1, t1, 4, t0)]
        for tb in range(4): P += [dsr('ds_read_b128', Bq[tb], t1, 1280*tb), dsr('ds_read_b64', B1[tb].sub(0, 2), t0, 1280*tb + 64)]
        cv = lambda d, x: [valu('v_cvt_pk_bf16_f32', d[0], x[0], x[1]), valu('v_cvt_pk_bf16_f32', d[1], x[2], x[3])]
        P += [valu('v_cmp_gt_u32', 'vcc', 16, vLane), salu('s_mov_b32', sT2, '0x42700000')]
        for tb in range(4):
            P += [valu('v_cndmask_b32', B1[tb][0], 0, B1[tb][0], 'vcc'), valu('v_cndmask_b32', B1[tb][1], 0, B1[tb][1], 'vcc'), valu('v_mov_b32', B1[tb][2], 0), valu('v_mov_b32', B1[tb][3], 0),
                  valu('v_min_f32', E[tb], sT2, E[tb]), valu('v_mul_f32', E[tb], sL, E[tb]), valu('v_exp_f32', E[tb], E[tb])]
        o0 = [q[2*tb] for tb in range(4)]; o1 = [q[2*tb + 1] for tb in range(4)]
        for tb in range(4): P += [mfma(o0[tb], A00, Bq[tb], 0), mfma(o1[tb], A10, Bq[tb], 0)]
        for tb in range(4): P += [mfma(o0[tb], A01, B1[tb]), mfma(o1[tb], A11, B1[tb])]
        P += [salu('s_mul_i32', sT0, sW, 5120), salu('s_add_u32', sT0, sT0, PHIQ), valu('v_lshlrev_b32', t0, 3, vLane), valu('v_add_u32', t0, sT0, t0),
              valu('v_lshlrev_b32', t1, 2, vLane), valu('v_add_u32', t1, sT0, t1), salu('s_mov_b32', sT2, '0x358637bd')]
        for tb in range(4): P += [valu('v_add_f32', o1[tb][2], sT2, o1[tb][2])]
        for tb in range(4): P += [valu('v_rcp_f32', o1[tb][2], o1[tb][2])]
        for tb in range(4): P += [valu('v_mul_f32', E[tb], E[tb], o1[tb][2])]
        for tb in range(4):
            P += [valu('v_mul_f32', o0[tb][k], o0[tb][k], E[tb]) for k in range(4)] + [valu('v_mul_f32', o1[tb][k], o1[tb][k], E[tb]) for k in range(2)]
            P += cv(o0[tb], o0[tb]) + [valu('v_cvt_pk_bf16_f32', o1[tb][0], o1[tb][0], o1[tb][1]), dsw('ds_write_b64', t0, o0[tb].sub(0, 2), 512*tb),
                  *([] if g.k4 else [valu('v_cndmask_b32', o1[tb][0], 0, o1[tb][0], 'vcc')]), dsw('ds_write_b32', t1, o1[tb][0], 2048 + 256*tb)]
        return P
    def hf(g, ks, tb): return a((ks*4 + tb)*4, 4)
    def h_reads(g, kss, vH, vH8):
        return [dsr('ds_read_b128', g.hf(ks, tb), vH8 if ks == 8 else vH, (0 if ks == 8 else ks*8192) + tb*1024) for ks in kss for tb in range(4)]
    def o_reads(g):
        t0, t1, t2 = vJ
        P = [salu('s_mul_i32', sT0, sR, 10240), salu('s_add_u32', sT0, sT0, PHIQ), valu('v_lshlrev_b32', t0, 3, vLane), valu('v_add_u32', t0, sT0, t0),
             valu('v_lshlrev_b32', t1, 2, vLane), valu('v_add_u32', t1, sT0, t1)]
        Rd = []
        if g.k4:
            P[-2:] = [valu('v_lshrrev_b32', t1, 4, vLane), valu('v_lshlrev_b32', t1, 8, t1), valu('v_and_b32', t2, 15, vLane), valu('v_lshl_add_u32', t1, t2, 2, t1), valu('v_add_u32', t1, sT0, t1)]
            for tb in range(4): Rd += [dsr('ds_read_b64', g.hf(9, tb).sub(0, 2), t0, 512*tb), dsr('ds_read_b64', g.hf(9, tb).sub(2, 2), t0, 5120 + 512*tb)]
            return P, Rd + [dsr('ds_read_b32', a(160), t1, 2048), dsr('ds_read_b32', a(161), t1, 5120 + 2048)]
        for tb in range(4):
            Rd += [dsr('ds_read_b64', g.hf(9, tb).sub(0, 2), t0, 512*tb), dsr('ds_read_b64', g.hf(9, tb).sub(2, 2), t0, 5120 + 512*tb),
                   dsr('ds_read_b32', g.hf(10, tb)[0], t1, 2048 + 256*tb), dsr('ds_read_b32', g.hf(10, tb)[1], t1, 5120 + 2048 + 256*tb)]
            P += [valu('v_accvgpr_write_b32', g.hf(10, tb)[2], 0), valu('v_accvgpr_write_b32', g.hf(10, tb)[3], 0)]
        return P, Rd
    def g2_dma_addrs(g):
        t0, t1, t2 = vJ
        g.dW2 = [v(12 + i) for i in range(4)]; g.dO9 = v(1); g.dO10 = v(13)
        P = [valu('v_bfe_u32', t1, vLane, 1, 2), valu('v_lshrrev_b32', t2, 4, vLane), valu('v_xor_b32', t1, t1, t2), valu('v_lshlrev_b32', t1, 5, t1),
             valu('v_and_b32', t2, 1, vLane), valu('v_lshl_add_u32', t1, t2, 4, t1),
             salu('s_lshl_b32', sT0, sW, 3), valu('v_lshrrev_b32', t0, 3, vLane), valu('v_add_u32', t2, sT0, t0), valu('v_mul_u32_u24', t2, 1152, t2), valu('v_add_u32', g.dW2[0], t2, t1)]
        P += [salu('s_mul_i32', sT0, sR, 2304), salu('s_add_u32', sT0, sT0, 2048), valu('v_add_u32', g.dO9, sT0, g.dW2[0]),
              valu('v_and_b32', t0, 3, t0), valu('v_lshrrev_b32', t2, 1, t0), valu('v_lshl_add_u32', t0, t2, 4, t0), valu('v_add_u32', t0, 16, t0), valu('v_mul_u32_u24', t0, 1152, t0),
              valu('v_add_u32', t0, 2048, t0), valu('v_add_u32', g.dO10, t0, t1),
              salu('s_mul_i32', sColF, sRowF, 1152), salu('s_mul_i32', sRowH, sRowH, 1152), salu('s_mul_i32', sOffX, sJ, 41472), salu('s_lshl_b32', sMx, sW, 10)]
        return P
    RB = [RING, 0, 98304]
    BARS = [4, 10, 14, 20, 26] + [x for n in range(3, 9) for x in (11*n - 2, 11*n + 4)] + [97]
    def g2_dma(g, q):
        n, ks = g.SEQ[q]; tg = ('g2', q); P = [salu('s_add_u32', 'm0', sMx, g.SL[q])]
        if ks >= 9: return P + [salu('s_add_u32', sOff, sOffX, n*128), dma(g.dO9 if ks == 9 else g.dO10, sWO, sOff, tag=tg)]
        return P + [salu('s_add_u32', sOff, sColF if ks < 8 else sRowH, n*128 + (ks*36864 if ks < 8 else 0)), dma(g.dW2[0], sW2, sOff, tag=tg)]
    def plan_slots(g):
        A_ = [RING + 4096*i for i in range(16)]; free = A_[4:] + [4096*i for i in range(12)]; g.SL = {}; g.ISS = {}; q = 0; N = 99; used = []
        for b in [-2, -1] + g.BARS:
            if b == -1: free += A_[:4]
            if b == 14: free += [4096*i for i in range(12, 16)]
            if b == 26: free += [MISC + 4096*i for i in range(2 if g.own else 6)]
            if b >= 0:
                free += [sl for (p, sl) in used if p <= b - 1]; used = [(p, sl) for (p, sl) in used if p > b - 1]
            nx = next((x for x in g.BARS if x > b), N); lim = {-2: 12, -1: 6}.get(b, int((nx - b)*g.drate + 0.5))
            L = []
            while free and q < N and len(L) < lim: sl = free.pop(0); g.SL[q] = sl; used.append((q, sl)); L.append(q); q += 1
            g.ISS[b] = L
        assert q == N
    def g2_rd_addrs(g):
        t0, t1, t2 = vJ
        g.r2 = [[v(T + 24), v(T + 25)], [v(T + 26), v(T + 27)], [v(112), v(113)]]; g.r10 = [[v(T + 28), v(T + 29)], [v(T + 30), v(T + 31)], [v(114), v(115)]]
        g.vP = [v(116 + i) for i in range(4)]
        t3 = g.r2[0][0]
        P = [valu('v_lshrrev_b32', t0, 5, vLane), valu('v_lshlrev_b32', t0, 10, t0), valu('v_bfe_u32', t1, vLane, 2, 3), valu('v_lshl_add_u32', t0, t1, 7, t0),
             valu('v_and_b32', t2, 3, vLane), valu('v_lshl_add_u32', t0, t2, 3, t0), valu('v_lshrrev_b32', t1, 1, t1), salu('s_lshl_b32', sT1, sC, 1), valu('v_xor_b32', t1, sT1, t1),
             valu('v_lshlrev_b32', t1, 5, t1), valu('v_xor_b32', t3, 32, t1), valu('v_add_u32', g.r2[1][0], t0, t1), valu('v_add_u32', g.r2[1][1], t0, t3),
             valu('v_bfe_u32', t1, vLane, 2, 2), valu('v_lshlrev_b32', t0, 7, t1), valu('v_lshl_add_u32', t0, t2, 3, t0), valu('v_lshrrev_b32', t1, 1, t1), valu('v_xor_b32', t1, sT1, t1),
             valu('v_lshlrev_b32', t1, 5, t1), valu('v_xor_b32', t3, 32, t1), salu('s_lshl_b32', sT0, sW, 10),
             valu('v_add3_u32', g.r10[1][0], t0, t1, sT0), valu('v_add3_u32', g.r10[1][1], t0, t3, sT0)]
        for e in range(2): P += [valu('v_add_u32', g.r2[0][e], g.RB[0], g.r2[1][e]), valu('v_add_u32', g.r10[0][e], g.RB[0], g.r10[1][e])]
        Q = []
        for e in range(2): Q += [valu('v_add_u32', g.r2[2][e], g.RB[2], g.r2[1][e]), valu('v_add_u32', g.r10[2][e], g.RB[2], g.r10[1][e])]
        Q += [salu('s_mul_i32', sT0, sM, 144), salu('s_lshl_b32', sT1, sC, 3), salu('s_add_u32', sT0, sT0, sT1), salu('s_lshl_b32', sT1, sR, 2), salu('s_add_u32', sT0, sT0, sT1),
              salu('s_lshl_b32', sT0, sT0, 4), salu('s_add_u32', sT0, sT0, sJ), salu('s_lshl_b32', sT0, sT0, 10), valu('v_lshlrev_b32', t0, 4, vLane), valu('v_add_u32', g.vP[0], sT0, t0)]
        if g.tokm: Q[-2:] = [valu('v_and_b32', t0, 15, vLane), valu('v_lshlrev_b32', t0, 6, t0), valu('v_lshrrev_b32', t1, 4, vLane), valu('v_lshl_add_u32', t0, t1, 4, t0), valu('v_add_u32', g.vP[0], sT0, t0)]
        Q += [valu('v_add_u32', g.vP[i], 16384*i, g.vP[0]) for i in range(1, 4)]
        return P, Q
    def red_setup(g):
        t0, t1, t2 = vJ
        g.vLd, g.vOut, g.vS, g.vPA, g.vPR, g.vFA, g.vFV = [v(120 + i) for i in range(7)]
        g.rD = v(224, 4)
        P = []; srd(P, sOUT, 22, 2048*1152)
        P += [salu('s_lshr_b32', sT0, sJ, 1), salu('s_lshl_b32', sT0, sT0, 4), *([salu('s_lshl_b32', sT1, sW, 2), salu('s_add_u32', sT0, sT0, sT1), valu('v_bfe_u32', t0, vLane, 2, 2)] if g.tokm else [valu('v_and_b32', t0, 15, vLane)]),
              valu('v_add_u32', t0, sT0, t0), valu('v_lshlrev_b32', t1, 2, t0), valu('v_add_u32', t1, LOGIT, t1), dsr('ds_read_b32', g.vS, t1, 0),
              salu('s_lshl_b32', sT0, sM, 7), valu('v_add_u32', t0, sT0, t0), valu('v_mul_u32_u24', t0, 1152, t0), *([valu('v_and_b32', t1, 3, vLane), valu('v_lshl_add_u32', t0, t1, 3, t0)] if g.tokm else [salu('s_lshl_b32', sT0, sW, 3), valu('v_add_u32', t0, sT0, t0)]),
              valu('v_lshrrev_b32', t1, 5, vLane), valu('v_lshl_add_u32', t0, t1, 5, t0), valu('v_bfe_u32', t1, vLane, 4, 1), valu('v_lshl_add_u32', t0, t1, 2, t0),
              salu('s_and_b32', sT1, sJ, 1), salu('s_lshl_b32', sT0, sT1, 6), valu('v_add_u32', g.vOut, sT0, t0),
              salu('s_lshl_b32', sT1, sT1, 3), salu('s_mul_i32', sT0, sM, 144), salu('s_add_u32', sT0, sT0, sT1), salu('s_lshr_b32', sT1, sJ, 1), salu('s_add_u32', sT0, sT0, sT1),
              salu('s_lshl_b32', sT0, sT0, 14), salu('s_lshl_b32', sT1, sW, 8), salu('s_add_u32', sT0, sT0, sT1), valu('v_lshrrev_b32', t0, 4, vLane), valu('v_lshlrev_b32', t0, 10, t0),
              valu('v_and_b32', t1, 15, vLane), valu('v_lshl_add_u32', t0, t1, 4, t0), valu('v_add_u32', g.vLd, sT0, t0),
              salu('s_mov_b32', sT1, OOB), valu('v_mov_b32', t0, sT1), valu('v_mov_b32', t2, sFl), valu('v_cmp_eq_u32', 'vcc', 0, vLane), salu('s_andn2_b32', sT0, sFl, 255),
              valu('v_cndmask_b32', g.vFA, t0, t2, 'vcc'), valu('v_lshlrev_b32', t2, 2, vLane), valu('v_add_u32', t2, sT0, t2), valu('v_cmp_gt_u32', 'vcc', 16, vLane),
              salu('s_mov_b32', sT2, '0x42700000'), valu('v_cndmask_b32', g.vPA, t0, t2, 'vcc'),
              valu('v_min_f32', g.vS, sT2, g.vS), valu('v_mul_f32', g.vS, sL, g.vS), valu('v_exp_f32', g.vS, g.vS), valu('v_add_f32', g.vS, 1.0, g.vS), valu('v_rcp_f32', g.vS, g.vS),
              ]
        return P
    def rbuf(g, c, i): return v(T + 4*i, 4) if (c == 5 and c not in g.tailc) else a((176 + c*16 if c < 5 else (c - 5)*16) + 4*i, 4)
    def red_flag(g, val): return [valu('v_mov_b32', g.vFV, val), vstore('buffer_store_dword', g.vFV, g.vFA, sPART, 0, mods='sc1', tag='fl')]
    def red_poll(g): return [vload('buffer_load_dword', g.vPR, g.vPA, sPART, 0, mods='sc1', lat=30)]
    def red_ld(g, c):
        P = []
        if g.own: return [salu('s_mov_b32', sT2, c*262144)] + [vload('buffer_load_dwordx4', g.rbuf(c, i), g.vL4[i], sPART, sT2, mods='sc1', lat=36) for i in range(4)]
        for i in range(4): P += [salu('s_mov_b32', sT2, c*262144 + i*4096), vload('buffer_load_dwordx4', g.rbuf(c, i), g.vLd, sPART, sT2, mods='sc1', lat=36)]
        return P
    def red_m(g, c):
        D = g.rD
        o_ = [dsr('ds_read_b128', v(24, 4), v(29), c*1024), mfma(D, v(20, 4), v(24, 4), 0)] if g.own else []
        return o_ + [mfma(D, g.rA, g.rbuf(c, i), 0 if (i == 0 and not g.own) else None) for i in range(4)] + \
               [valu('v_mul_f32', D[0], D[0], g.vS), valu('v_mul_f32', D[1], D[1], g.vS), valu('v_cvt_pk_bf16_f32', D[0], D[0], D[1]), vstore('buffer_store_dword', D[0], g.vOut, sOUT, 0, off=c*128, mods=g.omods)]
    def own_setup(g):
        t0, t1, t2 = vJ; g.vL4 = [g.vLd, v(30), v(31), v(11)]; g.sOw = s(38)
        P = [salu('s_bfe_u32', sT0, sJ, '0x20001')]
        for tb in range(1, 4): P += [glue(scmp('s_cmp_eq_u32', sT0, tb), salu('s_cselect_b64', s(30 + 2*tb, 2), -1, 0))]
        P += [salu('s_lshr_b32', sT1, sJ, 3), salu('s_lshl_b32', sT1, sT1, 1), salu('s_and_b32', sT2, sJ, 1), salu('s_add_u32', sT1, sT1, sT2),
              glue(scmp('s_cmp_eq_u32', sT1, sW), salu('s_cselect_b32', g.sOw, 1024, 0), salu('s_cselect_b32', sT1, 0, 9216), salu('s_cselect_b32', sT0, sT0, 7)), salu('s_add_u32', sT1, sT1, OWN),
              valu('v_and_b32', t0, 15, vLane), valu('v_lshlrev_b32', t1, 6, t0), valu('v_lshrrev_b32', t2, 4, vLane), valu('v_lshl_add_u32', t1, t2, 4, t1), valu('v_add_u32', v(28), sT1, t1),
              salu('s_lshl_b32', sT1, sW, 8), salu('s_add_u32', sT1, sT1, OWN), valu('v_lshlrev_b32', t0, 4, t0), valu('v_add_u32', v(29), sT1, t0), salu('s_mov_b32', sT1, OOB)]
        for tb in range(4): P += [glue(scmp('s_cmp_eq_u32', sT0, tb), salu('s_cselect_b32', sT2, sT1, 0)), valu('v_max_u32', g.vP[tb], sT2, g.vP[tb])]
        Q = [valu('v_lshrrev_b32', t2, 4, vLane), valu('v_mov_b32', t0, OOB)]
        for i in (3, 2, 1, 0):
            Q += [valu('v_add_u32', t1, 4*i, t2), valu('v_cmp_eq_u32', 'vcc', sJ, t1), valu('v_add_u32', g.vL4[i], 4096*i, g.vLd), valu('v_cndmask_b32', g.vL4[i], g.vL4[i], t0, 'vcc')]
        Q += [valu('v_cmp_gt_u32', 'vcc', 16, vLane)] + [valu('v_cndmask_b32', v(20 + d), 0, g.rA[d], 'vcc') for d in range(4)]
        return P, Q
    def own_put(g, n):
        d = lambda tb: v(192 + (n % 2)*16 + tb*4, 4); x = v(16, 4)
        P = [valu('v_cndmask_b32', x[k], d(0)[k], d(1)[k], s(32, 2)) for k in range(4)]
        for tb in (2, 3): P += [valu('v_cndmask_b32', x[k], x[k], d(tb)[k], s(30 + 2*tb, 2)) for k in range(4)]
        return P + [dsw('ds_write_b64', v(28), x.sub(0, 2), 0), dsw('ds_write_b64', v(28), x.sub(2, 2), 8), valu('v_add_u32', v(28), g.sOw, v(28))]
    def w2f(g, q, e): return v(WF + ((q + 2) % 4)*8 + e*4, 4)
    SEQ = [(0, k) for k in range(6)] + [(1, k) for k in range(6)] + [(0, 6), (0, 7), (1, 6), (1, 7), (0, 8), (0, 9), (0, 10), (1, 8), (1, 9), (1, 10)] + [(n, k) for n in range(2, 9) for k in range(11)]
    def g2_reads(g, q):
        n, ks = g.SEQ[q]; X = []; ad_ = g.SL[q]; b = 1 if ad_ < RING else 0 if ad_ < MISC else 2; o = ad_ - g.RB[b]
        for e in range(2):
            f = g.w2f(q, e)
            if ks == 10: X.append([dsr('ds_read_b64_tr_b16', f.sub(0, 2), g.r10[b][e], o)])
            else: X.append([dsr('ds_read_b64_tr_b16', f.sub(2*z, 2), g.r2[b][e], o + z*2048) for z in range(2)])
        return X
    def acc2(g, n, e, tb): return v(128 + (n % 2)*32 + (e*4 + tb)*4, 4)
    def g2_epi(g, n):
        P = [salu('s_mov_b32', sT3, n*262144)]; St = []
        for tb in range(4):
            d = v(192 + (n % 2)*16 + tb*4, 4)
            for e in range(2):
                x = g.acc2(n, e, tb)
                P += [valu('v_cvt_pk_bf16_f32', d[2*e], x[0], x[1]), valu('v_cvt_pk_bf16_f32', d[2*e + 1], x[2], x[3])]
            P += [vstore('buffer_store_dwordx4', d, g.vP[tb], sPART, sT3, tag=('part', n), mods=g.pmods)]
        return P
    def fstamp(g):
        prs = list(range(6, 22, 2)) + list(range(40, 48, 2)) + [28, 30, 72, 74] + [64, 66, 68, 70]
        r = prs[g.nf]; g.nf += 1; g.fregs.append(r)
        return raw(f"s_memrealtime s[{r}:{r+1}]", 'label')
    def f0dump(g, at):
        if g.fine0 != at: return []
        P = [valu('v_lshlrev_b32', v(5), 3, vLane), valu('v_add_u32', v(5), sT4, v(5)), valu('v_mov_b32', v(6), g.vF0), valu('v_mov_b32', v(7), g.vF0), valu('v_cmp_gt_u32', 'vcc', 18, vLane),
             valu('v_mov_b32', g.vF0, OOB), valu('v_cndmask_b32', v(5), g.vF0, v(5), 'vcc'), vstore('buffer_store_dwordx2', v(6, 2), v(5), sPART, 0, off=8*14)]
        return P
    def fdump(g):
        if not g.fine: return []
        P = [raw("s_waitcnt lgkmcnt(0)", 'wait'), valu('v_mov_b32', v(5), sT4)]
        for i, r in enumerate(g.fregs): P += [valu('v_mov_b32', v(6), s(r)), valu('v_mov_b32', v(7), s(r)), vstore('buffer_store_dwordx2', v(6, 2), v(5), sPART, 0, off=8*(g.ns + i)), raw('s_nop 1', 'wait')]
        return P
    def gemm2(g, X1, X2, X3, X4, X5):
        mf = []; F = {}; st = []
        ad = lambda i, x: F.setdefault(i, []).extend(x)
        for q, (n, ks) in enumerate(g.SEQ):
            for e in range(2):
                if ks == 10 and g.k4:
                    mf += [mfma4b(v(g.acc2(n, e, 0).a, 16), g.w2f(q, e).sub(0, 2), a(160, 2)), None, None, None]; continue
                for i in range(4):
                    tb = i if e == 0 else 3 - i
                    mf.append(mfma(g.acc2(n, e, tb), g.w2f(q, e), g.hf(ks, tb), 0 if ks == 0 else None))
            if q + 2 < 99:
                X = g.g2_reads(q + 2)
                for e in range(2):
                    for z, x in enumerate(X[e]): ad(8*q + 4*e + 2*z + 1, [x])
        flg, chk, mm = g.plan; bl = g.BARS
        oP, oQ = g.own_setup() if g.own else ([], [])
        for bi, p in enumerate(bl):
            nx = bl[bi + 1] if bi + 1 < len(bl) else 99
            tags = [('g2', q) for q in range(p + 2, min(nx + 2, 99))] + ([('part', flg[p])] if p in flg else [])
            if tags: ad(8*p - 1, [wait_vm(*tags)])
            ad(8*p, [barrier()])
            if g.fine: ad(8*p - 2, [g.fstamp()])
            if g.ISS[p]: st.append((sum([g.g2_dma(q) for q in g.ISS[p]], []), 8*p + 1, 8*nx - 1))
            if p in flg: st.append((g.red_flag(flg[p] + 1), 8*p + 1, 8*p + 10))
            if p in chk:
                pp, cs = chk[p]
                ck = g.check(f"r{p}", g.vPR, g.vPA, sPART, cs[-1] + 1)
                st.append((g.red_poll(), 8*pp + 12, 8*pp + 24)); st.append((ck, 8*p - 8, 8*p - 1))
                R_ = sum([g.red_ld(c) for c in cs], [])
                st.append((spaced(R_, 'ld', g.lsp), 8*p + 4, min(8*p + 14 + g.lsp*4*len(cs), 791)))
        for p, cs in mm.items(): st.append((sum([g.red_m(c) for c in cs], []), 8*p + 4, 8*p + 38))
        ends = {0: 18, 1: 21}
        for n in range(8):
            e = ends.get(n, 11*n + 10); b = 8*(e + 1)
            st.append((spaced(g.g2_epi(n), 'st', 5 if n == 0 else g.esp), b + 2, b + (23 if n == 0 else 14 + 3*g.esp)))
            if g.own: st.append((g.own_put(n), b + (24 if n == 0 else 40), b + (48 if n == 0 else 64)))
        st = [(X2, 0, 31)] + st + [(X1, 0, 8*14 - 2), (X3, 8*14 + 1, 8*16 - 2), (X4 + oP, 8*16, 8*19), (X5 + oQ, 8*19, 8*26 - 2)]
        g.rep.append("G2")
        P = pack(mf, F, st, rep=g.rep)
        P += g.stamp()
        dl = [c for p in chk for c in chk[p][1]]; dm = [c for p in mm for c in mm[p]]
        f7 = 7 in flg.values()
        rest = [c for c in range(7) if c not in dl]; a_, b_ = rest[:g.tpre], rest[g.tpre:]
        LD = lambda cs: sum([g.red_ld(c) for c in cs], []); M = lambda cs: sum([g.red_m(c) for c in cs], [])
        fs = lambda: [g.fstamp()] if g.fine else []
        pend = [c for c in dl if c not in dm]
        P += g.red_poll() + g.g2_epi(8) + (g.own_put(8) if g.own else []) + M(pend) + [wait_ds()] + g.check("t0", g.vPR, g.vPA, sPART, 7) + [barrier()] + LD(a_) + fs()
        if f7:
            P += g.red_poll() + [wait_vm(('part', 8))] + g.check("t1", g.vPR, g.vPA, sPART, 8) + [barrier()] + g.red_flag(9) + LD(b_[:g.tmid]) + g.red_poll() + LD(b_[g.tmid:] + [7]) + fs()
            P += g.check("t2", g.vPR, g.vPA, sPART, 9) + [barrier()] + fs() + LD([8]) + M(rest + [7, 8])
        else:
            P += [wait_vm(('part', 8)), barrier()] + g.red_flag(9) + LD(b_[:g.tmid]) + g.red_poll() + LD(b_[g.tmid:]) + fs()
            P += g.check("t2", g.vPR, g.vPA, sPART, 9) + [barrier()] + fs() + LD([7, 8]) + M(rest + [7, 8])
        return P
    def main(g):
        P = g.prologue()
        hA = g.half_addrs(); g.fixed1()
        if g.stamps:
            for r in ((96, 97, 95) if 'f' in g.dbg else (97, 95)):
                P += [valu('v_mov_b32', v(6), s(r)), valu('v_mov_b32', v(7), s(r)), valu('v_mov_b32', v(5), sT4), vstore('buffer_store_dwordx2', v(6, 2), v(5), sPART, 0, off=8*g.ns), raw('s_nop 1', 'wait')]; g.ns += 1
        P += g.stamp()
        P += [wait_vm(('w', 0), ('w', 1), ('x', 0)), barrier()] + g.pre_reads + ([] if g.early else (g.dmaX(2) if g.ord < 3 else []) + g.dmaW(4) + g.dmaW(5)) + g.dmaX(3) + g.dmaW(6) if not g.lazy else [wait_vm(('w', 0), ('w', 1), ('x', 0)), barrier()] + g.pre_reads
        P += g.stamp()
        phL, phP = g.phiA_loads()
        pf = g.pf
        e0 = 16*(g.U[17] + 1)
        P += g.phase1(0, [(g.late + g.gate_late + [wait_ds()] + (g.prefetchQ() if g.split else []), 2, 350), ((g.prefetch13(2) if pf else []) + (g.prefetchQ() if pf and g.qlate and not g.split else []) + phL, max(16*g.U[17] - 6, 350), 570),
                          (g.silu(0, 0), e0 + 4, 576)]) + g.stamp() + g.f0dump(0)
        P += g.phase1(2, [(phP + (g.prefetch13(3) if pf and not g.pfp else []), 60, 280), (g.silu(1, 1), 4, 288)]) + g.stamp()
        A, Q, B, C = g.attn_post()
        P += g.phase1(3, [((g.prefetch13(3, vHf[0][0], vHf[0][1]) + g.prefetch13(4, vHf[0][0], vHf[0][1])[6:] + (g.prefetch2(vHf[0][0], vHf[0][2], vHf[0][1]) if g.pfp == 1 else []) if pf and g.pfp else []) + A + [wait_ds()], 1, g.p3b - 1), (g.prefetch2(vHf[1][0], vHf[1][1], vHf[1][2]) if pf and g.pfp == 4 else [], 80, 110), (B + C, g.p3b + 1, 280), (Q, g.p3b + 1, 288)]) + g.stamp()
        rA, rB = g.g2_rd_addrs(); g2a = g.g2_dma_addrs()
        P += g.phase1(4, [(g.flag(vJ[0], vJ[1]) + (g.prefetch13(4) + g.prefetch2(v(T), v(T+1), v(T+2)) if pf and not g.pfp else []) + hA + (g.prefetch2(v(T), v(T + 1), v(T + 2)) if g.split else []), 43, 230 if g.split else 170), (rA + g2a + (g.prefetch2(v(T), v(T + 1), v(T + 2)) if pf and g.pfp == 3 and not g.split else []), 230 if g.split else 180, 288), (g.silu(1, 2), 4, 288)],
                      extra={41: [wait_vm('kv')]}) + g.stamp() + g.f0dump(54)
        poll0, poll1, sel, L1, L2 = g.kv_gather()
        vH, vH8 = v(2), v(3)
        hr = [valu('v_lshlrev_b32', vH8, 4, vLane), salu('s_lshl_b32', sT3, sR, 12), valu('v_add_u32', vH, sT3, vH8), valu('v_add_u32', vH8, 65536, vH)]
        H = lambda ks: g.h_reads(ks, vH, vH8)
        for i in (16*98 + 9, 16*98 + 10): g.F1.pop(i)
        g.plan_slots()
        X = {135: [wait_vm(*[('g2', q) for q in range(6)]), wait_ds()], 136: [barrier()]}
        rr = [x for q in range(2) for y in g.g2_reads(q) for x in y]
        for i, x in enumerate(rr): X.setdefault(137 + min(i, 6), []).append(x)
        P += g.phase1(5, [(sum([g.g2_dma(q) for q in g.ISS[-2]], []), 107, 135), (poll0 + (g.prefetch2(v(T), v(T + 1), v(T + 2)) if pf and g.pfp == 2 else []) + sel + poll1, 0, 41), (hr + H([0, 1]), 16, 40), (H([2, 3]), 40, 60), (H([4, 5]), 60, 90),
                          (L1 + (g.prefetch2(v(224), v(225), v(226)) if pf and g.pfp == 5 else []) + L2, 43, 132), (g.silu(0, 3), 4, 132)], extra=X) + g.stamp() + g.f0dump(64)
        oa, orr = g.o_reads()
        X1 = H([6, 7]) + g.o_part() + g.silu(1, 4) + oa + [wait_ds()]
        P += g.gemm2(X1, sum([g.g2_dma(q) for q in g.ISS[-1]], []), H([8]) + orr, rB, g.red_setup()) + g.stamp() + g.fdump()
        import asmlib; asmlib.LOOSE = bool(g.dbg)
        if 'w' in g.dbg: P = [x for x in P if not (x.k == 'wvm')]
        if 'b' in g.dbg: P = [x for x in P if not (x.k == 'bar')]
        if 'v' in g.dbg: P = [x for x in P if not (x.k in ('trans',) or x.t.startswith('v_mul_f32') or x.t.startswith('v_add_f32') or x.t.startswith('v_cvt'))]
        if 'd' in g.dbg: P = [x for x in P if not (x.k == 'dma')]
        if 'r' in g.dbg: P = [x for x in P if not (x.t.startswith('ds_read_b64_tr'))]
        if 'c' in g.dbg: P = [x if '_spin' not in x.t else label(x.t.split('\n')[-1][:-1]) for x in P]
        if 'L' in g.dbg: P = [x for x in P if not (x.k == 'vld' and 'dwordx4 a' in x.t)]
        if 'k' in g.dbg: P = [x for x in P if x.tag != 'kv']
        if 'W' in g.dbg: P = [x for x in P if x.k != 'dsw']
        if 'P' in g.dbg: P = [x for x in P if x.k != 'perm']
        if 'p' in g.dbg: P = [x for x in P if not (isinstance(x.tag, tuple) and x.tag[0] == 'part')]
        rep = {}
        F = finalize(P, report=rep)
        print(rep, g.rep, file=sys.stderr)
        return text(F) + "\ns_endpgm\n" + "\n".join(g.tails) + "\nL_end:"

def build(**kw):
    g = G(**kw)
    body = g.main()
    hdr = "; gated mix: hedgehog linear attention + SwiGLU FFN fused in one launch (text emitted by my own generator script)\n"
    hdr += "; @launch grid=(256,1,1) block=(256,1,1) lds=163840\n"
    hdr += '.amdgcn_target "amdgcn-amd-amdhsa--gfx950"\n'
    return hdr + kernel_text(KN + "_kernel", body, vgpr=256, agpr=256)
if __name__ == "__main__":
    kw = {}
    out = sys.argv[1]
    for x in sys.argv[2:]:
        k, val = x.split("="); kw[k] = eval(val)
    t = build(**kw)
    open(out, "w").write(t)
```

```python
import sys
from asmlib import *
KN = "gated_mix__linear_kernel_hedgehog__glu_gated_swiglu__prompt"
H0 = 0; RING = 73728; MISC = 139264; PHIQ = MISC; LOGIT = MISC + 20480; DUMMY = MISC + 20992; KVE = MISC + 21248; KVM = 135168; OWN = MISC + 8192; GA = MISC
PHIK = 32768; VV = PHIK + 20480
S0 = 90112; ST = [S0, 0, 45056]; WST = 11264
WS_PART = 0; WS_SC = 37748736; WS_KV = WS_SC + 8192; WS_KV_BYTES = 16*2*16*1536; WS_STAMP = 48 << 20; WS_FL = 40 << 20
LOG2E = 0x3fb8aa3b; NLOG2E = 0xbfb8aa3b
OOB = 0x7ff00000
sX, sQ, sQ2, sW1, sW3, sWH, sW2, sWO, sPART, sKV, sDBG, sMI = [s(28 + 4*i, 4) for i in range(12)]
sJ, sM, sW, sR, sC = s(76), s(77), s(78), s(79), s(80)
sOff, sColF, sColH, sMb, sT0, sT1, sNL, sL, sOffX, sMx, sT2, sRowF, sRowH = [s(81 + i) for i in range(13)]
sExp = s(3); sOUT = sWH; sMask = s(94, 2); sStamp = s(96, 2); sT3 = s(98); sT4 = s(99); sFl = s(27); sXA, sXB, sFA, sFB, sQA, sQB, sHA, sHB = s(0), s(1), s(12), s(13), s(6), s(7), s(10), s(11); sPar = s(100); sSp = s(14); sIdx = s(101)
vLane, vDmaF, vRdF0, vRdF1, vHw = v(0), v(1), v(2), v(3), v(4)
vJ = [v(5), v(6), v(7)]
vPhiA = [v(8, 4), v(12, 4)]
vE = [v(16 + i) for i in range(8)]
vHf = [v(24, 4), v(28, 4)]
T = 32; WF = 64; ACC = [128, 192]
def xf(ks, tb):
    i = ks*4 + tb
    return a(4*i, 4) if i < 64 else v(96 + 4*(i - 64), 4)
def slot(G): return ((G + 7) % 8) * 8192
def srd(P, d, lo, nbytes, add=0):
    if add >= 0: P += [glue(salu('s_add_u32', d[0], s(lo), add), salu('s_addc_u32', d[1], s(lo+1), 0))]
    else: P += [glue(salu('s_sub_u32', d[0], s(lo), -add), salu('s_subb_u32', d[1], s(lo+1), 0))]
    P += [salu('s_mov_b32', d[2], nbytes), salu('s_mov_b32', d[3], '0x20000')]

class G:
    def __init__(g, stamps=False, dump=None, pf=True, dbg='', cpf=True, pmods='sc1', fine=False, plan=12, esp=8, lsp=6, tpre=1, tmid=2, xpf=False, early=0, nsh=16, lead=12, fine0=None, rot=True, tlb=False, pfp=3, qlate=True, kvlat=50, p3b=170, drate=1.4, ord=0, split=24, tokm=True, omods='nt', own=True, lazy=True, k4=True, xsep=True):
        g.xsep = xsep
        g.k4 = k4
        g.lazy = lazy
        g.own = own
        g.tokm = tokm; g.omods = omods
        g.split = split
        g.ord = ord
        g.drate = drate
        g.kvlat = kvlat; g.p3b = p3b
        g.qlate = qlate
        g.rot = rot; g.tlb = tlb; g.pfp = pfp
        g.fine0 = fine0; g.vF0 = v(15) if fine0 == 0 else v(4)
        g.lead = lead; g.mkSA()
        g.nsh = nsh
        g.xpf = xpf; g.early = early
        g.tpre = tpre; g.tmid = tmid
        g.esp = esp; g.lsp = lsp
        F2 = {37: 1, 48: 2, 59: 3, 70: 4, 81: 5, 92: 6}
        PL = {0: ((F2, {}, {}), (7, 7)),
              1: ((F2, {75: (64, [0, 1, 2])}, {}), (7, 7)),
              2: ((F2, {75: (64, [0, 1, 2, 3])}, {}), (7, 7)),
              3: ((F2, {70: (59, [0, 1, 2]), 92: (81, [3, 4])}, {}), (7, 7)),
              4: (({**F2, 97: 7}, {75: (64, [0, 1, 2])}, {}), (7, 7)),
              5: (({**F2, 97: 7}, {75: (64, [0, 1, 2]), 92: (81, [3, 4])}, {}), (7, 7)),
              7: ((F2, {64: (53, [0, 1, 2]), 81: (70, [3]), 92: (81, [4])}, {}), (7, 7)),
              8: ((F2, {64: (53, [0, 1, 2]), 81: (75, [3, 4]), 92: (86, [5])}, {}), (7, 7)),
              9: ((F2, {64: (53, [0, 1]), 75: (64, [2, 3])}, {}), (7, 7)),
              10: (({37: 1, 48: 2, 59: 3, 92: 6}, {70: (64, [0, 1, 2, 3])}, {}), (7, 7)),
              11: (({37: 1, 48: 2, 59: 3, 70: 4, 92: 6}, {70: (64, [0, 1, 2, 3]), 86: (81, [4])}, {}), (7, 7)),
              12: (({48: 2, 92: 6}, {64: (59, [0, 1, 2])}, {}), (7, 7)),
              13: (({48: 2, 70: 4, 92: 6}, {64: (59, [0, 1, 2]), 81: (75, [3, 4])}, {}), (7, 7)),
              14: ((F2, {59: (53, [0, 1]), 70: (64, [2]), 81: (75, [3]), 92: (86, [4])}, {}), (7, 7)),
              15: ((F2, {70: (64, [0, 1]), 81: (75, [2, 3]), 92: (86, [4])}, {}), (7, 7)),
              16: ((F2, {70: (64, [0]), 81: (75, [1]), 92: (86, [2])}, {}), (7, 7)),
              17: ((F2, {70: (64, [0, 1]), 81: (75, [2, 3]), 92: (86, [4, 5])}, {}), (7, 7)),
              18: (({59: 3, 92: 6}, {70: (64, [0, 1, 2, 3])}, {}), (7, 7)),
              19: (({48: 2, 97: 7}, {64: (59, [0, 1, 2])}, {}), (7, 7)),
              20: (({48: 2, 81: 5}, {64: (59, [0, 1, 2]), 92: (86, [3, 4, 5])}, {}), (7, 7)),
              21: (({48: 2, 92: 6}, {70: (59, [0, 1, 2])}, {}), (7, 7)),
              22: (({37: 1, 92: 6}, {59: (48, [0, 1])}, {}), (7, 7)),
              6: (({**F2, 97: 7}, {75: (64, [0, 1]), 86: (75, [2, 3]), 97: (86, [4])}, {}), (7, 7))}
        g.plan, g.tthr = PL[plan]; g.tailc = [c for c in range(5, 9) if c not in [x for p in g.plan[1] for x in g.plan[1][p][1]]]
        g.fine = fine; g.nf = 0; g.fregs = []
        g.pmods = pmods
        g.cpf = cpf; g.tails = []; g.rep = []
        g.dbg = dbg
        g.stamps = stamps; g.dump = dump; g.ns = 0; g.pf = pf
    def stamp(g):
        if not g.stamps: return []
        i = g.ns; g.ns += 1
        return [raw(f"s_memtime {sStamp}", 'salu', [], [sStamp]), raw(f"s_memrealtime s[4:5]", 'salu'), raw("s_waitcnt lgkmcnt(0)", 'wait'),
                valu('v_mov_b32', v(6), sStamp[0]), valu('v_mov_b32', v(7), s(4)), valu('v_mov_b32', v(5), sT4),
                vstore('buffer_store_dwordx2', v(6, 2), v(5), sPART, 0, off=8*i)]
    def prologue(g):
        P = []
        P += [scmp('s_cmp_ge_u32', s(2), 256), raw('s_cbranch_scc1 L_end')]
        if g.stamps: P += [raw('s_memrealtime s[72:73]', 'label')]
        P += [raw('s_load_dwordx16 s[4:19], s[0:1], 0'), raw('s_load_dwordx8 s[20:27], s[0:1], 64')]
        t0, t1, t2, t3, t4 = [v(T + 16 + i) for i in range(5)]
        P += [valu('v_lshrrev_b32', t0, 6, v(0)), valu('v_and_b32', vLane, 63, v(0))]
        P += [valu('v_readfirstlane_b32', sW, t0)]
        lj = {16: 1, 8: 2, 4: 3}[g.nsh]
        P += [salu('s_bfe_u32', sJ, s(2), hex(((4 - lj) << 16) | 0)), salu('s_lshl_b32', sJ, sJ, lj), salu('s_bfe_u32', sT0, s(2), hex((lj << 16) | 3)), salu('s_add_u32', sJ, sJ, sT0),
              salu('s_lshr_b32', sIdx, s(2), 3 + lj)]
        if lj > 1: P += [salu('s_bfe_u32', sM, s(2), hex(((lj - 1) << 16) | (4 - lj))), salu('s_lshl_b32', sM, sM, 5 - lj), salu('s_add_u32', sM, sM, sIdx)]
        else: P += [salu('s_mov_b32', sM, sIdx)]
        P += [salu('s_lshr_b32', sR, sW, 1), salu('s_and_b32', sC, sW, 1)]
        P += [salu('s_mov_b32', sNL, hex(NLOG2E)), salu('s_mov_b32', sL, hex(LOG2E))]
        P += [salu('s_mul_i32', sT0, sJ, 288), salu('s_and_b32', sT1, sJ, 1), salu('s_lshl_b32', sT2, sT1, 5), salu('s_add_u32', sRowF, sT0, sT2),
              salu('s_lshl_b32', sT2, sT1, 8), salu('s_add_u32', sRowH, sT0, 256), salu('s_sub_u32', sRowH, sRowH, sT2),
              salu('s_lshl_b32', sColF, sRowF, 1), salu('s_lshl_b32', sColH, sRowH, 1)]
        P += [salu('s_lshl_b32', sMb, sW, 11), salu('s_add_u32', sMb, sMb, RING), salu('s_lshl_b32', sMx, sW, 12)]
        if g.stamps: g.early_part = True; P += [salu('s_lshl_b32', sT4, s(2), 10), salu('s_lshl_b32', sT0, sW, 8), salu('s_add_u32', sT4, sT4, sT0), salu('s_add_u32', sT4, sT4, WS_STAMP)]
        P += [valu('v_lshrrev_b32', t0, 3, vLane), salu('s_lshl_b32', sT0, sW, 3), valu('v_add_u32', t0, sT0, t0), valu('v_mul_u32_u24', t0, 9216, t0),
              valu('v_bfe_u32', t1, vLane, 4, 1), salu('s_lshl_b32', sT1, sC, 1), valu('v_or_b32', t1, sT1, t1), valu('v_bfe_u32', t2, vLane, 1, 2),
              valu('v_xor_b32', t1, t1, t2) if 's' not in g.dbg else valu('v_mov_b32', t1, t2), valu('v_lshlrev_b32', t1, 5, t1), valu('v_and_b32', t2, 1, vLane), valu('v_lshlrev_b32', t2, 4, t2),
              valu('v_add3_u32', vDmaF, t0, t1, t2)]
        dX0, dX1, rX0, rX1 = [v(T + i) for i in range(4)]
        P += [salu('s_lshl_b32', sT0, sM, 7), salu('s_lshl_b32', sT1, sW, 5), salu('s_add_u32', sT0, sT0, sT1), valu('v_lshrrev_b32', t0, 3, vLane),
              valu('v_add_u32', t0, sT0, t0), valu('v_mul_u32_u24', t0, 1152, t0), valu('v_lshrrev_b32', t1, 4, vLane), valu('v_and_b32', t2, 7, vLane),
              valu('v_xor_b32', t1, t1, t2), valu('v_lshlrev_b32', t1, 4, t1), valu('v_add_u32', dX0, t0, t1), valu('v_xor_b32', t1, 64, t1), valu('v_add_u32', dX1, t0, t1)]
        P += [raw('s_waitcnt lgkmcnt(0)', 'wait')]
        if g.stamps: P += [raw('s_mov_b32 s97, s72\ns_mov_b32 s96, s72', 'label'), raw('s_memrealtime s[74:75]\ns_waitcnt lgkmcnt(0)\ns_mov_b32 s95, s74', 'label')]
        if g.stamps: srd(P, sPART, 26, 64 << 20)
        P += [salu('s_and_b32', sPar, sJ, 1 if g.rot else 0), salu('s_mul_i32', sXA, sPar, 512), salu('s_mul_i32', sXB, sPar, -640), salu('s_mul_i32', sT0, sPar, 8*294912),
              salu('s_add_u32', sFA, sColF, sT0), salu('s_mul_i32', sT1, sPar, -10*294912), salu('s_add_u32', sFB, sColF, sT1)]
        srd(P, sX, 4, 2048*1152); srd(P, sW1, 14, 576*9216); srd(P, sW3, 16, 576*9216 + 1024, -1024)
        if g.ord: P += g.prefetch13(0) + g.prefetch13(1)[6:] + g.dmaX(0) + (g.dmaX(1) if g.ord > 1 else []) + (g.dmaX(2) if g.ord > 2 else [])
        else: P += g.dmaX(0) + g.dmaW(0) + g.dmaW(1)
        if 'f' in g.dbg: P += [raw('s_memrealtime s[74:75]\ns_waitcnt lgkmcnt(0)\ns_mov_b32 s97, s74\ns_waitcnt vmcnt(0)\ns_memrealtime s[74:75]\ns_waitcnt lgkmcnt(0)\ns_mov_b32 s95, s74', 'label')]
        if g.pf and not g.xpf and not g.ord: P += g.prefetch13(0) + g.prefetch13(1)[6:]
        if g.pf and g.xpf:
            P += [salu('s_and_b32', sT1, sJ, 1), salu('s_lshl_b32', sT1, sT1, 6), salu('s_lshl_b32', sT0, sM, 7), salu('s_add_u32', sT0, sT0, sT1), salu('s_lshl_b32', sT1, sW, 4),
                  salu('s_add_u32', sT0, sT0, sT1), valu('v_and_b32', t0, 15, vLane), valu('v_add_u32', t0, sT0, t0), valu('v_mul_u32_u24', t0, 1152, t0), valu('v_lshrrev_b32', t1, 4, vLane),
                  valu('v_lshl_add_u32', t0, t1, 7, t0), vload('buffer_load_dword', v(T + 22), t0, sX, 0, off=128, tag='pf')]
            g.xpf2 = vload('buffer_load_dword', v(T + 22), t0, sX, 0, off=640, tag='pf')
            P += g.prefetch13(0) + [g.xpf2]
        if g.cpf:
            ca = v(T + 14, 2); t0 = v(T + 23)
            P += [raw('s_getpc_b64 s[72:73]\nL_pc:', 'salu', [], [s(72, 2)]), salu('s_lshr_b32', sT0, s(2), 3), salu('s_lshl_b32', sT0, sT0, 2), salu('s_add_u32', sT0, sT0, sW),
                  salu('s_mul_i32', sT0, sT0, 5), valu('v_min_u32', t0, 4, vLane), valu('v_add_u32', t0, sT0, t0), valu('v_lshlrev_b32', t0, 7, t0),
                  raw(f'v_min_u32 {t0}, L_end-L_pc-4, {t0}', 'valu', [t0], [t0]), valu('v_and_b32', t0, -4, t0), valu('v_mov_b32', ca[1], s(73)),
                  I(f'v_add_co_u32 {ca[0]}, vcc, s72, {t0}', 'valu', [t0, s(72)], [ca[0], {('s', 'vcc')}]),
                  I(f'v_addc_co_u32 {ca[1]}, vcc, 0, {ca[1]}, vcc', 'valu', [ca[1], {('s', 'vcc')}], [ca[1], {('s', 'vcc')}]),
                  I(f'global_load_dword {v(T + 22)}, {ca}, off', 'vld', [ca], [v(T + 22)], tag='pf', dep=40)]
        t0 = v(T + 16)
        srd(P, sQ, 6, 576*3456); srd(P, sQ2, 6, 576*3456 - 12800, 12800); srd(P, sW2, 18, 4608*1152); srd(P, sWO, 10, 576*1152 + 2048, -2048)
        srd(P, sKV, 26, WS_KV_BYTES, WS_KV); srd(P, sPART, 26, 64 << 20); srd(P, sDBG, 24, 256); srd(P, sMI, 20, 1152)
        P += [glue(scmp('s_cmp_ge_u32', sW, 2), salu('s_cselect_b32', sWH[0], s(16), s(14)), salu('s_cselect_b32', sWH[1], s(17), s(15))),
              salu('s_mov_b32', sWH[2], 576*9216), salu('s_mov_b32', sWH[3], '0x20000')]
        P += [salu('s_mul_i32', sQA, sPar, 8*110592), salu('s_mul_i32', sQB, sPar, -10*110592), salu('s_mul_i32', sT0, sPar, 8*294912), salu('s_add_u32', sHA, sColH, sT0),
              salu('s_mul_i32', sT0, sPar, -10*294912), salu('s_add_u32', sHB, sColH, sT0)]
        P += [salu('s_lshl_b32', sT0, sM, 8), salu('s_lshl_b32', sT1, sJ, 2), salu('s_add_u32', sT0, sT0, sT1), salu('s_add_u32', sT0, sT0, WS_FL), salu('s_mov_b32', sT1, OOB),
              glue(scmp('s_cmp_eq_u32', sW, 0), salu('s_cselect_b32', sFl, sT0, sT1), salu('s_cselect_b32', sExp, '0xffff', 0)),
              valu('v_mov_b32', t0, sT1), valu('v_mov_b32', t1, sFl), valu('v_cmp_eq_u32', 'vcc', 0, vLane), valu('v_mov_b32', t2, 0), valu('v_cndmask_b32', t0, t0, t1, 'vcc'),
              vstore('buffer_store_dword', t2, t0, sPART, 0, mods='sc1', tag='arm')]
        gv = [v(T + 8 + i) for i in range(3)]
        P += [salu('s_lshl_b32', sT0, sW, 7), valu('v_lshlrev_b32', t0, 1, vLane), valu('v_add_u32', t0, sT0, t0), salu('s_lshl_b32', sT1, sPar, 9)]
        for i in range(3):
            P += [valu('v_add_u32', t1, 512*i, t0), valu('v_add_u32', t2, sT1, t1), valu('v_subrev_u32', t3, 1152, t2), valu('v_min_u32', t2, t2, t3)]
            if i == 2: P += [valu('v_cmp_gt_u32', 'vcc', 1152, t1), valu('v_cndmask_b32', t2, t1, t2, 'vcc')]
            P += [vload('buffer_load_ushort', gv[i], t2, sMI, 0)]
        if g.pf and not g.qlate: P += g.prefetchQ()
        if g.tlb:
            P += [valu('v_mov_b32', t1, 0), salu('s_mul_i32', sT0, sJ, 331776), vload('buffer_load_dword', v(T + 22), t1, sW2, sT0, tag='pf'), salu('s_mul_i32', sT0, sJ, 41472),
                  vload('buffer_load_dword', v(T + 22), t1, sWO, sT0, off=2048, tag='pf'), salu('s_mul_i32', sT0, sJ, 49152), vload('buffer_load_dword', v(T + 22), t1, sKV, sT0, tag='pf'),
                  vload('buffer_load_dword', v(T + 22), t1, sDBG, 0, tag='pf'), salu('s_mul_i32', sT0, sM, 144*16384), valu('v_and_b32', t1, 3, vLane), valu('v_mul_u32_u24', t1, 786432 - 256, t1),
                  vload('buffer_load_dword', v(T + 22), t1, sPART, sT0, tag='pf')]
        if g.ord: P += g.dmaW(0) + g.dmaW(1)
        P += (g.dmaX(1) if g.ord < 2 else []) + g.dmaW(2) + g.dmaW(3)
        if g.early: P += g.dmaX(2) + g.dmaW(4) + g.dmaW(5)
        P += [valu('v_lshrrev_b32', t0, 4, vLane), valu('v_bfe_u32', t1, vLane, 2, 2), valu('v_lshlrev_b32', t2, 11, t0), valu('v_lshl_add_u32', t2, t1, 7, t2),
              valu('v_and_b32', t3, 3, vLane), valu('v_lshl_add_u32', t2, t3, 3, t2), valu('v_lshrrev_b32', t1, 1, t1), valu('v_and_b32', t0, 1, t0),
              valu('v_lshl_or_b32', t1, t0, 1, t1), salu('s_lshl_b32', sT1, sC, 1), valu('v_xor_b32', t1, sT1, t1), valu('v_lshlrev_b32', t1, 5, t1),
              valu('v_add_u32', t2, RING, t2), valu('v_add_u32', vRdF0, t2, t1), valu('v_xor_b32', t1, 32, t1), valu('v_add_u32', vRdF1, t2, t1)]
        P += [valu('v_and_b32', t0, 15, vLane), valu('v_lshrrev_b32', t1, 1, t0), valu('v_lshrrev_b32', t2, 4, vLane), valu('v_xor_b32', t1, t1, t2),
              valu('v_lshlrev_b32', t1, 4, t1), salu('s_lshl_b32', sT0, sR, 13), valu('v_lshlrev_b32', t0, 7, t0), valu('v_add_u32', t0, sT0, t0),
              valu('v_add_u32', rX0, t0, t1), valu('v_xor_b32', t1, 64, t1), valu('v_add_u32', rX1, t0, t1)]
        P += [salu('s_lshl_b32', sT0, sR, 12), salu('s_lshl_b32', sT1, sC, 13), salu('s_add_u32', sT0, sT0, sT1), valu('v_lshlrev_b32', t0, 4, vLane), valu('v_add_u32', vHw, sT0, t0)]
        main = P; P = []
        P += g.qkv_addrs()
        P += [salu('s_lshl_b32', sT0, sW, 8), valu('v_lshrrev_b32', t0, 5, vLane), valu('v_lshlrev_b32', t0, 7, t0), valu('v_bfe_u32', t1, vLane, 3, 2),
              valu('v_lshl_add_u32', t0, t1, 5, t0), valu('v_bfe_u32', t1, vLane, 2, 1), valu('v_lshl_add_u32', t0, t1, 10, t0), valu('v_and_b32', t1, 3, vLane),
              valu('v_lshl_add_u32', t0, t1, 3, t0), salu('s_add_u32', sT0, sT0, GA), valu('v_add_u32', t0, sT0, t0)]
        g.late = P; P = main
        g.gate_late = []
        for i in range(3):
            d = v(T + 12, 2)
            g.gate_late += [valu('v_lshl_or_b32', d[0], gv[i], 16, gv[i]), valu('v_mov_b32', d[1], d[0]), dsw('ds_write_b64', t0, d, off=2048*i)]
        return P
    def prefetch13(g, ch, t0=v(T + 21), d=v(T + 22)):
        rw = 144//g.nsh
        P = [salu('s_mul_i32', sT0, sIdx, 4*rw), salu('s_mul_i32', sT1, sW, rw), salu('s_add_u32', sT0, sT0, sT1), valu('v_min_u32', t0, rw - 1, vLane),
             valu('v_add_u32', t0, sT0, t0), valu('v_mul_u32_u24', t0, 9216, t0)]
        if ch < 4: P += [salu('s_add_u32', sT0, sColF, 128*ch)]
        else: P += [salu('s_mov_b32', sT0, sColH)]
        P += [vload('buffer_load_dword', d, t0, sW1, sT0, tag='pf'), vload('buffer_load_dword', d, t0, sW3, sT0, off=1024, tag='pf')]
        return P
    def prefetchQ(g):
        t0 = v(T + 21); t1 = v(T + 23); d = v(T + 22); d2 = v(T + 20); rw = 144//g.nsh
        P = [salu('s_mul_i32', sT0, sIdx, 4*rw), salu('s_mul_i32', sT1, sW, rw), salu('s_add_u32', sT0, sT0, sT1), valu('v_min_u32', t0, 17 if g.split else 53, vLane),
             valu('v_mul_u32_u24', t1, 43, t0), valu('v_lshrrev_b32', t1, 8, t1), valu('v_mul_u32_u24', d2, 6, t1), valu('v_sub_u32', t0, t0, d2),
             valu('v_add_u32', t1, sT0, t1), valu('v_mul_u32_u24', t1, 3456, t1), valu('v_lshrrev_b32', d2, 1, t0), valu('v_mul_u32_u24', d2, 1152, d2), valu('v_add_u32', t1, t1, d2),
             valu('v_and_b32', t0, 1, t0), valu('v_mul_u32_u24', t0, 68, t0), valu('v_add_u32', t1, t1, t0), salu('s_mul_i32', sT0, sJ, 72)]
        if g.split:
            P[-1] = salu('s_mul_i32', sSp, sJ, 72)
            for i in range(3): P += ([salu('s_add_u32', sSp, sSp, 3*3456)] if i else []) + [vload('buffer_load_dword', d, t1, sQ, sSp, tag='pf')]
            return spaced(P, 'pf', g.split)
        for i in range(rw//9): P += ([salu('s_add_u32', sT0, sT0, 9*3456)] if i else []) + [vload('buffer_load_dword', d, t1, sQ, sT0, tag='pf')]
        return P
    def prefetch2(g, t0, t1, d):
        k = 16//g.nsh
        P = [salu('s_mul_i32', sT0, sIdx, 162*k), salu('s_mul_i32', sT1, sW, 41*k), salu('s_add_u32', sT0, sT0, sT1), valu('v_min_u32', t0, 13 if g.split else 40, vLane),
             valu('v_add_u32', t0, sT0, t0), valu('v_lshlrev_b32', t0, 7, t0), salu('s_mul_i32', sT0, sJ, 331776)]
        for i in range(3 if g.split else k): P += ([salu('s_add_u32', sT0, sT0, (14 if g.split else 41)*128)] if i else []) + [vload('buffer_load_dword', d, t0, sW2, sT0, tag='pf')]
        P += [salu('s_mul_i32', sT0, sIdx, 21*k), salu('s_mul_i32', sT1, sW, 6*k), salu('s_add_u32', sT0, sT0, sT1), valu('v_min_u32', t1, 6*k - 1, vLane),
              valu('v_add_u32', t1, sT0, t1), valu('v_lshlrev_b32', t1, 7, t1), salu('s_mul_i32', sT0, sJ, 41472),
              vload('buffer_load_dword', d, t1, sWO, sT0, off=2048, tag='pf')]
        return spaced(P, 'pf', g.split) if g.split else P
    def qkv_addrs(g):
        t0, t1, t2, t3, t4 = [v(T + 16 + i) for i in range(5)]
        g.dQ = v(T + 24); g.rQ = [v(T + 25), v(T + 26), v(T + 27), v(T + 30)]; g.rQ3b = v(T + 28); g.isG = v(T + 29)
        P = []
        P += [valu('v_lshrrev_b32', t0, 4, vLane), salu('s_lshl_b32', sT1, sC, 2), valu('v_or_b32', t1, sT1, t0), valu('v_lshlrev_b32', t1, 1, t1),
              valu('v_and_b32', t2, 15, vLane), valu('v_xor_b32', t1, t1, t2),
              salu('s_lshl_b32', sT0, sW, 3), valu('v_add_u32', t0, sT0, t0), valu('v_mul_u32_u24', t0, 3456, t0),
              valu('v_cmp_le_u32', 'vcc', 6, t1), valu('v_cndmask_b32', t2, 0, v(T+31), 'vcc') ]
        P.insert(0, valu('v_mov_b32', v(T+31), 1))
        P += [valu('v_cmp_le_u32', 'vcc', 11, t1), valu('v_cndmask_b32', t3, 0, v(T+31), 'vcc'),
              valu('v_mul_u32_u24', t4, 6, t2), valu('v_sub_u32', t1, t1, t4), valu('v_mul_u32_u24', t4, 5, t3), valu('v_sub_u32', t1, t1, t4),
              valu('v_min_u32', t1, 4, t1), valu('v_add_u32', t2, t2, t3), valu('v_mul_u32_u24', t2, 1152, t2), valu('v_add_u32', t0, t0, t2),
              valu('v_lshrrev_b32', t3, 2, t1), valu('v_lshlrev_b32', t1, 4, t1), valu('v_lshlrev_b32', t3, 3, t3), valu('v_sub_u32', t1, t1, t3),
              salu('s_mul_i32', sT0, sJ, 72), valu('v_add3_u32', g.dQ, t0, t1, sT0)]
        def B(seg, n, c):
            b = 32*c + 8*n
            if b >= 64: b += 8
            return [0, 96, 176][seg] + b
        tabs = [[(0, i) for i in range(4)], [(0, 4), (2, 0), (2, 1), (2, 2)], [(1, i) for i in range(4)], [(1, 4), (2, 3), (2, 4), (2, 4)]]
        P += [valu('v_lshrrev_b32', t0, 4, vLane), valu('v_bfe_u32', t1, vLane, 2, 2), valu('v_lshlrev_b32', t2, 11, t0), valu('v_lshl_add_u32', t2, t1, 8, t2),
              valu('v_add_u32', t2, RING, t2), valu('v_and_b32', t0, 1, t0), valu('v_lshl_or_b32', t0, t0, 2, t1), valu('v_lshlrev_b32', t0, 5, t0),
              valu('v_and_b32', t1, 3, vLane), valu('v_lshlrev_b32', t1, 3, t1)]
        for b in range(4):
            pk = [sum(B(sg, n, c) << (8*i) for i, (sg, n) in enumerate(tabs[b])) for c in range(2)]
            dst = g.rQ[b] if b < 3 else g.rQ3b
            P += [salu('s_mov_b32', sT0, hex(pk[1])), glue(scmp('s_cmp_eq_u32', sC, 0), salu('s_cselect_b32', sT0, hex(pk[0]), sT0))]
            P += [valu('v_lshrrev_b32', t3, t1, sT0) if False else valu('v_bfe_u32', t3, sT0, t1, 8), valu('v_xor_b32', t3, t3, t0), valu('v_add_u32', dst, t2, t3)]
        P += [valu('v_and_b32', t1, 3, vLane), valu('v_cmp_eq_u32', 'vcc', 3, t1), valu('v_lshrrev_b32', t3, 2, vLane), valu('v_lshlrev_b32', t3, 3, t3),
              valu('v_add_u32', t3, GA, t3), valu('v_cndmask_b32', g.rQ3b, g.rQ3b, t3, 'vcc'), valu('v_cndmask_b32', g.isG, 0, v(T+31), 'vcc')]
        return P
    def dmaX(g, d):
        dX = [v(T), v(T + 1)]
        P = [salu('s_add_u32', 'm0', sMx, (d % 4)*16384)]
        for aa in range(4):
            P += [salu('s_add_u32', sOffX, sXA if d < 5 else sXB, d*128 + aa*8192), dma(dX[aa & 1], sX, sOffX, off=aa*1024, tag=('x', d))]
        return P
    def mkSA(g):
        n = 36 - g.lead; SA = []; a_ = b_ = 0
        for p in range(36):
            if a_ < 18 and (p >= n - 1 or a_*n <= p*18 or b_ >= a_): SA.append((0, a_)); a_ += 1
            else: SA.append((1, b_)); b_ += 1
        g.SA = SA; g.U = {ks: p for p, (ch, ks) in enumerate(SA) if ch == 0}
    def dmaW(g, Gk):
        ph, ks = divmod(Gk, 18)
        m0 = salu('s_add_u32', 'm0', sMb, slot(Gk))
        if Gk >= 90:
            i = Gk - 90
            return [m0, salu('s_add_u32', sOff, sHA if i < 5 else sHB, 2*i*32*9216), dma(g.dH0, sWH, sOff, tag=('w', Gk)), dma(g.dH1, sWH, sOff, off=1024, tag=('w', Gk))]
        if ph == 2:
            return [m0, salu('s_add_u32', sOff, sQA if ks < 10 else sQB, ks*32*3456), dma(g.dQ, sQ, sOff, tag=('w', Gk)), dma(g.dQ, sQ2, sOff, off=1024, tag=('w', Gk))]
        ch = [0, 1, None, 2, 3][ph]
        if Gk < 36: ch, ks = g.SA[Gk]
        return [m0, salu('s_add_u32', sOff, sFA if ks < 10 else sFB, ks*32*9216 + ch*128), dma(vDmaF, sW1, sOff, tag=('w', Gk)), dma(vDmaF, sW3, sOff, off=1024, tag=('w', Gk))]
    def wfrag(g, Gk, fi): return v(WF + (Gk % 2)*16 + fi*4, 4)
    def readsW(g, Gk):
        ph = Gk // 18; R_ = []
        for fi in range(4):
            f = g.wfrag(Gk, fi); pre = []
            if Gk >= 90: ad = g.rH; o = slot(Gk) + (fi >> 1)*1024 + (fi & 1)*4096; zo = 256
            elif ph == 2:
                ad = g.rQ[fi]; o = slot(Gk); zo = 1024
                if fi == 3:
                    ks = Gk - 36; c = (ks >> 3)*2048 + (ks & 7)*128 - slot(Gk)
                    pre = [salu('s_mov_b32', sT3, c), valu('v_mad_i32_i24', ad, g.isG, sT3, g.rQ3b)]
            else: ad = [vRdF0, vRdF1][fi >> 1]; o = slot(Gk) + (fi & 1)*1024; zo = 512
            R_.append((pre, dsr('ds_read_b64_tr_b16', f.sub(0, 2), ad, o), dsr('ds_read_b64_tr_b16', f.sub(2, 2), ad, o + zo)))
        return R_
    def readsX(g, ks):
        return [dsr('ds_read_b128', xf(ks, tb), v(T + 2 + (ks & 1)), ((ks >> 1) % 4)*16384 + tb*2048, tag=('x', ks)) for tb in range(4)]
    def accq(g, st, fi, tb): return v(ACC[st] + (fi*4 + tb)*4, 4)
    def fixed1(g):
        F = {}; ad = lambda i, x: F.setdefault(i, []).extend(x)
        g.pre_reads = []
        g.xiss = {}; g.xbusy = set()
        if g.lazy:
            g.xiss = {1: 2, 3: 3}; g.xbusy = {0, 2, 4}
            for i, Gk in enumerate((4, 5, 6)):
                m0, so, d0, d1 = g.dmaW(Gk)
                if i == 0: g.pre_reads += [m0, so]
                else: ad(3*i - 1, [m0, so])
                ad(3*i, [d0]); ad(3*i + 1 + (i < 2), [d1]) if False else ad(3*i + 1, [d1])
        for d in range(4, 9):
            last = g.U[2*(d - 4) + 1] - 1; Gb = last + (last % 2)
            while Gb + 1 in g.xiss: Gb += 2
            g.xiss[Gb + 1] = d; g.xbusy.add(Gb + 2)
            assert Gb + 2 < g.U[2*d] - 3, (d, Gb, g.U)
        for Gk in range(99):
            b = 16*Gk
            for fi, (pre, r0, r1) in enumerate(g.readsW(Gk)):
                for z, r in enumerate((r0, r1)):
                    p = b - 16 + 4*fi - 5 + 2*z
                    if p < 0: g.pre_reads.append(r)
                    else: ad(p, [r])
                if pre: ad(b - 16 + 5, pre)
            xd = Gk in g.xbusy
            if Gk % 2 == 0:
                tags = [('w', Gk + 2), ('w', Gk + 3)] + [('x', ks//2) for ks, u in g.U.items() if u in (Gk + 2, Gk + 3)]
                wx = [wait_rd(('x', ks)) for ks, u in g.U.items() if u == Gk + 1]
                ad(b + 9, [wait_vm(*tags)] + wx); ad(b + 10, [barrier()])
                if g.fine0 is not None and g.fine0 <= Gk < g.fine0 + 36:
                    ad(b + 8, [raw(f"s_memrealtime s[96:97]\ns_waitcnt lgkmcnt(0)\nv_writelane_b32 v4, s96, {(Gk - g.fine0)//2}" if False else f"s_memrealtime s[96:97]\ns_waitcnt lgkmcnt(0)\nv_mov_b32 v6, s96\nv_mov_b32 v7, s96\nv_mov_b32 v5, s99\nds_write_b64 v5, v[6:7] offset:{8*((Gk - g.fine0)//2)}", 'label')]) if False else None
                    ad(b + 8, [raw(f"s_memrealtime s[96:97]\ns_waitcnt lgkmcnt(0)\nv_writelane_b32 {g.vF0}, s96, {(Gk - g.fine0)//2}", 'label')])
                if Gk + 7 <= 98:
                    m0, so, d0, d1 = g.dmaW(Gk + 7)
                    if xd: ad(b + 11, [m0, so])
                    else: ad(b + 7, [m0]); ad(b + 11, [so])
                    ad(b + 12, [d0]); ad(b + 14, [d1])
            elif Gk + 7 <= 98:
                xr = Gk < 36
                m0, so, d0, d1 = g.dmaW(Gk + 7)
                ad(b + 1, [m0]); ad(b + 3, [so]); ad(b + (8 if xr else 4), [d0]); ad(b + (10 if xr else 8), [d1])
            if Gk in g.xiss:
                D = g.dmaX(g.xiss[Gk])
                ad(b + 11, D[0:2]); ad(b + 12, D[2:3]); ad(b + 13, D[3:4]); ad(b + 14, D[4:5]); ad(b + 15, D[5:6]); ad(b + 16, D[6:7]); ad(b + 16 + 7, D[7:8]); ad(b + 16 + 8, D[8:9])
        for ks, u in g.U.items():
            for tb, x in enumerate(g.readsX(ks)):
                if u == 0: g.pre_reads.append(x)
                else: ad(16*(u - 1) + 2*tb, [x])
        g.F1 = F
    def phase1(g, ph, streams, extra={}):
        G0 = ph*18; nk = {0: 36, 5: 9}.get(ph, 18); st = ph % 2; mf = []
        for k in range(nk):
            for fi in range(4):
                for q in range(4):
                    tb = q if fi % 2 == 0 else 3 - q
                    if ph == 5: ks = 2*k + (fi >> 1); d = g.accq(st, fi & 1, tb); first = (k == 0 and fi < 2)
                    elif ph == 0: st, ks = g.SA[k]; d = g.accq(st, fi, tb); first = (ks == 0)
                    else: ks = k; d = g.accq(st, fi, tb); first = (k == 0)
                    mf.append(mfma(d, g.wfrag(G0 + k, fi), xf(ks, tb), 0 if first else None))
        fx = {i - 16*G0: list(x) for i, x in g.F1.items() if 16*G0 <= i < 16*(G0 + nk)}
        for i, x in extra.items(): fx[i] = x + fx.get(i, [])
        g.rep.append(f"P{ph}")
        return pack(mf, fx, streams, rep=g.rep)
    def silu(g, st, ch):
        P = []; n = 0
        half = (ch == 4)
        for tb in range(4):
            hf = vHf[tb % 2]
            for e in range(1 if half else 2):
                gq = g.accq(st, 2*e, tb); uq = g.accq(st, 2*e + 1, tb); t = vE[4*(n % 2):4*(n % 2) + 4]; n += 1
                P += [valu('v_mul_f32', t[i], sNL, gq[i]) for i in range(4)]
                P += [valu('v_exp_f32', t[0], t[0]), valu('v_mul_f32', gq[0], gq[0], uq[0]), valu('v_exp_f32', t[1], t[1]), valu('v_mul_f32', gq[1], gq[1], uq[1]),
                      valu('v_exp_f32', t[2], t[2]), valu('v_mul_f32', gq[2], gq[2], uq[2]), valu('v_exp_f32', t[3], t[3]), valu('v_mul_f32', gq[3], gq[3], uq[3])]
                P += [valu('v_add_f32', t[i], 1.0, t[i]) for i in range(4)]
                P += [valu('v_rcp_f32', t[i], t[i]) for i in range(4)]
                P += [valu('v_mul_f32', gq[i], gq[i], t[i]) for i in range(4)]
                P += [valu('v_cvt_pk_bf16_f32', hf[2*e], gq[0], gq[1]), valu('v_cvt_pk_bf16_f32', hf[2*e + 1], gq[2], gq[3])]
                if not half: P += [dsw('ds_write_b64', vHw, hf.sub(2*e, 2), ch*16384 + tb*1024 + 8*e)]
            if half: P += [dsw('ds_write_b64', g.vHh, hf.sub(0, 2), tb*1024)]
            for e in range(0 if half else 2): pass
        return P
    def phiA_loads(g):
        t0, t1, t2 = vJ
        P = []; srd(P, sMI, 8, 32*648)
        P += [salu('s_lshl_b32', sT0, sJ, 1), salu('s_add_u32', sT0, sT0, sC), salu('s_mul_i32', sT0, sT0, 648), salu('s_mul_i32', sT1, sC, 72), salu('s_sub_u32', sT0, sT0, sT1),
              salu('s_mov_b32', sT2, OOB)]
        for ob in range(2):
            F = vPhiA[ob]
            P += [valu('v_and_b32', t2, 15, vLane)]
            if ob == 1: P += [valu('v_and_b32', t0, 11, t2), valu('v_cmp_eq_u32', 'vcc', 0, t0), valu('v_lshrrev_b32', t2, 2, t2), valu('v_add_u32', t2, 16, t2),
                              valu('v_mov_b32', t0, sT2), valu('v_lshlrev_b32', t2, 1, t2), valu('v_cndmask_b32', t2, t0, t2, 'vcc')]
            else: P += [valu('v_lshlrev_b32', t2, 1, t2)]
            P += [valu('v_add_u32', t2, sT0, t2), valu('v_lshrrev_b32', t0, 4, vLane), valu('v_cmp_eq_u32', 'vcc', 0, t0), valu('v_mul_u32_u24', t0, 144, t0),
                  valu('v_add_u32', t0, t0, t2), valu('v_mov_b32', t1, sT2), valu('v_add_u32', t2, 576, t2), valu('v_cndmask_b32', t1, t1, t2, 'vcc')]
            gl = glue(scmp('s_cmp_eq_u32', sC, 1), salu('s_cselect_b64', sMask, 'vcc', 0)); gl.rd |= {('s', 'vcc')}
            P += [gl, valu('v_mov_b32', t2, sT2), valu('v_cndmask_b32', t2, t0, t2, sMask)]
            for e in range(4): P += [vload('buffer_load_ushort', v(T + 8*ob + e), t2 if e < 2 else t0, sMI, 0, off=36*e)]
            P += [glue(scmp('s_cmp_eq_u32', sC, 0), salu('s_cselect_b32', sT1, sT2, 0)), valu('v_max_u32', t0, sT1, t1)]
            for e in range(4): P += [vload('buffer_load_ushort', v(T + 8*ob + 4 + e), t1 if e < 2 else t0, sMI, 0, off=36*e)]
        pk = [valu('v_lshl_or_b32', vPhiA[i >> 2][i & 3], v(T + 2*i + 1), 16, v(T + 2*i)) for i in range(8)]
        return P, pk
    def softmax(g, x, tmp, outq, mx, mn, s0, s1):
        P = []
        P += [valu('v_max3_f32', mx, x[0], x[1], x[2]), valu('v_min3_f32', mn, x[0], x[1], x[2])]
        for i in range(3, 17, 2): P += [valu('v_max3_f32', mx, mx, x[i], x[i+1]), valu('v_min3_f32', mn, mn, x[i], x[i+1])]
        P += [valu('v_max_f32', mx, mx, x[17]), valu('v_min_f32', mn, mn, x[17]), valu('v_mul_f32', mx, sNL, mx), valu('v_mul_f32', mn, sL, mn)]
        for i in range(18): P += [valu('v_fma_f32', tmp[i], x[i], sNL, mn), valu('v_fma_f32', x[i], x[i], sL, mx)]
        for i in range(18):
            P += [valu('v_exp_f32', x[i], x[i]), valu('v_exp_f32', tmp[i], tmp[i])]
            if i == 2: P += [valu('v_add_f32', s0, x[0], x[1]), valu('v_add_f32', s1, tmp[0], tmp[1])]
            if i > 2: P += [valu('v_add_f32', s0, s0, x[i-1]), valu('v_add_f32', s1, s1, tmp[i-1])]
        P += [valu('v_add_f32', s0, s0, x[17]), valu('v_add_f32', s1, s1, tmp[17]), valu('v_rcp_f32', s0, s0), valu('v_rcp_f32', s1, s1)]
        for i in range(18): P += [valu('v_mul_f32', x[i], x[i], s0), valu('v_mul_f32', tmp[i], tmp[i], s1)]
        P += [valu('v_cvt_pk_bf16_f32', outq[8], x[16], x[17])]
        for i in range(8): P += [valu('v_cvt_pk_bf16_f32', outq[i], x[2*i], x[2*i+1])]
        for i in range(9): P += [valu('v_cvt_pk_bf16_f32', outq[9 + i], tmp[2*i], tmp[2*i+1])]
        return P
    def attn_post(g):
        t0, t1, t2 = vJ; A = []
        blk = lambda b, tb: g.accq(0, b, tb)
        A += [salu('s_lshl_b32', sT0, sR, 8), salu('s_add_u32', sT0, sT0, LOGIT - 192), valu('v_lshlrev_b32', t1, 2, vLane), valu('v_add_u32', t0, sT0, t1),
              valu('v_add_u32', t1, DUMMY, t1), valu('v_cmp_le_u32', 'vcc', 48, vLane), valu('v_cndmask_b32', t0, t1, t0, 'vcc')]
        A += [dsw('ds_write_b32', t0, blk(3, tb)[0], 64*tb) for tb in range(4)]
        Pq = [v(T + 8*tb, 4) for tb in range(4)]; Pk = [v(T + 8*tb + 4, 4) for tb in range(4)]
        A += [salu('s_mul_i32', sT0, sC, 128*72), salu('s_mul_i32', sT1, sR, 64*72), salu('s_add_u32', sT0, sT0, sT1), salu('s_add_u32', sT0, sT0, VV),
              salu('s_lshl_b32', sT1, sC, 2), salu('s_sub_u32', sT1, sT0, sT1),
              valu('v_and_b32', t0, 15, vLane), valu('v_mul_u32_u24', t0, 72, t0), valu('v_lshrrev_b32', t1, 4, vLane), valu('v_lshl_add_u32', t1, t1, 3, t0),
              valu('v_add_u32', t1, sT1, t1), valu('v_add_u32', t0, sT0, t0), valu('v_add_u32', t2, 24, t1), valu('v_add_u32', vE[0], 48, t0),
              valu('v_cmp_gt_u32', 'vcc', 16, vLane), valu('v_cndmask_b32', t1, t1, vE[0], 'vcc'), valu('v_cndmask_b32', t2, t2, vE[0], 'vcc'),
              valu('v_cmp_le_u32', 'vcc', 48, vLane), valu('v_mov_b32', vE[1], '0x3f80'), valu('v_cndmask_b32', t2, t2, vE[0], 'vcc')]
        for tb in range(4):
            for b in range(4):
                d = (Pq if b < 2 else Pk)[tb]; q = blk(b, tb)
                A += [valu('v_cvt_pk_bf16_f32', d[2*(b & 1)], q[0], q[1]), valu('v_cvt_pk_bf16_f32', d[2*(b & 1) + 1], q[2], q[3])]
            if tb > 0: A += [valu('v_add_u32', t1, 1152, t1), valu('v_add_u32', t2, 1152, t2)]
            A += [dsw2(t1, Pq[tb][2], Pq[tb][3], 0, 1), dsw2(t2, Pk[tb][2], Pk[tb][3], 0, 1), dsw('ds_write_b32', t0, vE[1], 1152*tb + 44)]
            A += [mfma(blk(2, tb), vPhiA[0], Pk[tb], 0), mfma(blk(3, tb), vPhiA[1], Pk[tb], 0), mfma(blk(0, tb), vPhiA[0], Pq[tb], 0), mfma(blk(1, tb), vPhiA[1], Pq[tb], 0)]
        def transp(b, r):
            R_ = [blk(b, tb)[r] for tb in range(4)]
            return [perm('v_permlane32_swap_b32', R_[0], R_[2]), perm('v_permlane32_swap_b32', R_[1], R_[3]), perm('v_permlane16_swap_b32', R_[0], R_[1]), perm('v_permlane16_swap_b32', R_[2], R_[3])]
        segs = []
        for (b0, base, who) in ((2, PHIK, 'k'), (0, PHIQ, 'q')):
            Sg = []
            tr = [transp(b0, r) for r in range(4)] + [transp(b0 + 1, 0)]
            for i in range(4):
                for x in tr: Sg.append(x[i])
            x = [blk(b0, i >> 2)[i & 3] for i in range(16)] + [blk(b0 + 1, 0)[0], blk(b0 + 1, 1)[0]]
            tmp = [v(T + i) for i in range(18)]
            oq = [blk(b0 + 1, 2), blk(b0 + 1, 3), v(T + 20, 4), blk(b0 + 1, 0), blk(b0 + 1, 1)]
            outq = [oq[i >> 2][i & 3] for i in range(18)]
            Sg += g.softmax(x, tmp, outq, vE[0], vE[1], vE[2], vE[3])
            ta_ = vE[5]
            if who == 'q': Sg += [salu('s_mul_i32', sT3, sW, 5120), salu('s_add_u32', sT3, sT3, base)]
            else: Sg += [salu('s_lshl_b32', sT3, sC, 1), salu('s_add_u32', sT3, sT3, sR), salu('s_mul_i32', sT3, sT3, 5120), salu('s_add_u32', sT3, sT3, base)]
            Sg += [valu('v_mul_u32_u24', ta_, 80, vLane), valu('v_add_u32', ta_, sT3, ta_)]
            Sg += [dsw('ds_write_b64', ta_, oq[i >> 1].sub(2*(i & 1), 2), 8*i) for i in range(9)]
            segs.append(Sg)
        A += segs[0]; Q = segs[1]
        B = []
        ta, tb_, tv = vHf[0][0], vHf[0][1], vHf[0][2]
        B += [valu('v_lshrrev_b32', t0, 4, vLane), valu('v_bfe_u32', t1, vLane, 2, 2), valu('v_lshl_add_u32', t0, t0, 3, t1),
              valu('v_and_b32', t1, 3, vLane), salu('s_mul_i32', sT0, sC, 10240), salu('s_add_u32', sT0, sT0, PHIK), valu('v_mul_u32_u24', t2, 80, t0),
              valu('v_add_u32', tb_, sT0, t2), valu('v_lshl_add_u32', ta, t1, 4, tb_),
              salu('s_mul_i32', sT0, sC, 128*72), salu('s_add_u32', sT0, sT0, VV + 8), salu('s_lshl_b32', sT1, sR, 5), salu('s_add_u32', sT0, sT0, sT1),
              salu('s_sub_u32', sT1, 1, sR), valu('v_mul_u32_u24', t1, sT1, t1), valu('v_mul_u32_u24', t0, 72, t0), valu('v_lshl_add_u32', t0, t1, 3, t0), valu('v_add_u32', tv, sT0, t0)]
        D = [blk(2, 0), blk(2, 1), blk(2, 2)]
        fr = lambda ks, i: (v(ACC[0] + 48 + 4*i, 4) if ks % 2 == 0 else v(T + 24 + 4*(i & 1), 4) if i < 2 else v(ACC[0] + 44, 4) if i == 2 else vHf[1])
        def rd(ks):
            X = []
            for z in range(2):
                o = (32*ks + 4*z)
                X += [dsr('ds_read_b64_tr_b16', fr(ks, 3).sub(2*z, 2), tv, o*72), dsr('ds_read_b64_tr_b16', fr(ks, 0).sub(2*z, 2), ta, o*80),
                      dsr('ds_read_b64_tr_b16', fr(ks, 1).sub(2*z, 2), ta, o*80 + 8), dsr('ds_read_b64_tr_b16', fr(ks, 2).sub(2*z, 2), tb_, o*80 + 64)]
            return X
        mm = lambda ks: [mfma(D[i], fr(ks, i), fr(ks, 3), 0 if ks == 0 else None) for i in range(3)]
        B += rd(0) + rd(1) + mm(0) + rd(2) + mm(1) + rd(3) + mm(2) + mm(3)
        C = []
        q1, q2_ = vHf[1], v(ACC[0] + 44, 4)
        C += [salu('s_lshl_b32', sT0, sJ, 1), salu('s_add_u32', sT0, sT0, sC), salu('s_lshl_b32', sT0, sT0, 4), salu('s_add_u32', sT0, sT0, sM), salu('s_mul_i32', sT0, sT0, 1536),
              salu('s_mov_b32', sT2, OOB), glue(scmp('s_cmp_eq_u32', sR, 1), salu('s_cselect_b64', sMask, -1, 0)),
              valu('v_lshlrev_b32', t0, 4, vLane), valu('v_and_b32', t1, 15, vLane), valu('v_lshrrev_b32', t2, 4, vLane), valu('v_cmp_gt_u32', 'vcc', 3, t1),
              valu('v_mul_u32_u24', t2, 3, t2), valu('v_add_u32', t1, t1, t2), valu('v_lshlrev_b32', t1, 4, t1), valu('v_add_u32', t1, 1024 + 256, t1), valu('v_mov_b32', t2, sT2),
              valu('v_cndmask_b32', t1, t2, t1, 'vcc'), valu('v_cndmask_b32', ta, t0, t1, sMask),
              valu('v_add_u32', t0, 1024, t0), valu('v_add_u32', t1, 192, t1), valu('v_cndmask_b32', t0, t0, t1, sMask), valu('v_cmp_gt_u32', 'vcc', 16, vLane), valu('v_cndmask_b32', tb_, t2, t0, 'vcc')]
        cv = lambda d, x, y: valu('v_cvt_pk_bf16_f32', d, x, y)
        C += [cv(q1[0], D[0][0], D[0][1]), cv(q1[1], D[0][2], D[0][3]), cv(q1[2], D[1][0], D[1][1]), cv(q1[3], D[1][2], D[1][3]),
              cv(q2_[0], D[2][0], D[2][1]), cv(q2_[1], D[2][2], D[2][3]), cv(q2_[2], D[2][0], D[2][1]), cv(q2_[3], D[2][2], D[2][3]),
              vstore('buffer_store_dwordx4', q1, ta, sKV, sT0, mods='sc1', tag='kv'), vstore('buffer_store_dwordx4', q2_, tb_, sKV, sT0, mods='sc1', tag='kv')]
        return A, Q, B, C
    def flag(g, t0, t1):
        return [salu('s_lshl_b32', sT0, sJ, 4), salu('s_mov_b32', sT1, OOB), glue(scmp('s_cmp_eq_u32', sW, 0), salu('s_cselect_b32', sT0, sT0, sT1)),
                valu('v_mov_b32', t0, sT1), valu('v_cmp_eq_u32', 'vcc', 0, vLane), valu('v_mov_b32', t1, sT0), valu('v_cndmask_b32', t0, t0, t1, 'vcc'), valu('v_mov_b32', t1, 1),
                I(f"buffer_atomic_add {t1}, {t0}, {sDBG}, 0 offen", 'vst', [t0, t1, sDBG], [], tag='flag', dep=set())]
    def half_addrs(g):
        t0, t1, t2 = vJ
        g.dH0, g.dH1, g.rH, g.vHh = v(8), v(9), v(10), v(11)
        P = [salu('s_lshl_b32', sT0, sC, 4), valu('v_lshrrev_b32', t0, 2, vLane), valu('v_add_u32', t0, sT0, t0), valu('v_mul_u32_u24', t0, 9216, t0),
             valu('v_bfe_u32', t1, vLane, 1, 1), valu('v_lshrrev_b32', t2, 5, vLane), valu('v_xor_b32', t1, t1, t2), valu('v_lshl_add_u32', t0, t1, 5, t0),
             valu('v_and_b32', t1, 1, vLane), valu('v_lshl_add_u32', g.dH0, t1, 4, t0), valu('v_add_u32', g.dH1, 32*9216 - 1024, g.dH0),
             valu('v_lshrrev_b32', t0, 5, vLane), valu('v_lshlrev_b32', t0, 11, t0), valu('v_bfe_u32', t1, vLane, 4, 1), valu('v_lshl_add_u32', t0, t1, 9, t0),
             valu('v_xor_b32', t1, sC, t1), valu('v_lshl_add_u32', t0, t1, 5, t0), valu('v_bfe_u32', t1, vLane, 2, 2), valu('v_lshl_add_u32', t0, t1, 6, t0),
             valu('v_and_b32', t1, 3, vLane), valu('v_lshl_add_u32', t0, t1, 3, t0), valu('v_add_u32', g.rH, RING, t0),
             salu('s_lshl_b32', sT0, sR, 12), salu('s_lshl_b32', sT1, sC, 3), salu('s_add_u32', sT0, sT0, sT1), salu('s_add_u32', sT0, sT0, 65536),
             valu('v_lshlrev_b32', t0, 4, vLane), valu('v_add_u32', g.vHh, sT0, t0)]
        return P

    def check(g, name, res, addr, srd_, thr):
        g.tails.append("\n".join([f"L_{name}_spin:", "s_mov_b32 s4, 0x40000", f"L_{name}_s2:", f"buffer_load_dword {res}, {addr}, {srd_}, 0 offen sc1", "s_waitcnt vmcnt(0)",
                          f"v_cmp_le_u32 vcc, {thr}, {res}", "s_sub_u32 s4, s4, 1", "s_cmp_eq_u32 s4, 0", f"s_cbranch_scc1 L_{name}_ok", "s_nop 1",
                          f"s_cmp_eq_u32 vcc_lo, {sExp}", f"s_cbranch_scc0 L_{name}_s2", f"s_branch L_{name}_ok"]))
        return [valu('v_cmp_le_u32', 'vcc', thr, res),
                raw(f"s_cmp_eq_u32 vcc_lo, {sExp}\ns_cbranch_scc0 L_{name}_spin\nL_{name}_ok:", 'salu', [{('s', 'vcc')}, res, addr], [res], cost=2)]
    def kv_gather(g):
        t0, t1, t2 = vJ
        poll0 = [salu('s_mov_b32', sT1, OOB), glue(scmp('s_cmp_eq_u32', sW, 0), salu('s_cselect_b32', sT0, 0, sT1)), valu('v_lshlrev_b32', t0, 4, vLane), valu('v_max_u32', t0, sT0, t0),
                 vload('buffer_load_dword', t1, t0, sDBG, 0, mods='sc1', lat=30)]
        poll1 = g.check('kv', t1, t0, sDBG, 16)
        buf = [v(T + 4*i, 4) for i in range(6)] + [v(232 + 4*i, 4) for i in range(6)]
        g.rA = v(228, 4)
        e0, e1, e2 = v(224), v(225), v(226)
        sel = [valu('v_and_b32', e0, 1, vLane), valu('v_lshlrev_b32', e0, 4, e0), valu('v_mov_b32', e2, '0x3f80'), valu('v_lshlrev_b32', e0, e0, e2), valu('v_and_b32', e1, 14, vLane)]
        for d in range(4): sel += [valu('v_cmp_eq_u32', 'vcc', 4*d, e1), valu('v_cndmask_b32', g.rA[d], 0, e0, 'vcc')]
        L1 = [salu('s_lshl_b32', sT0, sJ, 1), salu('s_add_u32', sT0, sT0, sC), salu('s_mul_i32', sT0, sT0, 24576), salu('s_mul_i32', sT1, sR, 768), salu('s_add_u32', sT0, sT0, sT1),
              valu('v_lshrrev_b32', t0, 4, vLane), valu('v_mul_u32_u24', t0, 1536, t0), valu('v_and_b32', t1, 15, vLane), valu('v_lshl_add_u32', t0, t1, 4, t0)]
        for i in range(4):
            if i: L1 += [salu('s_add_u32', sT0, sT0, 6144)]
            L1 += [vload('buffer_load_dwordx4', buf[4*gr + i], t0, sKV, sT0, off=256*gr, mods='sc1', lat=g.kvlat) for gr in range(3)]
        D = [v(224, 4), buf[0], buf[1]]
        L2 = [salu('s_mul_i32', sT0, sC, 1536), salu('s_mul_i32', sT1, sR, 768), salu('s_add_u32', sT0, sT0, sT1), salu('s_add_u32', sT0, sT0, KVE),
              valu('v_lshrrev_b32', t2, 4, vLane), valu('v_lshlrev_b32', t2, 2, t2), valu('v_lshl_add_u32', t2, t1, 4, t2), valu('v_add_u32', t2, sT0, t2)]
        for gr in range(3): L2 += [mfma(D[gr], g.rA, buf[4*gr + i], 0 if i == 0 else None) for i in range(4)]
        for gr in range(3): L2 += [valu('v_cvt_pk_bf16_f32', D[gr][0], D[gr][0], D[gr][1]), dsw('ds_write_b32', t2, D[gr][0], 256*gr)]
        return poll0, poll1, sel, L1, L2
    def o_part(g):
        t0, t1, t2 = vJ; P = []
        R_ = v(104, 12); A01, A11, A00, A10 = R_.sub(0, 4), R_.sub(2, 4), R_.sub(4, 4), R_.sub(8, 4)
        q = [v(T + 4*i, 4) for i in range(6)] + [v(96, 4), v(100, 4)]
        P += [salu('s_mul_i32', sT0, sC, 1536), salu('s_add_u32', sT0, sT0, KVE), valu('v_lshlrev_b32', t0, 4, vLane), valu('v_add_u32', t0, sT0, t0), dsr('ds_read_b128', A00, t0, 0),
              valu('v_and_b32', t0, 3, vLane), valu('v_min_u32', t0, 2, t0), valu('v_lshrrev_b32', t1, 4, vLane), valu('v_mul_u32_u24', t1, 3, t1), valu('v_add_u32', t1, t1, t0),
              valu('v_lshlrev_b32', t1, 4, t1), valu('v_add_u32', t1, sT0, t1), valu('v_lshlrev_b32', t0, 4, t0), valu('v_add_u32', t0, sT0, t0),
              valu('v_and_b32', t2, 15, vLane), valu('v_lshlrev_b32', t2, 4, t2), valu('v_add_u32', t2, sT0, t2),
              dsr('ds_read_b128', A10, t1, 1024 + 256), dsr('ds_read_b64', A01.sub(0, 2), t2, 1024), dsr('ds_read_b64', A11.sub(0, 2), t0, 1024 + 448)]
        E = [v(236 + i) for i in range(4)]; Bq = [a(176 + 4*i, 4) for i in range(4)]; B1 = [v(240 + 4*i, 4) for i in range(4)]
        P += [salu('s_lshl_b32', sT0, sR, 8), salu('s_add_u32', sT0, sT0, LOGIT), valu('v_and_b32', t0, 15, vLane), valu('v_lshlrev_b32', t1, 2, t0), valu('v_add_u32', t1, sT0, t1)]
        P += [dsr('ds_read_b32', E[tb], t1, 64*tb) for tb in range(4)]
        P += [salu('s_mul_i32', sT0, sW, 5120), salu('s_add_u32', sT0, sT0, PHIQ), valu('v_mul_u32_u24', t0, 80, t0), valu('v_add_u32', t0, sT0, t0),
              valu('v_lshrrev_b32', t1, 4, vLane), valu('v_lshl_add_u32', t1, t1, 4, t0)]
        for tb in range(4): P += [dsr('ds_read_b128', Bq[tb], t1, 1280*tb), dsr('ds_read_b64', B1[tb].sub(0, 2), t0, 1280*tb + 64)]
        cv = lambda d, x: [valu('v_cvt_pk_bf16_f32', d[0], x[0], x[1]), valu('v_cvt_pk_bf16_f32', d[1], x[2], x[3])]
        P += [valu('v_cmp_gt_u32', 'vcc', 16, vLane), salu('s_mov_b32', sT2, '0x42700000')]
        for tb in range(4):
            P += [valu('v_cndmask_b32', B1[tb][0], 0, B1[tb][0], 'vcc'), valu('v_cndmask_b32', B1[tb][1], 0, B1[tb][1], 'vcc'), valu('v_mov_b32', B1[tb][2], 0), valu('v_mov_b32', B1[tb][3], 0),
                  valu('v_min_f32', E[tb], sT2, E[tb]), valu('v_mul_f32', E[tb], sL, E[tb]), valu('v_exp_f32', E[tb], E[tb])]
        o0 = [q[2*tb] for tb in range(4)]; o1 = [q[2*tb + 1] for tb in range(4)]
        for tb in range(4): P += [mfma(o0[tb], A00, Bq[tb], 0), mfma(o1[tb], A10, Bq[tb], 0)]
        for tb in range(4): P += [mfma(o0[tb], A01, B1[tb]), mfma(o1[tb], A11, B1[tb])]
        P += [salu('s_mul_i32', sT0, sW, 5120), salu('s_add_u32', sT0, sT0, PHIQ), valu('v_lshlrev_b32', t0, 3, vLane), valu('v_add_u32', t0, sT0, t0),
              valu('v_lshlrev_b32', t1, 2, vLane), valu('v_add_u32', t1, sT0, t1), salu('s_mov_b32', sT2, '0x358637bd')]
        for tb in range(4): P += [valu('v_add_f32', o1[tb][2], sT2, o1[tb][2])]
        for tb in range(4): P += [valu('v_rcp_f32', o1[tb][2], o1[tb][2])]
        for tb in range(4): P += [valu('v_mul_f32', E[tb], E[tb], o1[tb][2])]
        for tb in range(4):
            P += [valu('v_mul_f32', o0[tb][k], o0[tb][k], E[tb]) for k in range(4)] + [valu('v_mul_f32', o1[tb][k], o1[tb][k], E[tb]) for k in range(2)]
            P += cv(o0[tb], o0[tb]) + [valu('v_cvt_pk_bf16_f32', o1[tb][0], o1[tb][0], o1[tb][1]), dsw('ds_write_b64', t0, o0[tb].sub(0, 2), 512*tb),
                  *([] if g.k4 else [valu('v_cndmask_b32', o1[tb][0], 0, o1[tb][0], 'vcc')]), dsw('ds_write_b32', t1, o1[tb][0], 2048 + 256*tb)]
        return P
    def hf(g, ks, tb): return a((ks*4 + tb)*4, 4)
    def h_reads(g, kss, vH, vH8):
        return [dsr('ds_read_b128', g.hf(ks, tb), vH8 if ks == 8 else vH, (0 if ks == 8 else ks*8192) + tb*1024) for ks in kss for tb in range(4)]
    def o_reads(g):
        t0, t1, t2 = vJ
        P = [salu('s_mul_i32', sT0, sR, 10240), salu('s_add_u32', sT0, sT0, PHIQ), valu('v_lshlrev_b32', t0, 3, vLane), valu('v_add_u32', t0, sT0, t0),
             valu('v_lshlrev_b32', t1, 2, vLane), valu('v_add_u32', t1, sT0, t1)]
        Rd = []
        if g.k4:
            P[-2:] = [valu('v_lshrrev_b32', t1, 4, vLane), valu('v_lshlrev_b32', t1, 8, t1), valu('v_and_b32', t2, 15, vLane), valu('v_lshl_add_u32', t1, t2, 2, t1), valu('v_add_u32', t1, sT0, t1)]
            for tb in range(4): Rd += [dsr('ds_read_b64', g.hf(9, tb).sub(0, 2), t0, 512*tb), dsr('ds_read_b64', g.hf(9, tb).sub(2, 2), t0, 5120 + 512*tb)]
            return P, Rd + [dsr('ds_read_b32', a(160), t1, 2048), dsr('ds_read_b32', a(161), t1, 5120 + 2048)]
        for tb in range(4):
            Rd += [dsr('ds_read_b64', g.hf(9, tb).sub(0, 2), t0, 512*tb), dsr('ds_read_b64', g.hf(9, tb).sub(2, 2), t0, 5120 + 512*tb),
                   dsr('ds_read_b32', g.hf(10, tb)[0], t1, 2048 + 256*tb), dsr('ds_read_b32', g.hf(10, tb)[1], t1, 5120 + 2048 + 256*tb)]
            P += [valu('v_accvgpr_write_b32', g.hf(10, tb)[2], 0), valu('v_accvgpr_write_b32', g.hf(10, tb)[3], 0)]
        return P, Rd
    def g2_dma_addrs(g):
        t0, t1, t2 = vJ
        g.dW2 = [v(12 + i) for i in range(4)]; g.dO9 = v(1); g.dO10 = v(13)
        P = [valu('v_bfe_u32', t1, vLane, 1, 2), valu('v_lshrrev_b32', t2, 4, vLane), valu('v_xor_b32', t1, t1, t2), valu('v_lshlrev_b32', t1, 5, t1),
             valu('v_and_b32', t2, 1, vLane), valu('v_lshl_add_u32', t1, t2, 4, t1),
             salu('s_lshl_b32', sT0, sW, 3), valu('v_lshrrev_b32', t0, 3, vLane), valu('v_add_u32', t2, sT0, t0), valu('v_mul_u32_u24', t2, 1152, t2), valu('v_add_u32', g.dW2[0], t2, t1)]
        P += [salu('s_mul_i32', sT0, sR, 2304), salu('s_add_u32', sT0, sT0, 2048), valu('v_add_u32', g.dO9, sT0, g.dW2[0]),
              valu('v_and_b32', t0, 3, t0), valu('v_lshrrev_b32', t2, 1, t0), valu('v_lshl_add_u32', t0, t2, 4, t0), valu('v_add_u32', t0, 16, t0), valu('v_mul_u32_u24', t0, 1152, t0),
              valu('v_add_u32', t0, 2048, t0), valu('v_add_u32', g.dO10, t0, t1),
              salu('s_mul_i32', sColF, sRowF, 1152), salu('s_mul_i32', sRowH, sRowH, 1152), salu('s_mul_i32', sOffX, sJ, 41472), salu('s_lshl_b32', sMx, sW, 10)]
        return P
    RB = [RING, 0, 98304]
    BARS = [4, 10, 14, 20, 26] + [x for n in range(3, 9) for x in (11*n - 2, 11*n + 4)] + [97]
    def g2_dma(g, q):
        n, ks = g.SEQ[q]; tg = ('g2', q); P = [salu('s_add_u32', 'm0', sMx, g.SL[q])]
        if ks >= 9: return P + [salu('s_add_u32', sOff, sOffX, n*128), dma(g.dO9 if ks == 9 else g.dO10, sWO, sOff, tag=tg)]
        return P + [salu('s_add_u32', sOff, sColF if ks < 8 else sRowH, n*128 + (ks*36864 if ks < 8 else 0)), dma(g.dW2[0], sW2, sOff, tag=tg)]
    def plan_slots(g):
        A_ = [RING + 4096*i for i in range(16)]; free = A_[4:] + [4096*i for i in range(12)]; g.SL = {}; g.ISS = {}; q = 0; N = 99; used = []
        for b in [-2, -1] + g.BARS:
            if b == -1: free += A_[:4]
            if b == 14: free += [4096*i for i in range(12, 16)]
            if b == 26: free += [MISC + 4096*i for i in range(2 if g.own else 6)]
            if b >= 0:
                free += [sl for (p, sl) in used if p <= b - 1]; used = [(p, sl) for (p, sl) in used if p > b - 1]
            nx = next((x for x in g.BARS if x > b), N); lim = {-2: 12, -1: 6}.get(b, int((nx - b)*g.drate + 0.5))
            L = []
            while free and q < N and len(L) < lim: sl = free.pop(0); g.SL[q] = sl; used.append((q, sl)); L.append(q); q += 1
            g.ISS[b] = L
        assert q == N
    def g2_rd_addrs(g):
        t0, t1, t2 = vJ
        g.r2 = [[v(T + 24), v(T + 25)], [v(T + 26), v(T + 27)], [v(112), v(113)]]; g.r10 = [[v(T + 28), v(T + 29)], [v(T + 30), v(T + 31)], [v(114), v(115)]]
        g.vP = [v(116 + i) for i in range(4)]
        t3 = g.r2[0][0]
        P = [valu('v_lshrrev_b32', t0, 5, vLane), valu('v_lshlrev_b32', t0, 10, t0), valu('v_bfe_u32', t1, vLane, 2, 3), valu('v_lshl_add_u32', t0, t1, 7, t0),
             valu('v_and_b32', t2, 3, vLane), valu('v_lshl_add_u32', t0, t2, 3, t0), valu('v_lshrrev_b32', t1, 1, t1), salu('s_lshl_b32', sT1, sC, 1), valu('v_xor_b32', t1, sT1, t1),
             valu('v_lshlrev_b32', t1, 5, t1), valu('v_xor_b32', t3, 32, t1), valu('v_add_u32', g.r2[1][0], t0, t1), valu('v_add_u32', g.r2[1][1], t0, t3),
             valu('v_bfe_u32', t1, vLane, 2, 2), valu('v_lshlrev_b32', t0, 7, t1), valu('v_lshl_add_u32', t0, t2, 3, t0), valu('v_lshrrev_b32', t1, 1, t1), valu('v_xor_b32', t1, sT1, t1),
             valu('v_lshlrev_b32', t1, 5, t1), valu('v_xor_b32', t3, 32, t1), salu('s_lshl_b32', sT0, sW, 10),
             valu('v_add3_u32', g.r10[1][0], t0, t1, sT0), valu('v_add3_u32', g.r10[1][1], t0, t3, sT0)]
        for e in range(2): P += [valu('v_add_u32', g.r2[0][e], g.RB[0], g.r2[1][e]), valu('v_add_u32', g.r10[0][e], g.RB[0], g.r10[1][e])]
        Q = []
        for e in range(2): Q += [valu('v_add_u32', g.r2[2][e], g.RB[2], g.r2[1][e]), valu('v_add_u32', g.r10[2][e], g.RB[2], g.r10[1][e])]
        Q += [salu('s_mul_i32', sT0, sM, 144), salu('s_lshl_b32', sT1, sC, 3), salu('s_add_u32', sT0, sT0, sT1), salu('s_lshl_b32', sT1, sR, 2), salu('s_add_u32', sT0, sT0, sT1),
              salu('s_lshl_b32', sT0, sT0, 4), salu('s_add_u32', sT0, sT0, sJ), salu('s_lshl_b32', sT0, sT0, 10), valu('v_lshlrev_b32', t0, 4, vLane), valu('v_add_u32', g.vP[0], sT0, t0)]
        if g.tokm: Q[-2:] = [valu('v_and_b32', t0, 15, vLane), valu('v_lshlrev_b32', t0, 6, t0), valu('v_lshrrev_b32', t1, 4, vLane), valu('v_lshl_add_u32', t0, t1, 4, t0), valu('v_add_u32', g.vP[0], sT0, t0)]
        Q += [valu('v_add_u32', g.vP[i], 16384*i, g.vP[0]) for i in range(1, 4)]
        return P, Q
    def red_setup(g):
        t0, t1, t2 = vJ
        g.vLd, g.vOut, g.vS, g.vPA, g.vPR, g.vFA, g.vFV = [v(120 + i) for i in range(7)]
        g.rD = v(224, 4)
        P = []; srd(P, sOUT, 22, 2048*1152)
        P += [salu('s_lshr_b32', sT0, sJ, 1), salu('s_lshl_b32', sT0, sT0, 4), *([salu('s_lshl_b32', sT1, sW, 2), salu('s_add_u32', sT0, sT0, sT1), valu('v_bfe_u32', t0, vLane, 2, 2)] if g.tokm else [valu('v_and_b32', t0, 15, vLane)]),
              valu('v_add_u32', t0, sT0, t0), valu('v_lshlrev_b32', t1, 2, t0), valu('v_add_u32', t1, LOGIT, t1), dsr('ds_read_b32', g.vS, t1, 0),
              salu('s_lshl_b32', sT0, sM, 7), valu('v_add_u32', t0, sT0, t0), valu('v_mul_u32_u24', t0, 1152, t0), *([valu('v_and_b32', t1, 3, vLane), valu('v_lshl_add_u32', t0, t1, 3, t0)] if g.tokm else [salu('s_lshl_b32', sT0, sW, 3), valu('v_add_u32', t0, sT0, t0)]),
              valu('v_lshrrev_b32', t1, 5, vLane), valu('v_lshl_add_u32', t0, t1, 5, t0), valu('v_bfe_u32', t1, vLane, 4, 1), valu('v_lshl_add_u32', t0, t1, 2, t0),
              salu('s_and_b32', sT1, sJ, 1), salu('s_lshl_b32', sT0, sT1, 6), valu('v_add_u32', g.vOut, sT0, t0),
              salu('s_lshl_b32', sT1, sT1, 3), salu('s_mul_i32', sT0, sM, 144), salu('s_add_u32', sT0, sT0, sT1), salu('s_lshr_b32', sT1, sJ, 1), salu('s_add_u32', sT0, sT0, sT1),
              salu('s_lshl_b32', sT0, sT0, 14), salu('s_lshl_b32', sT1, sW, 8), salu('s_add_u32', sT0, sT0, sT1), valu('v_lshrrev_b32', t0, 4, vLane), valu('v_lshlrev_b32', t0, 10, t0),
              valu('v_and_b32', t1, 15, vLane), valu('v_lshl_add_u32', t0, t1, 4, t0), valu('v_add_u32', g.vLd, sT0, t0),
              salu('s_mov_b32', sT1, OOB), valu('v_mov_b32', t0, sT1), valu('v_mov_b32', t2, sFl), valu('v_cmp_eq_u32', 'vcc', 0, vLane), salu('s_andn2_b32', sT0, sFl, 255),
              valu('v_cndmask_b32', g.vFA, t0, t2, 'vcc'), valu('v_lshlrev_b32', t2, 2, vLane), valu('v_add_u32', t2, sT0, t2), valu('v_cmp_gt_u32', 'vcc', 16, vLane),
              salu('s_mov_b32', sT2, '0x42700000'), valu('v_cndmask_b32', g.vPA, t0, t2, 'vcc'),
              valu('v_min_f32', g.vS, sT2, g.vS), valu('v_mul_f32', g.vS, sL, g.vS), valu('v_exp_f32', g.vS, g.vS), valu('v_add_f32', g.vS, 1.0, g.vS), valu('v_rcp_f32', g.vS, g.vS),
              ]
        return P
    def rbuf(g, c, i): return v(T + 4*i, 4) if (c == 5 and c not in g.tailc) else a((176 + c*16 if c < 5 else (c - 5)*16) + 4*i, 4)
    def red_flag(g, val): return [valu('v_mov_b32', g.vFV, val), vstore('buffer_store_dword', g.vFV, g.vFA, sPART, 0, mods='sc1', tag='fl')]
    def red_poll(g): return [vload('buffer_load_dword', g.vPR, g.vPA, sPART, 0, mods='sc1', lat=30)]
    def red_ld(g, c):
        P = []
        if g.own: return [salu('s_mov_b32', sT2, c*262144)] + [vload('buffer_load_dwordx4', g.rbuf(c, i), g.vL4[i], sPART, sT2, mods='sc1', lat=36) for i in range(4)]
        for i in range(4): P += [salu('s_mov_b32', sT2, c*262144 + i*4096), vload('buffer_load_dwordx4', g.rbuf(c, i), g.vLd, sPART, sT2, mods='sc1', lat=36)]
        return P
    def red_m(g, c):
        D = g.rD
        o_ = [dsr('ds_read_b128', v(24, 4), v(29), c*1024), mfma(D, v(20, 4), v(24, 4), 0)] if g.own else []
        return o_ + [mfma(D, g.rA, g.rbuf(c, i), 0 if (i == 0 and not g.own) else None) for i in range(4)] + \
               [valu('v_mul_f32', D[0], D[0], g.vS), valu('v_mul_f32', D[1], D[1], g.vS), valu('v_cvt_pk_bf16_f32', D[0], D[0], D[1]), vstore('buffer_store_dword', D[0], g.vOut, sOUT, 0, off=c*128, mods=g.omods)]
    def own_setup(g):
        t0, t1, t2 = vJ; g.vL4 = [g.vLd, v(30), v(31), v(11)]; g.sOw = s(38)
        P = [salu('s_bfe_u32', sT0, sJ, '0x20001')]
        for tb in range(1, 4): P += [glue(scmp('s_cmp_eq_u32', sT0, tb), salu('s_cselect_b64', s(30 + 2*tb, 2), -1, 0))]
        P += [salu('s_lshr_b32', sT1, sJ, 3), salu('s_lshl_b32', sT1, sT1, 1), salu('s_and_b32', sT2, sJ, 1), salu('s_add_u32', sT1, sT1, sT2),
              glue(scmp('s_cmp_eq_u32', sT1, sW), salu('s_cselect_b32', g.sOw, 1024, 0), salu('s_cselect_b32', sT1, 0, 9216), salu('s_cselect_b32', sT0, sT0, 7)), salu('s_add_u32', sT1, sT1, OWN),
              valu('v_and_b32', t0, 15, vLane), valu('v_lshrrev_b32', t1, 1, t0), valu('v_lshrrev_b32', t2, 4, vLane), valu('v_add_u32', t2, t1, t2), valu('v_and_b32', t2, 3, t2),
              valu('v_lshlrev_b32', t1, 6, t0), valu('v_lshl_add_u32', t1, t2, 4, t1), valu('v_add_u32', v(28), sT1, t1),
              salu('s_lshl_b32', sT1, sW, 8), salu('s_add_u32', sT1, sT1, OWN), salu('s_lshl_b32', sT2, sW, 1), valu('v_lshrrev_b32', t1, 3, t0), valu('v_add3_u32', t1, t1, t0, sT2),
              valu('v_and_b32', t1, 3, t1), valu('v_and_b32', t0, 12, t0), valu('v_add_u32', t0, t0, t1), valu('v_lshlrev_b32', t0, 4, t0), valu('v_add_u32', v(29), sT1, t0), salu('s_mov_b32', sT1, OOB)]
        for tb in range(4): P += [glue(scmp('s_cmp_eq_u32', sT0, tb), salu('s_cselect_b32', sT2, sT1, 0)), valu('v_max_u32', g.vP[tb], sT2, g.vP[tb])]
        Q = [valu('v_lshrrev_b32', t2, 4, vLane), valu('v_mov_b32', t0, OOB)]
        for i in (3, 2, 1, 0):
            Q += [valu('v_add_u32', t1, 4*i, t2), valu('v_cmp_eq_u32', 'vcc', sJ, t1), valu('v_add_u32', g.vL4[i], 4096*i, g.vLd), valu('v_cndmask_b32', g.vL4[i], g.vL4[i], t0, 'vcc')]
        Q += [valu('v_cmp_gt_u32', 'vcc', 16, vLane)] + [valu('v_cndmask_b32', v(20 + d), 0, g.rA[d], 'vcc') for d in range(4)]
        return P, Q
    def own_put(g, n):
        d = lambda tb: v(192 + (n % 2)*16 + tb*4, 4); x = v(16, 4)
        P = [valu('v_cndmask_b32', x[k], d(0)[k], d(1)[k], s(32, 2)) for k in range(4)]
        for tb in (2, 3): P += [valu('v_cndmask_b32', x[k], x[k], d(tb)[k], s(30 + 2*tb, 2)) for k in range(4)]
        return P + [dsw('ds_write_b64', v(28), x.sub(0, 2), 0), dsw('ds_write_b64', v(28), x.sub(2, 2), 8), valu('v_add_u32', v(28), g.sOw, v(28))]
    def w2f(g, q, e): return v(WF + ((q + 2) % 4)*8 + e*4, 4)
    SEQ = [(0, k) for k in range(6)] + [(1, k) for k in range(6)] + [(0, 6), (0, 7), (1, 6), (1, 7), (0, 8), (0, 9), (0, 10), (1, 8), (1, 9), (1, 10)] + [(n, k) for n in range(2, 9) for k in range(11)]
    def g2_reads(g, q):
        n, ks = g.SEQ[q]; X = []; ad_ = g.SL[q]; b = 1 if ad_ < RING else 0 if ad_ < MISC else 2; o = ad_ - g.RB[b]
        for e in range(2):
            f = g.w2f(q, e)
            if ks == 10: X.append([dsr('ds_read_b64_tr_b16', f.sub(0, 2), g.r10[b][e], o)])
            else: X.append([dsr('ds_read_b64_tr_b16', f.sub(2*z, 2), g.r2[b][e], o + z*2048) for z in range(2)])
        return X
    def acc2(g, n, e, tb): return v(128 + (n % 2)*32 + (e*4 + tb)*4, 4)
    def g2_epi(g, n):
        P = [salu('s_mov_b32', sT3, n*262144)]; St = []
        for tb in range(4):
            d = v(192 + (n % 2)*16 + tb*4, 4)
            for e in range(2):
                x = g.acc2(n, e, tb)
                P += [valu('v_cvt_pk_bf16_f32', d[2*e], x[0], x[1]), valu('v_cvt_pk_bf16_f32', d[2*e + 1], x[2], x[3])]
            P += [vstore('buffer_store_dwordx4', d, g.vP[tb], sPART, sT3, tag=('part', n), mods=g.pmods)]
        return P
    def fstamp(g):
        prs = list(range(6, 22, 2)) + list(range(40, 48, 2)) + [28, 30, 72, 74] + [64, 66, 68, 70]
        r = prs[g.nf]; g.nf += 1; g.fregs.append(r)
        return raw(f"s_memrealtime s[{r}:{r+1}]", 'label')
    def f0dump(g, at):
        if g.fine0 != at: return []
        P = [valu('v_lshlrev_b32', v(5), 3, vLane), valu('v_add_u32', v(5), sT4, v(5)), valu('v_mov_b32', v(6), g.vF0), valu('v_mov_b32', v(7), g.vF0), valu('v_cmp_gt_u32', 'vcc', 18, vLane),
             valu('v_mov_b32', g.vF0, OOB), valu('v_cndmask_b32', v(5), g.vF0, v(5), 'vcc'), vstore('buffer_store_dwordx2', v(6, 2), v(5), sPART, 0, off=8*14)]
        return P
    def fdump(g):
        if not g.fine: return []
        P = [raw("s_waitcnt lgkmcnt(0)", 'wait'), valu('v_mov_b32', v(5), sT4)]
        for i, r in enumerate(g.fregs): P += [valu('v_mov_b32', v(6), s(r)), valu('v_mov_b32', v(7), s(r)), vstore('buffer_store_dwordx2', v(6, 2), v(5), sPART, 0, off=8*(g.ns + i)), raw('s_nop 1', 'wait')]
        return P
    def gemm2(g, X1, X2, X3, X4, X5):
        mf = []; F = {}; st = []
        ad = lambda i, x: F.setdefault(i, []).extend(x)
        for q, (n, ks) in enumerate(g.SEQ):
            for e in range(2):
                if ks == 10 and g.k4:
                    mf += [mfma4b(v(g.acc2(n, e, 0).a, 16), g.w2f(q, e).sub(0, 2), a(160, 2)), None, None, None]; continue
                for i in range(4):
                    tb = i if e == 0 else 3 - i
                    mf.append(mfma(g.acc2(n, e, tb), g.w2f(q, e), g.hf(ks, tb), 0 if ks == 0 else None))
            if q + 2 < 99:
                X = g.g2_reads(q + 2)
                for e in range(2):
                    for z, x in enumerate(X[e]): ad(8*q + 4*e + 2*z + 1, [x])
        flg, chk, mm = g.plan; bl = g.BARS
        oP, oQ = g.own_setup() if g.own else ([], [])
        for bi, p in enumerate(bl):
            nx = bl[bi + 1] if bi + 1 < len(bl) else 99
            if p == 14: ad(8*p - 1, [wait_ds()])
            tags = [('g2', q) for q in range(p + 2, min(nx + 2, 99))] + ([('part', flg[p])] if p in flg else [])
            if tags: ad(8*p - 1, [wait_vm(*tags)])
            ad(8*p, [barrier()])
            if g.fine: ad(8*p - 2, [g.fstamp()])
            if g.ISS[p]: st.append((sum([g.g2_dma(q) for q in g.ISS[p]], []), 8*p + 1, 8*nx - 1))
            if p in flg: st.append((g.red_flag(flg[p] + 1), 8*p + 1, 8*p + 10))
            if p in chk:
                pp, cs = chk[p]
                ck = g.check(f"r{p}", g.vPR, g.vPA, sPART, cs[-1] + 1)
                st.append((g.red_poll(), 8*pp + 12, 8*pp + 24)); st.append((ck, 8*p - 8, 8*p - 1))
                R_ = sum([g.red_ld(c) for c in cs], [])
                st.append((spaced(R_, 'ld', g.lsp), 8*p + 4, min(8*p + 14 + g.lsp*4*len(cs), 791)))
        for p, cs in mm.items(): st.append((sum([g.red_m(c) for c in cs], []), 8*p + 4, 8*p + 38))
        ends = {0: 18, 1: 21}
        for n in range(8):
            e = ends.get(n, 11*n + 10); b = 8*(e + 1)
            st.append((spaced(g.g2_epi(n), 'st', 5 if n == 0 else g.esp), b + 2, b + (23 if n == 0 else 14 + 3*g.esp)))
            if g.own: st.append((g.own_put(n), b + (24 if n == 0 else 40), b + (48 if n == 0 else 64)))
        st = [(X2, 0, 31)] + st + [(X1, 0, 8*14 - 2), (g.X1b, 2, 8*14 - 8), (X3, 8*14 + 1, 8*16 - 2), (X4 + oP, 8*16, 8*19), (X5 + oQ, 8*19, 8*26 - 2)]
        g.rep.append("G2")
        P = pack(mf, F, st, rep=g.rep)
        P += g.stamp()
        dl = [c for p in chk for c in chk[p][1]]; dm = [c for p in mm for c in mm[p]]
        f7 = 7 in flg.values()
        rest = [c for c in range(7) if c not in dl]; a_, b_ = rest[:g.tpre], rest[g.tpre:]
        LD = lambda cs: sum([g.red_ld(c) for c in cs], []); M = lambda cs: sum([g.red_m(c) for c in cs], [])
        fs = lambda: [g.fstamp()] if g.fine else []
        pend = [c for c in dl if c not in dm]
        if max(flg.values()) < 6:
            P += g.g2_epi(8) + (g.own_put(8) if g.own else []) + M(pend[:2]) + [wait_ds(), wait_vm(('part', 8)), barrier()] + g.red_flag(9) + g.red_poll() + M(pend[2:])
            return P + g.check("t2", g.vPR, g.vPA, sPART, 9) + [barrier()] + LD(rest + [7, 8]) + M(rest + [7, 8])
        P += g.red_poll() + g.g2_epi(8) + (g.own_put(8) if g.own else []) + M(pend) + [wait_ds()] + g.check("t0", g.vPR, g.vPA, sPART, 7) + [barrier()] + LD(a_) + fs()
        if f7:
            P += g.red_poll() + [wait_vm(('part', 8))] + g.check("t1", g.vPR, g.vPA, sPART, 8) + [barrier()] + g.red_flag(9) + LD(b_[:g.tmid]) + g.red_poll() + LD(b_[g.tmid:] + [7]) + fs()
            P += g.check("t2", g.vPR, g.vPA, sPART, 9) + [barrier()] + fs() + LD([8]) + M(rest + [7, 8])
        else:
            P += [wait_vm(('part', 8)), barrier()] + g.red_flag(9) + LD(b_[:g.tmid]) + g.red_poll() + LD(b_[g.tmid:]) + fs()
            P += g.check("t2", g.vPR, g.vPA, sPART, 9) + [barrier()] + fs() + LD([7, 8]) + M(rest + [7, 8])
        return P
    def main(g):
        P = g.prologue()
        hA = g.half_addrs(); g.fixed1()
        if g.stamps:
            for r in ((96, 97, 95) if 'f' in g.dbg else (97, 95)):
                P += [valu('v_mov_b32', v(6), s(r)), valu('v_mov_b32', v(7), s(r)), valu('v_mov_b32', v(5), sT4), vstore('buffer_store_dwordx2', v(6, 2), v(5), sPART, 0, off=8*g.ns), raw('s_nop 1', 'wait')]; g.ns += 1
        P += g.stamp()
        P += [wait_vm(('w', 0), ('w', 1), ('x', 0)), barrier()] + g.pre_reads + ([] if g.early else (g.dmaX(2) if g.ord < 3 else []) + g.dmaW(4) + g.dmaW(5)) + g.dmaX(3) + g.dmaW(6) if not g.lazy else [wait_vm(('w', 0), ('w', 1), ('x', 0)), barrier()] + g.pre_reads
        P += g.stamp()
        phL, phP = g.phiA_loads()
        pf = g.pf
        e0 = 16*(g.U[17] + 1)
        P += g.phase1(0, [(g.late + g.gate_late + [wait_ds()] + (g.prefetchQ() if g.split else []), 2, 350), ((g.prefetch13(2) if pf else []) + (g.prefetchQ() if pf and g.qlate and not g.split else []) + phL, max(16*g.U[17] - 6, 350), 570),
                          (g.silu(0, 0), e0 + 4, 576)]) + g.stamp() + g.f0dump(0)
        P += g.phase1(2, [(phP + (g.prefetch13(3) if pf and not g.pfp else []), 60, 280), (g.silu(1, 1), 4, 288)]) + g.stamp()
        A, Q, B, C = g.attn_post()
        P += g.phase1(3, [((g.prefetch13(3, vHf[0][0], vHf[0][1]) + g.prefetch13(4, vHf[0][0], vHf[0][1])[6:] + (g.prefetch2(vHf[0][0], vHf[0][2], vHf[0][1]) if g.pfp == 1 else []) if pf and g.pfp else []) + A + [wait_ds()], 1, g.p3b - 1), (g.prefetch2(vHf[1][0], vHf[1][1], vHf[1][2]) if pf and g.pfp == 4 else [], 80, 110), (B + C, g.p3b + 1, 280), (Q, g.p3b + 1, 288)]) + g.stamp()
        rA, rB = g.g2_rd_addrs(); g2a = g.g2_dma_addrs()
        P += g.phase1(4, [(g.flag(vJ[0], vJ[1]) + (g.prefetch13(4) + g.prefetch2(v(T), v(T+1), v(T+2)) if pf and not g.pfp else []) + hA + (g.prefetch2(v(T), v(T + 1), v(T + 2)) if g.split else []), 43, 230 if g.split else 170), (rA + g2a + (g.prefetch2(v(T), v(T + 1), v(T + 2)) if pf and g.pfp == 3 and not g.split else []), 230 if g.split else 180, 288), (g.silu(1, 2), 4, 288)],
                      extra={41: [wait_vm('kv')]}) + g.stamp() + g.f0dump(54)
        poll0, poll1, sel, L1, L2 = g.kv_gather()
        vH, vH8 = v(2), v(3)
        hr = [valu('v_lshlrev_b32', vH8, 4, vLane), salu('s_lshl_b32', sT3, sR, 12), valu('v_add_u32', vH, sT3, vH8), valu('v_add_u32', vH8, 65536, vH)]
        H = lambda ks: g.h_reads(ks, vH, vH8)
        for i in (16*98 + 9, 16*98 + 10): g.F1.pop(i)
        g.plan_slots()
        X = {135: [wait_vm(*[('g2', q) for q in range(6)]), wait_ds()], 136: [barrier()]}
        rr = [x for q in range(2) for y in g.g2_reads(q) for x in y]
        for i, x in enumerate(rr): X.setdefault(137 + min(i, 6), []).append(x)
        P += g.phase1(5, [(sum([g.g2_dma(q) for q in g.ISS[-2]], []), 107, 135), (poll0 + (g.prefetch2(v(T), v(T + 1), v(T + 2)) if pf and g.pfp == 2 else []) + sel + poll1, 0, 41), (hr + H([0, 1]), 16, 40), (H([2, 3]), 40, 60), (H([4, 5]), 60, 90),
                          (L1 + (g.prefetch2(v(224), v(225), v(226)) if pf and g.pfp == 5 else []) + L2, 43, 132), (g.silu(0, 3), 4, 132)], extra=X) + g.stamp() + g.f0dump(64)
        oa, orr = g.o_reads()
        X1 = H([6, 7]) + g.o_part() + ([] if g.xsep else g.silu(1, 4)) + oa + [wait_ds()]; g.X1b = g.silu(1, 4) if g.xsep else []
        P += g.gemm2(X1, sum([g.g2_dma(q) for q in g.ISS[-1]], []), H([8]) + orr, rB, g.red_setup()) + g.stamp() + g.fdump()
        import asmlib; asmlib.LOOSE = bool(g.dbg)
        if 'w' in g.dbg: P = [x for x in P if not (x.k == 'wvm')]
        if 'b' in g.dbg: P = [x for x in P if not (x.k == 'bar')]
        if 'v' in g.dbg: P = [x for x in P if not (x.k in ('trans',) or x.t.startswith('v_mul_f32') or x.t.startswith('v_add_f32') or x.t.startswith('v_cvt'))]
        if 'd' in g.dbg: P = [x for x in P if not (x.k == 'dma')]
        if 'r' in g.dbg: P = [x for x in P if not (x.t.startswith('ds_read_b64_tr'))]
        if 'c' in g.dbg: P = [x if '_spin' not in x.t else label(x.t.split('\n')[-1][:-1]) for x in P]
        if 'L' in g.dbg: P = [x for x in P if not (x.k == 'vld' and 'dwordx4 a' in x.t)]
        if 'k' in g.dbg: P = [x for x in P if x.tag != 'kv']
        if 'W' in g.dbg: P = [x for x in P if x.k != 'dsw']
        if 'P' in g.dbg: P = [x for x in P if x.k != 'perm']
        if 'p' in g.dbg: P = [x for x in P if not (isinstance(x.tag, tuple) and x.tag[0] == 'part')]
        rep = {}
        F = finalize(P, report=rep)
        print(rep, g.rep, file=sys.stderr)
        return text(F) + "\ns_endpgm\n" + "\n".join(g.tails) + "\nL_end:"

def build(**kw):
    g = G(**kw)
    body = g.main()
    hdr = "; gated mix: hedgehog linear attention + SwiGLU FFN fused in one launch (text emitted by my own generator script)\n"
    hdr += "; @launch grid=(256,1,1) block=(256,1,1) lds=163840\n"
    hdr += '.amdgcn_target "amdgcn-amd-amdhsa--gfx950"\n'
    return hdr + kernel_text(KN + "_kernel", body, vgpr=256, agpr=256)
if __name__ == "__main__":
    kw = {}
    out = sys.argv[1]
    for x in sys.argv[2:]:
        k, val = x.split("="); kw[k] = eval(val)
    t = build(**kw)
    open(out, "w").write(t)
```

```python
import sys
from asmlib import *
KN = "gated_mix__linear_kernel_hedgehog__glu_gated_swiglu__prompt"
H0 = 0; RING = 73728; MISC = 139264; PHIQ = MISC; LOGIT = MISC + 20480; DUMMY = MISC + 20992; KVE = MISC + 21248; KVM = 135168; OWN = MISC + 8192; GA = MISC
PHIK = 32768; VV = PHIK + 20480
S0 = 90112; ST = [S0, 0, 45056]; WST = 11264
WS_PART = 0; WS_SC = 37748736; WS_KV = WS_SC + 8192; WS_KV_BYTES = 16*2*16*1536; WS_STAMP = 48 << 20; WS_FL = 40 << 20
LOG2E = 0x3fb8aa3b; NLOG2E = 0xbfb8aa3b
OOB = 0x7ff00000
sX, sQ, sQ2, sW1, sW3, sWH, sW2, sWO, sPART, sKV, sDBG, sMI = [s(28 + 4*i, 4) for i in range(12)]
sJ, sM, sW, sR, sC = s(76), s(77), s(78), s(79), s(80)
sOff, sColF, sColH, sMb, sT0, sT1, sNL, sL, sOffX, sMx, sT2, sRowF, sRowH = [s(81 + i) for i in range(13)]
sExp = s(3); sOUT = sWH; sMask = s(94, 2); sStamp = s(96, 2); sT3 = s(98); sT4 = s(99); sFl = s(27); sXA, sXB, sFA, sFB, sQA, sQB, sHA, sHB = s(0), s(1), s(12), s(13), s(6), s(7), s(10), s(11); sPar = s(100); sSp = s(14); sIdx = s(101)
vLane, vDmaF, vRdF0, vRdF1, vHw = v(0), v(1), v(2), v(3), v(4)
vJ = [v(5), v(6), v(7)]
vPhiA = [v(8, 4), v(12, 4)]
vE = [v(16 + i) for i in range(8)]
vHf = [v(24, 4), v(28, 4)]
T = 32; WF = 64; ACC = [128, 192]
def xf(ks, tb):
    i = ks*4 + tb
    return a(4*i, 4) if i < 64 else v(96 + 4*(i - 64), 4)
def slot(G): return ((G + 7) % 8) * 8192
def srd(P, d, lo, nbytes, add=0):
    if add >= 0: P += [glue(salu('s_add_u32', d[0], s(lo), add), salu('s_addc_u32', d[1], s(lo+1), 0))]
    else: P += [glue(salu('s_sub_u32', d[0], s(lo), -add), salu('s_subb_u32', d[1], s(lo+1), 0))]
    P += [salu('s_mov_b32', d[2], nbytes), salu('s_mov_b32', d[3], '0x20000')]

class G:
    def __init__(g, stamps=False, dump=None, pf=True, dbg='', cpf=True, pmods='sc1', fine=False, plan=12, esp=8, lsp=6, tpre=1, tmid=2, xpf=False, early=0, nsh=16, lead=12, fine0=None, rot=True, tlb=False, pfp=3, qlate=True, kvlat=50, p3b=170, drate=1.4, ord=0, split=40, tokm=True, omods='nt', own=True, lazy=True, k4=True, xsep=True, cp0=True, cpn=4):
        g.cp0 = cp0; g.cpn = cpn
        g.xsep = xsep
        g.k4 = k4
        g.lazy = lazy
        g.own = own
        g.tokm = tokm; g.omods = omods
        g.split = split
        g.ord = ord
        g.drate = drate
        g.kvlat = kvlat; g.p3b = p3b
        g.qlate = qlate
        g.rot = rot; g.tlb = tlb; g.pfp = pfp
        g.fine0 = fine0; g.vF0 = v(15) if fine0 == 0 else v(4)
        g.lead = lead; g.mkSA()
        g.nsh = nsh
        g.xpf = xpf; g.early = early
        g.tpre = tpre; g.tmid = tmid
        g.esp = esp; g.lsp = lsp
        F2 = {37: 1, 48: 2, 59: 3, 70: 4, 81: 5, 92: 6}
        PL = {0: ((F2, {}, {}), (7, 7)),
              1: ((F2, {75: (64, [0, 1, 2])}, {}), (7, 7)),
              2: ((F2, {75: (64, [0, 1, 2, 3])}, {}), (7, 7)),
              3: ((F2, {70: (59, [0, 1, 2]), 92: (81, [3, 4])}, {}), (7, 7)),
              4: (({**F2, 97: 7}, {75: (64, [0, 1, 2])}, {}), (7, 7)),
              5: (({**F2, 97: 7}, {75: (64, [0, 1, 2]), 92: (81, [3, 4])}, {}), (7, 7)),
              7: ((F2, {64: (53, [0, 1, 2]), 81: (70, [3]), 92: (81, [4])}, {}), (7, 7)),
              8: ((F2, {64: (53, [0, 1, 2]), 81: (75, [3, 4]), 92: (86, [5])}, {}), (7, 7)),
              9: ((F2, {64: (53, [0, 1]), 75: (64, [2, 3])}, {}), (7, 7)),
              10: (({37: 1, 48: 2, 59: 3, 92: 6}, {70: (64, [0, 1, 2, 3])}, {}), (7, 7)),
              11: (({37: 1, 48: 2, 59: 3, 70: 4, 92: 6}, {70: (64, [0, 1, 2, 3]), 86: (81, [4])}, {}), (7, 7)),
              12: (({48: 2, 92: 6}, {64: (59, [0, 1, 2])}, {}), (7, 7)),
              13: (({48: 2, 70: 4, 92: 6}, {64: (59, [0, 1, 2]), 81: (75, [3, 4])}, {}), (7, 7)),
              14: ((F2, {59: (53, [0, 1]), 70: (64, [2]), 81: (75, [3]), 92: (86, [4])}, {}), (7, 7)),
              15: ((F2, {70: (64, [0, 1]), 81: (75, [2, 3]), 92: (86, [4])}, {}), (7, 7)),
              16: ((F2, {70: (64, [0]), 81: (75, [1]), 92: (86, [2])}, {}), (7, 7)),
              17: ((F2, {70: (64, [0, 1]), 81: (75, [2, 3]), 92: (86, [4, 5])}, {}), (7, 7)),
              18: (({59: 3, 92: 6}, {70: (64, [0, 1, 2, 3])}, {}), (7, 7)),
              19: (({48: 2, 97: 7}, {64: (59, [0, 1, 2])}, {}), (7, 7)),
              20: (({48: 2, 81: 5}, {64: (59, [0, 1, 2]), 92: (86, [3, 4, 5])}, {}), (7, 7)),
              21: (({48: 2, 92: 6}, {70: (59, [0, 1, 2])}, {}), (7, 7)),
              22: (({37: 1, 92: 6}, {59: (48, [0, 1])}, {}), (7, 7)),
              6: (({**F2, 97: 7}, {75: (64, [0, 1]), 86: (75, [2, 3]), 97: (86, [4])}, {}), (7, 7))}
        g.plan, g.tthr = PL[plan]; g.tailc = [c for c in range(5, 9) if c not in [x for p in g.plan[1] for x in g.plan[1][p][1]]]
        g.fine = fine; g.nf = 0; g.fregs = []
        g.pmods = pmods
        g.cpf = cpf; g.tails = []; g.rep = []
        g.dbg = dbg
        g.stamps = stamps; g.dump = dump; g.ns = 0; g.pf = pf
    def stamp(g):
        if not g.stamps: return []
        i = g.ns; g.ns += 1
        return [raw(f"s_memtime {sStamp}", 'salu', [], [sStamp]), raw(f"s_memrealtime s[4:5]", 'salu'), raw("s_waitcnt lgkmcnt(0)", 'wait'),
                valu('v_mov_b32', v(6), sStamp[0]), valu('v_mov_b32', v(7), s(4)), valu('v_mov_b32', v(5), sT4),
                vstore('buffer_store_dwordx2', v(6, 2), v(5), sPART, 0, off=8*i)]
    def prologue(g):
        P = []
        P += [scmp('s_cmp_ge_u32', s(2), 256), raw('s_cbranch_scc1 L_end')]
        if g.stamps: P += [raw('s_memrealtime s[70:71]', 'label')]
        P += [raw('s_load_dwordx16 s[4:19], s[0:1], 0'), raw('s_load_dwordx8 s[20:27], s[0:1], 64')]
        t0, t1, t2, t3, t4 = [v(T + 16 + i) for i in range(5)]
        P += [valu('v_lshrrev_b32', t0, 6, v(0)), valu('v_and_b32', vLane, 63, v(0))]
        P += [valu('v_readfirstlane_b32', sW, t0)]
        if g.cpf and g.cp0: P += g.code_touch()
        lj = {16: 1, 8: 2, 4: 3}[g.nsh]
        P += [salu('s_bfe_u32', sJ, s(2), hex(((4 - lj) << 16) | 0)), salu('s_lshl_b32', sJ, sJ, lj), salu('s_bfe_u32', sT0, s(2), hex((lj << 16) | 3)), salu('s_add_u32', sJ, sJ, sT0),
              salu('s_lshr_b32', sIdx, s(2), 3 + lj)]
        if lj > 1: P += [salu('s_bfe_u32', sM, s(2), hex(((lj - 1) << 16) | (4 - lj))), salu('s_lshl_b32', sM, sM, 5 - lj), salu('s_add_u32', sM, sM, sIdx)]
        else: P += [salu('s_mov_b32', sM, sIdx)]
        P += [salu('s_lshr_b32', sR, sW, 1), salu('s_and_b32', sC, sW, 1)]
        P += [salu('s_mov_b32', sNL, hex(NLOG2E)), salu('s_mov_b32', sL, hex(LOG2E))]
        P += [salu('s_mul_i32', sT0, sJ, 288), salu('s_and_b32', sT1, sJ, 1), salu('s_lshl_b32', sT2, sT1, 5), salu('s_add_u32', sRowF, sT0, sT2),
              salu('s_lshl_b32', sT2, sT1, 8), salu('s_add_u32', sRowH, sT0, 256), salu('s_sub_u32', sRowH, sRowH, sT2),
              salu('s_lshl_b32', sColF, sRowF, 1), salu('s_lshl_b32', sColH, sRowH, 1)]
        P += [salu('s_lshl_b32', sMb, sW, 11), salu('s_add_u32', sMb, sMb, RING), salu('s_lshl_b32', sMx, sW, 12)]
        if g.stamps: g.early_part = True; P += [salu('s_lshl_b32', sT4, s(2), 10), salu('s_lshl_b32', sT0, sW, 8), salu('s_add_u32', sT4, sT4, sT0), salu('s_add_u32', sT4, sT4, WS_STAMP)]
        P += [valu('v_lshrrev_b32', t0, 3, vLane), salu('s_lshl_b32', sT0, sW, 3), valu('v_add_u32', t0, sT0, t0), valu('v_mul_u32_u24', t0, 9216, t0),
              valu('v_bfe_u32', t1, vLane, 4, 1), salu('s_lshl_b32', sT1, sC, 1), valu('v_or_b32', t1, sT1, t1), valu('v_bfe_u32', t2, vLane, 1, 2),
              valu('v_xor_b32', t1, t1, t2) if 's' not in g.dbg else valu('v_mov_b32', t1, t2), valu('v_lshlrev_b32', t1, 5, t1), valu('v_and_b32', t2, 1, vLane), valu('v_lshlrev_b32', t2, 4, t2),
              valu('v_add3_u32', vDmaF, t0, t1, t2)]
        dX0, dX1, rX0, rX1 = [v(T + i) for i in range(4)]
        P += [salu('s_lshl_b32', sT0, sM, 7), salu('s_lshl_b32', sT1, sW, 5), salu('s_add_u32', sT0, sT0, sT1), valu('v_lshrrev_b32', t0, 3, vLane),
              valu('v_add_u32', t0, sT0, t0), valu('v_mul_u32_u24', t0, 1152, t0), valu('v_lshrrev_b32', t1, 4, vLane), valu('v_and_b32', t2, 7, vLane),
              valu('v_xor_b32', t1, t1, t2), valu('v_lshlrev_b32', t1, 4, t1), valu('v_add_u32', dX0, t0, t1), valu('v_xor_b32', t1, 64, t1), valu('v_add_u32', dX1, t0, t1)]
        P += [raw('s_waitcnt lgkmcnt(0)', 'wait')]
        if g.stamps: P += [raw('s_mov_b32 s97, s70\ns_mov_b32 s96, s70', 'label'), raw('s_memrealtime s[74:75]\ns_waitcnt lgkmcnt(0)\ns_mov_b32 s95, s74', 'label')]
        if g.stamps: srd(P, sPART, 26, 64 << 20)
        P += [salu('s_and_b32', sPar, sJ, 1 if g.rot else 0), salu('s_mul_i32', sXA, sPar, 512), salu('s_mul_i32', sXB, sPar, -640), salu('s_mul_i32', sT0, sPar, 8*294912),
              salu('s_add_u32', sFA, sColF, sT0), salu('s_mul_i32', sT1, sPar, -10*294912), salu('s_add_u32', sFB, sColF, sT1)]
        srd(P, sX, 4, 2048*1152); srd(P, sW1, 14, 576*9216); srd(P, sW3, 16, 576*9216 + 1024, -1024)
        if g.ord: P += g.prefetch13(0) + g.prefetch13(1)[6:] + g.dmaX(0) + (g.dmaX(1) if g.ord > 1 else []) + (g.dmaX(2) if g.ord > 2 else [])
        else: P += g.dmaX(0) + g.dmaW(0) + g.dmaW(1)
        if 'f' in g.dbg: P += [raw('s_memrealtime s[74:75]\ns_waitcnt lgkmcnt(0)\ns_mov_b32 s97, s74\ns_waitcnt vmcnt(0)\ns_memrealtime s[74:75]\ns_waitcnt lgkmcnt(0)\ns_mov_b32 s95, s74', 'label')]
        if g.pf and not g.xpf and not g.ord: P += g.prefetch13(0) + g.prefetch13(1)[6:]
        if g.pf and g.xpf:
            P += [salu('s_and_b32', sT1, sJ, 1), salu('s_lshl_b32', sT1, sT1, 6), salu('s_lshl_b32', sT0, sM, 7), salu('s_add_u32', sT0, sT0, sT1), salu('s_lshl_b32', sT1, sW, 4),
                  salu('s_add_u32', sT0, sT0, sT1), valu('v_and_b32', t0, 15, vLane), valu('v_add_u32', t0, sT0, t0), valu('v_mul_u32_u24', t0, 1152, t0), valu('v_lshrrev_b32', t1, 4, vLane),
                  valu('v_lshl_add_u32', t0, t1, 7, t0), vload('buffer_load_dword', v(T + 22), t0, sX, 0, off=128, tag='pf')]
            g.xpf2 = vload('buffer_load_dword', v(T + 22), t0, sX, 0, off=640, tag='pf')
            P += g.prefetch13(0) + [g.xpf2]
        if g.cpf and not g.cp0: P += g.code_touch()
        t0 = v(T + 16)
        srd(P, sQ, 6, 576*3456); srd(P, sQ2, 6, 576*3456 - 12800, 12800); srd(P, sW2, 18, 4608*1152); srd(P, sWO, 10, 576*1152 + 2048, -2048)
        srd(P, sKV, 26, WS_KV_BYTES, WS_KV); srd(P, sPART, 26, 64 << 20); srd(P, sDBG, 24, 256); srd(P, sMI, 20, 1152)
        P += [glue(scmp('s_cmp_ge_u32', sW, 2), salu('s_cselect_b32', sWH[0], s(16), s(14)), salu('s_cselect_b32', sWH[1], s(17), s(15))),
              salu('s_mov_b32', sWH[2], 576*9216), salu('s_mov_b32', sWH[3], '0x20000')]
        P += [salu('s_mul_i32', sQA, sPar, 8*110592), salu('s_mul_i32', sQB, sPar, -10*110592), salu('s_mul_i32', sT0, sPar, 8*294912), salu('s_add_u32', sHA, sColH, sT0),
              salu('s_mul_i32', sT0, sPar, -10*294912), salu('s_add_u32', sHB, sColH, sT0)]
        P += [salu('s_lshl_b32', sT0, sM, 8), salu('s_lshl_b32', sT1, sJ, 2), salu('s_add_u32', sT0, sT0, sT1), salu('s_add_u32', sT0, sT0, WS_FL), salu('s_mov_b32', sT1, OOB),
              glue(scmp('s_cmp_eq_u32', sW, 0), salu('s_cselect_b32', sFl, sT0, sT1), salu('s_cselect_b32', sExp, '0xffff', 0)),
              valu('v_mov_b32', t0, sT1), valu('v_mov_b32', t1, sFl), valu('v_cmp_eq_u32', 'vcc', 0, vLane), valu('v_mov_b32', t2, 0), valu('v_cndmask_b32', t0, t0, t1, 'vcc'),
              vstore('buffer_store_dword', t2, t0, sPART, 0, mods='sc1', tag='arm')]
        gv = [v(T + 8 + i) for i in range(3)]
        P += [salu('s_lshl_b32', sT0, sW, 7), valu('v_lshlrev_b32', t0, 1, vLane), valu('v_add_u32', t0, sT0, t0), salu('s_lshl_b32', sT1, sPar, 9)]
        for i in range(3):
            P += [valu('v_add_u32', t1, 512*i, t0), valu('v_add_u32', t2, sT1, t1), valu('v_subrev_u32', t3, 1152, t2), valu('v_min_u32', t2, t2, t3)]
            if i == 2: P += [valu('v_cmp_gt_u32', 'vcc', 1152, t1), valu('v_cndmask_b32', t2, t1, t2, 'vcc')]
            P += [vload('buffer_load_ushort', gv[i], t2, sMI, 0)]
        if g.pf and not g.qlate: P += g.prefetchQ()
        if g.tlb:
            P += [valu('v_mov_b32', t1, 0), salu('s_mul_i32', sT0, sJ, 331776), vload('buffer_load_dword', v(T + 22), t1, sW2, sT0, tag='pf'), salu('s_mul_i32', sT0, sJ, 41472),
                  vload('buffer_load_dword', v(T + 22), t1, sWO, sT0, off=2048, tag='pf'), salu('s_mul_i32', sT0, sJ, 49152), vload('buffer_load_dword', v(T + 22), t1, sKV, sT0, tag='pf'),
                  vload('buffer_load_dword', v(T + 22), t1, sDBG, 0, tag='pf'), salu('s_mul_i32', sT0, sM, 144*16384), valu('v_and_b32', t1, 3, vLane), valu('v_mul_u32_u24', t1, 786432 - 256, t1),
                  vload('buffer_load_dword', v(T + 22), t1, sPART, sT0, tag='pf')]
        if g.ord: P += g.dmaW(0) + g.dmaW(1)
        P += (g.dmaX(1) if g.ord < 2 else []) + g.dmaW(2) + g.dmaW(3)
        if g.early: P += g.dmaX(2) + g.dmaW(4) + g.dmaW(5)
        P += [valu('v_lshrrev_b32', t0, 4, vLane), valu('v_bfe_u32', t1, vLane, 2, 2), valu('v_lshlrev_b32', t2, 11, t0), valu('v_lshl_add_u32', t2, t1, 7, t2),
              valu('v_and_b32', t3, 3, vLane), valu('v_lshl_add_u32', t2, t3, 3, t2), valu('v_lshrrev_b32', t1, 1, t1), valu('v_and_b32', t0, 1, t0),
              valu('v_lshl_or_b32', t1, t0, 1, t1), salu('s_lshl_b32', sT1, sC, 1), valu('v_xor_b32', t1, sT1, t1), valu('v_lshlrev_b32', t1, 5, t1),
              valu('v_add_u32', t2, RING, t2), valu('v_add_u32', vRdF0, t2, t1), valu('v_xor_b32', t1, 32, t1), valu('v_add_u32', vRdF1, t2, t1)]
        P += [valu('v_and_b32', t0, 15, vLane), valu('v_lshrrev_b32', t1, 1, t0), valu('v_lshrrev_b32', t2, 4, vLane), valu('v_xor_b32', t1, t1, t2),
              valu('v_lshlrev_b32', t1, 4, t1), salu('s_lshl_b32', sT0, sR, 13), valu('v_lshlrev_b32', t0, 7, t0), valu('v_add_u32', t0, sT0, t0),
              valu('v_add_u32', rX0, t0, t1), valu('v_xor_b32', t1, 64, t1), valu('v_add_u32', rX1, t0, t1)]
        P += [salu('s_lshl_b32', sT0, sR, 12), salu('s_lshl_b32', sT1, sC, 13), salu('s_add_u32', sT0, sT0, sT1), valu('v_lshlrev_b32', t0, 4, vLane), valu('v_add_u32', vHw, sT0, t0)]
        main = P; P = []
        P += g.qkv_addrs()
        P += [salu('s_lshl_b32', sT0, sW, 8), valu('v_lshrrev_b32', t0, 5, vLane), valu('v_lshlrev_b32', t0, 7, t0), valu('v_bfe_u32', t1, vLane, 3, 2),
              valu('v_lshl_add_u32', t0, t1, 5, t0), valu('v_bfe_u32', t1, vLane, 2, 1), valu('v_lshl_add_u32', t0, t1, 10, t0), valu('v_and_b32', t1, 3, vLane),
              valu('v_lshl_add_u32', t0, t1, 3, t0), salu('s_add_u32', sT0, sT0, GA), valu('v_add_u32', t0, sT0, t0)]
        g.late = P; P = main
        g.gate_late = []
        for i in range(3):
            d = v(T + 12, 2)
            g.gate_late += [valu('v_lshl_or_b32', d[0], gv[i], 16, gv[i]), valu('v_mov_b32', d[1], d[0]), dsw('ds_write_b64', t0, d, off=2048*i)]
        return P
    def code_touch(g):
        ca = v(T + 14, 2); t0 = v(T + 23); t1 = v(T + 19)
        return [raw('s_getpc_b64 s[72:73]\nL_pc:', 'salu', [], [s(72, 2)]), salu('s_lshr_b32', sT0, s(2), 3), salu('s_lshl_b32', sT0, sT0, 2), salu('s_add_u32', sT0, sT0, sW),
                salu('s_mul_i32', sT0, sT0, g.cpn), valu('v_min_u32', t0, g.cpn - 1, vLane), valu('v_add_u32', t0, sT0, t0)] + \
               ([salu('s_lshl_b32', sT1, sW, 3), valu('v_and_b32', t1, 7, vLane), valu('v_add_u32', t1, sT1, t1), valu('v_cmp_gt_u32', 'vcc', 32, vLane), valu('v_add_u32', t0, 32, t0),
                 valu('v_cndmask_b32', t0, t1, t0, 'vcc')] if g.cp0 else []) + \
               [valu('v_lshlrev_b32', t0, 7, t0), raw(f'v_min_u32 {t0}, L_end-L_pc-4, {t0}', 'valu', [t0], [t0]), valu('v_and_b32', t0, -4, t0), valu('v_mov_b32', ca[1], s(73)),
                I(f'v_add_co_u32 {ca[0]}, vcc, s72, {t0}', 'valu', [t0, s(72)], [ca[0], {('s', 'vcc')}]),
                I(f'v_addc_co_u32 {ca[1]}, vcc, 0, {ca[1]}, vcc', 'valu', [ca[1], {('s', 'vcc')}], [ca[1], {('s', 'vcc')}]),
                I(f'global_load_dword {v(T + 22)}, {ca}, off', 'vld', [ca], [v(T + 22)], tag='pf', dep=40)]
    def prefetch13(g, ch, t0=v(T + 21), d=v(T + 22)):
        rw = 144//g.nsh
        P = [salu('s_mul_i32', sT0, sIdx, 4*rw), salu('s_mul_i32', sT1, sW, rw), salu('s_add_u32', sT0, sT0, sT1), valu('v_min_u32', t0, rw - 1, vLane),
             valu('v_add_u32', t0, sT0, t0), valu('v_mul_u32_u24', t0, 9216, t0)]
        if ch < 4: P += [salu('s_add_u32', sT0, sColF, 128*ch)]
        else: P += [salu('s_mov_b32', sT0, sColH)]
        P += [vload('buffer_load_dword', d, t0, sW1, sT0, tag='pf'), vload('buffer_load_dword', d, t0, sW3, sT0, off=1024, tag='pf')]
        return P
    def prefetchQ(g):
        t0 = v(T + 21); t1 = v(T + 23); d = v(T + 22); d2 = v(T + 20); rw = 144//g.nsh
        P = [salu('s_mul_i32', sT0, sIdx, 4*rw), salu('s_mul_i32', sT1, sW, rw), salu('s_add_u32', sT0, sT0, sT1), valu('v_min_u32', t0, 17 if g.split else 53, vLane),
             valu('v_mul_u32_u24', t1, 43, t0), valu('v_lshrrev_b32', t1, 8, t1), valu('v_mul_u32_u24', d2, 6, t1), valu('v_sub_u32', t0, t0, d2),
             valu('v_add_u32', t1, sT0, t1), valu('v_mul_u32_u24', t1, 3456, t1), valu('v_lshrrev_b32', d2, 1, t0), valu('v_mul_u32_u24', d2, 1152, d2), valu('v_add_u32', t1, t1, d2),
             valu('v_and_b32', t0, 1, t0), valu('v_mul_u32_u24', t0, 68, t0), valu('v_add_u32', t1, t1, t0), salu('s_mul_i32', sT0, sJ, 72)]
        if g.split:
            P[-1] = salu('s_mul_i32', sSp, sJ, 72)
            for i in range(3): P += ([salu('s_add_u32', sSp, sSp, 3*3456)] if i else []) + [vload('buffer_load_dword', d, t1, sQ, sSp, tag='pf')]
            return spaced(P, 'pf', g.split)
        for i in range(rw//9): P += ([salu('s_add_u32', sT0, sT0, 9*3456)] if i else []) + [vload('buffer_load_dword', d, t1, sQ, sT0, tag='pf')]
        return P
    def prefetch2(g, t0, t1, d):
        k = 16//g.nsh
        P = [salu('s_mul_i32', sT0, sIdx, 162*k), salu('s_mul_i32', sT1, sW, 41*k), salu('s_add_u32', sT0, sT0, sT1), valu('v_min_u32', t0, 13 if g.split else 40, vLane),
             valu('v_add_u32', t0, sT0, t0), valu('v_lshlrev_b32', t0, 7, t0), salu('s_mul_i32', sT0, sJ, 331776)]
        for i in range(3 if g.split else k): P += ([salu('s_add_u32', sT0, sT0, (14 if g.split else 41)*128)] if i else []) + [vload('buffer_load_dword', d, t0, sW2, sT0, tag='pf')]
        P += [salu('s_mul_i32', sT0, sIdx, 21*k), salu('s_mul_i32', sT1, sW, 6*k), salu('s_add_u32', sT0, sT0, sT1), valu('v_min_u32', t1, 6*k - 1, vLane),
              valu('v_add_u32', t1, sT0, t1), valu('v_lshlrev_b32', t1, 7, t1), salu('s_mul_i32', sT0, sJ, 41472),
              vload('buffer_load_dword', d, t1, sWO, sT0, off=2048, tag='pf')]
        return spaced(P, 'pf', g.split) if g.split else P
    def qkv_addrs(g):
        t0, t1, t2, t3, t4 = [v(T + 16 + i) for i in range(5)]
        g.dQ = v(T + 24); g.rQ = [v(T + 25), v(T + 26), v(T + 27), v(T + 30)]; g.rQ3b = v(T + 28); g.isG = v(T + 29)
        P = []
        P += [valu('v_lshrrev_b32', t0, 4, vLane), salu('s_lshl_b32', sT1, sC, 2), valu('v_or_b32', t1, sT1, t0), valu('v_lshlrev_b32', t1, 1, t1),
              valu('v_and_b32', t2, 15, vLane), valu('v_xor_b32', t1, t1, t2),
              salu('s_lshl_b32', sT0, sW, 3), valu('v_add_u32', t0, sT0, t0), valu('v_mul_u32_u24', t0, 3456, t0),
              valu('v_cmp_le_u32', 'vcc', 6, t1), valu('v_cndmask_b32', t2, 0, v(T+31), 'vcc') ]
        P.insert(0, valu('v_mov_b32', v(T+31), 1))
        P += [valu('v_cmp_le_u32', 'vcc', 11, t1), valu('v_cndmask_b32', t3, 0, v(T+31), 'vcc'),
              valu('v_mul_u32_u24', t4, 6, t2), valu('v_sub_u32', t1, t1, t4), valu('v_mul_u32_u24', t4, 5, t3), valu('v_sub_u32', t1, t1, t4),
              valu('v_min_u32', t1, 4, t1), valu('v_add_u32', t2, t2, t3), valu('v_mul_u32_u24', t2, 1152, t2), valu('v_add_u32', t0, t0, t2),
              valu('v_lshrrev_b32', t3, 2, t1), valu('v_lshlrev_b32', t1, 4, t1), valu('v_lshlrev_b32', t3, 3, t3), valu('v_sub_u32', t1, t1, t3),
              salu('s_mul_i32', sT0, sJ, 72), valu('v_add3_u32', g.dQ, t0, t1, sT0)]
        def B(seg, n, c):
            b = 32*c + 8*n
            if b >= 64: b += 8
            return [0, 96, 176][seg] + b
        tabs = [[(0, i) for i in range(4)], [(0, 4), (2, 0), (2, 1), (2, 2)], [(1, i) for i in range(4)], [(1, 4), (2, 3), (2, 4), (2, 4)]]
        P += [valu('v_lshrrev_b32', t0, 4, vLane), valu('v_bfe_u32', t1, vLane, 2, 2), valu('v_lshlrev_b32', t2, 11, t0), valu('v_lshl_add_u32', t2, t1, 8, t2),
              valu('v_add_u32', t2, RING, t2), valu('v_and_b32', t0, 1, t0), valu('v_lshl_or_b32', t0, t0, 2, t1), valu('v_lshlrev_b32', t0, 5, t0),
              valu('v_and_b32', t1, 3, vLane), valu('v_lshlrev_b32', t1, 3, t1)]
        for b in range(4):
            pk = [sum(B(sg, n, c) << (8*i) for i, (sg, n) in enumerate(tabs[b])) for c in range(2)]
            dst = g.rQ[b] if b < 3 else g.rQ3b
            P += [salu('s_mov_b32', sT0, hex(pk[1])), glue(scmp('s_cmp_eq_u32', sC, 0), salu('s_cselect_b32', sT0, hex(pk[0]), sT0))]
            P += [valu('v_lshrrev_b32', t3, t1, sT0) if False else valu('v_bfe_u32', t3, sT0, t1, 8), valu('v_xor_b32', t3, t3, t0), valu('v_add_u32', dst, t2, t3)]
        P += [valu('v_and_b32', t1, 3, vLane), valu('v_cmp_eq_u32', 'vcc', 3, t1), valu('v_lshrrev_b32', t3, 2, vLane), valu('v_lshlrev_b32', t3, 3, t3),
              valu('v_add_u32', t3, GA, t3), valu('v_cndmask_b32', g.rQ3b, g.rQ3b, t3, 'vcc'), valu('v_cndmask_b32', g.isG, 0, v(T+31), 'vcc')]
        return P
    def dmaX(g, d):
        dX = [v(T), v(T + 1)]
        P = [salu('s_add_u32', 'm0', sMx, (d % 4)*16384)]
        for aa in range(4):
            P += [salu('s_add_u32', sOffX, sXA if d < 5 else sXB, d*128 + aa*8192), dma(dX[aa & 1], sX, sOffX, off=aa*1024, tag=('x', d))]
        return P
    def mkSA(g):
        n = 36 - g.lead; SA = []; a_ = b_ = 0
        for p in range(36):
            if a_ < 18 and (p >= n - 1 or a_*n <= p*18 or b_ >= a_): SA.append((0, a_)); a_ += 1
            else: SA.append((1, b_)); b_ += 1
        g.SA = SA; g.U = {ks: p for p, (ch, ks) in enumerate(SA) if ch == 0}
    def dmaW(g, Gk):
        ph, ks = divmod(Gk, 18)
        m0 = salu('s_add_u32', 'm0', sMb, slot(Gk))
        if Gk >= 90:
            i = Gk - 90
            return [m0, salu('s_add_u32', sOff, sHA if i < 5 else sHB, 2*i*32*9216), dma(g.dH0, sWH, sOff, tag=('w', Gk)), dma(g.dH1, sWH, sOff, off=1024, tag=('w', Gk))]
        if ph == 2:
            return [m0, salu('s_add_u32', sOff, sQA if ks < 10 else sQB, ks*32*3456), dma(g.dQ, sQ, sOff, tag=('w', Gk)), dma(g.dQ, sQ2, sOff, off=1024, tag=('w', Gk))]
        ch = [0, 1, None, 2, 3][ph]
        if Gk < 36: ch, ks = g.SA[Gk]
        return [m0, salu('s_add_u32', sOff, sFA if ks < 10 else sFB, ks*32*9216 + ch*128), dma(vDmaF, sW1, sOff, tag=('w', Gk)), dma(vDmaF, sW3, sOff, off=1024, tag=('w', Gk))]
    def wfrag(g, Gk, fi): return v(WF + (Gk % 2)*16 + fi*4, 4)
    def readsW(g, Gk):
        ph = Gk // 18; R_ = []
        for fi in range(4):
            f = g.wfrag(Gk, fi); pre = []
            if Gk >= 90: ad = g.rH; o = slot(Gk) + (fi >> 1)*1024 + (fi & 1)*4096; zo = 256
            elif ph == 2:
                ad = g.rQ[fi]; o = slot(Gk); zo = 1024
                if fi == 3:
                    ks = Gk - 36; c = (ks >> 3)*2048 + (ks & 7)*128 - slot(Gk)
                    pre = [salu('s_mov_b32', sT3, c), valu('v_mad_i32_i24', ad, g.isG, sT3, g.rQ3b)]
            else: ad = [vRdF0, vRdF1][fi >> 1]; o = slot(Gk) + (fi & 1)*1024; zo = 512
            R_.append((pre, dsr('ds_read_b64_tr_b16', f.sub(0, 2), ad, o), dsr('ds_read_b64_tr_b16', f.sub(2, 2), ad, o + zo)))
        return R_
    def readsX(g, ks):
        return [dsr('ds_read_b128', xf(ks, tb), v(T + 2 + (ks & 1)), ((ks >> 1) % 4)*16384 + tb*2048, tag=('x', ks)) for tb in range(4)]
    def accq(g, st, fi, tb): return v(ACC[st] + (fi*4 + tb)*4, 4)
    def fixed1(g):
        F = {}; ad = lambda i, x: F.setdefault(i, []).extend(x)
        g.pre_reads = []
        g.xiss = {}; g.xbusy = set()
        if g.lazy:
            g.xiss = {1: 2, 3: 3}; g.xbusy = {0, 2, 4}
            for i, Gk in enumerate((4, 5, 6)):
                m0, so, d0, d1 = g.dmaW(Gk)
                if i == 0: g.pre_reads += [m0, so]
                else: ad(3*i - 1, [m0, so])
                ad(3*i, [d0]); ad(3*i + 1 + (i < 2), [d1]) if False else ad(3*i + 1, [d1])
        for d in range(4, 9):
            last = g.U[2*(d - 4) + 1] - 1; Gb = last + (last % 2)
            while Gb + 1 in g.xiss: Gb += 2
            g.xiss[Gb + 1] = d; g.xbusy.add(Gb + 2)
            assert Gb + 2 < g.U[2*d] - 3, (d, Gb, g.U)
        for Gk in range(99):
            b = 16*Gk
            for fi, (pre, r0, r1) in enumerate(g.readsW(Gk)):
                for z, r in enumerate((r0, r1)):
                    p = b - 16 + 4*fi - 5 + 2*z
                    if p < 0: g.pre_reads.append(r)
                    else: ad(p, [r])
                if pre: ad(b - 16 + 5, pre)
            xd = Gk in g.xbusy
            if Gk % 2 == 0:
                tags = [('w', Gk + 2), ('w', Gk + 3)] + [('x', ks//2) for ks, u in g.U.items() if u in (Gk + 2, Gk + 3)]
                wx = [wait_rd(('x', ks)) for ks, u in g.U.items() if u == Gk + 1]
                ad(b + 9, [wait_vm(*tags)] + wx); ad(b + 10, [barrier()])
                if g.fine0 is not None and g.fine0 <= Gk < g.fine0 + 36:
                    ad(b + 8, [raw(f"s_memrealtime s[96:97]\ns_waitcnt lgkmcnt(0)\nv_writelane_b32 v4, s96, {(Gk - g.fine0)//2}" if False else f"s_memrealtime s[96:97]\ns_waitcnt lgkmcnt(0)\nv_mov_b32 v6, s96\nv_mov_b32 v7, s96\nv_mov_b32 v5, s99\nds_write_b64 v5, v[6:7] offset:{8*((Gk - g.fine0)//2)}", 'label')]) if False else None
                    ad(b + 8, [raw(f"s_memrealtime s[96:97]\ns_waitcnt lgkmcnt(0)\nv_writelane_b32 {g.vF0}, s96, {(Gk - g.fine0)//2}", 'label')])
                if Gk + 7 <= 98:
                    m0, so, d0, d1 = g.dmaW(Gk + 7)
                    if xd: ad(b + 11, [m0, so])
                    else: ad(b + 7, [m0]); ad(b + 11, [so])
                    ad(b + 12, [d0]); ad(b + 14, [d1])
            elif Gk + 7 <= 98:
                xr = Gk < 36
                m0, so, d0, d1 = g.dmaW(Gk + 7)
                ad(b + 1, [m0]); ad(b + 3, [so]); ad(b + (8 if xr else 4), [d0]); ad(b + (10 if xr else 8), [d1])
            if Gk in g.xiss:
                D = g.dmaX(g.xiss[Gk])
                ad(b + 11, D[0:2]); ad(b + 12, D[2:3]); ad(b + 13, D[3:4]); ad(b + 14, D[4:5]); ad(b + 15, D[5:6]); ad(b + 16, D[6:7]); ad(b + 16 + 7, D[7:8]); ad(b + 16 + 8, D[8:9])
        for ks, u in g.U.items():
            for tb, x in enumerate(g.readsX(ks)):
                if u == 0: g.pre_reads.append(x)
                else: ad(16*(u - 1) + 2*tb, [x])
        g.F1 = F
    def phase1(g, ph, streams, extra={}):
        G0 = ph*18; nk = {0: 36, 5: 9}.get(ph, 18); st = ph % 2; mf = []
        for k in range(nk):
            for fi in range(4):
                for q in range(4):
                    tb = q if fi % 2 == 0 else 3 - q
                    if ph == 5: ks = 2*k + (fi >> 1); d = g.accq(st, fi & 1, tb); first = (k == 0 and fi < 2)
                    elif ph == 0: st, ks = g.SA[k]; d = g.accq(st, fi, tb); first = (ks == 0)
                    else: ks = k; d = g.accq(st, fi, tb); first = (k == 0)
                    mf.append(mfma(d, g.wfrag(G0 + k, fi), xf(ks, tb), 0 if first else None))
        fx = {i - 16*G0: list(x) for i, x in g.F1.items() if 16*G0 <= i < 16*(G0 + nk)}
        for i, x in extra.items(): fx[i] = x + fx.get(i, [])
        g.rep.append(f"P{ph}")
        return pack(mf, fx, streams, rep=g.rep)
    def silu(g, st, ch):
        P = []; n = 0
        half = (ch == 4)
        for tb in range(4):
            hf = vHf[tb % 2]
            for e in range(1 if half else 2):
                gq = g.accq(st, 2*e, tb); uq = g.accq(st, 2*e + 1, tb); t = vE[4*(n % 2):4*(n % 2) + 4]; n += 1
                P += [valu('v_mul_f32', t[i], sNL, gq[i]) for i in range(4)]
                P += [valu('v_exp_f32', t[0], t[0]), valu('v_mul_f32', gq[0], gq[0], uq[0]), valu('v_exp_f32', t[1], t[1]), valu('v_mul_f32', gq[1], gq[1], uq[1]),
                      valu('v_exp_f32', t[2], t[2]), valu('v_mul_f32', gq[2], gq[2], uq[2]), valu('v_exp_f32', t[3], t[3]), valu('v_mul_f32', gq[3], gq[3], uq[3])]
                P += [valu('v_add_f32', t[i], 1.0, t[i]) for i in range(4)]
                P += [valu('v_rcp_f32', t[i], t[i]) for i in range(4)]
                P += [valu('v_mul_f32', gq[i], gq[i], t[i]) for i in range(4)]
                P += [valu('v_cvt_pk_bf16_f32', hf[2*e], gq[0], gq[1]), valu('v_cvt_pk_bf16_f32', hf[2*e + 1], gq[2], gq[3])]
                if not half: P += [dsw('ds_write_b64', vHw, hf.sub(2*e, 2), ch*16384 + tb*1024 + 8*e)]
            if half: P += [dsw('ds_write_b64', g.vHh, hf.sub(0, 2), tb*1024)]
            for e in range(0 if half else 2): pass
        return P
    def phiA_loads(g):
        t0, t1, t2 = vJ
        P = []; srd(P, sMI, 8, 32*648)
        P += [salu('s_lshl_b32', sT0, sJ, 1), salu('s_add_u32', sT0, sT0, sC), salu('s_mul_i32', sT0, sT0, 648), salu('s_mul_i32', sT1, sC, 72), salu('s_sub_u32', sT0, sT0, sT1),
              salu('s_mov_b32', sT2, OOB)]
        for ob in range(2):
            F = vPhiA[ob]
            P += [valu('v_and_b32', t2, 15, vLane)]
            if ob == 1: P += [valu('v_and_b32', t0, 11, t2), valu('v_cmp_eq_u32', 'vcc', 0, t0), valu('v_lshrrev_b32', t2, 2, t2), valu('v_add_u32', t2, 16, t2),
                              valu('v_mov_b32', t0, sT2), valu('v_lshlrev_b32', t2, 1, t2), valu('v_cndmask_b32', t2, t0, t2, 'vcc')]
            else: P += [valu('v_lshlrev_b32', t2, 1, t2)]
            P += [valu('v_add_u32', t2, sT0, t2), valu('v_lshrrev_b32', t0, 4, vLane), valu('v_cmp_eq_u32', 'vcc', 0, t0), valu('v_mul_u32_u24', t0, 144, t0),
                  valu('v_add_u32', t0, t0, t2), valu('v_mov_b32', t1, sT2), valu('v_add_u32', t2, 576, t2), valu('v_cndmask_b32', t1, t1, t2, 'vcc')]
            gl = glue(scmp('s_cmp_eq_u32', sC, 1), salu('s_cselect_b64', sMask, 'vcc', 0)); gl.rd |= {('s', 'vcc')}
            P += [gl, valu('v_mov_b32', t2, sT2), valu('v_cndmask_b32', t2, t0, t2, sMask)]
            for e in range(4): P += [vload('buffer_load_ushort', v(T + 8*ob + e), t2 if e < 2 else t0, sMI, 0, off=36*e)]
            P += [glue(scmp('s_cmp_eq_u32', sC, 0), salu('s_cselect_b32', sT1, sT2, 0)), valu('v_max_u32', t0, sT1, t1)]
            for e in range(4): P += [vload('buffer_load_ushort', v(T + 8*ob + 4 + e), t1 if e < 2 else t0, sMI, 0, off=36*e)]
        pk = [valu('v_lshl_or_b32', vPhiA[i >> 2][i & 3], v(T + 2*i + 1), 16, v(T + 2*i)) for i in range(8)]
        return P, pk
    def softmax(g, x, tmp, outq, mx, mn, s0, s1):
        P = []
        P += [valu('v_max3_f32', mx, x[0], x[1], x[2]), valu('v_min3_f32', mn, x[0], x[1], x[2])]
        for i in range(3, 17, 2): P += [valu('v_max3_f32', mx, mx, x[i], x[i+1]), valu('v_min3_f32', mn, mn, x[i], x[i+1])]
        P += [valu('v_max_f32', mx, mx, x[17]), valu('v_min_f32', mn, mn, x[17]), valu('v_mul_f32', mx, sNL, mx), valu('v_mul_f32', mn, sL, mn)]
        for i in range(18): P += [valu('v_fma_f32', tmp[i], x[i], sNL, mn), valu('v_fma_f32', x[i], x[i], sL, mx)]
        for i in range(18):
            P += [valu('v_exp_f32', x[i], x[i]), valu('v_exp_f32', tmp[i], tmp[i])]
            if i == 2: P += [valu('v_add_f32', s0, x[0], x[1]), valu('v_add_f32', s1, tmp[0], tmp[1])]
            if i > 2: P += [valu('v_add_f32', s0, s0, x[i-1]), valu('v_add_f32', s1, s1, tmp[i-1])]
        P += [valu('v_add_f32', s0, s0, x[17]), valu('v_add_f32', s1, s1, tmp[17]), valu('v_rcp_f32', s0, s0), valu('v_rcp_f32', s1, s1)]
        for i in range(18): P += [valu('v_mul_f32', x[i], x[i], s0), valu('v_mul_f32', tmp[i], tmp[i], s1)]
        P += [valu('v_cvt_pk_bf16_f32', outq[8], x[16], x[17])]
        for i in range(8): P += [valu('v_cvt_pk_bf16_f32', outq[i], x[2*i], x[2*i+1])]
        for i in range(9): P += [valu('v_cvt_pk_bf16_f32', outq[9 + i], tmp[2*i], tmp[2*i+1])]
        return P
    def attn_post(g):
        t0, t1, t2 = vJ; A = []
        blk = lambda b, tb: g.accq(0, b, tb)
        A += [salu('s_lshl_b32', sT0, sR, 8), salu('s_add_u32', sT0, sT0, LOGIT - 192), valu('v_lshlrev_b32', t1, 2, vLane), valu('v_add_u32', t0, sT0, t1),
              valu('v_add_u32', t1, DUMMY, t1), valu('v_cmp_le_u32', 'vcc', 48, vLane), valu('v_cndmask_b32', t0, t1, t0, 'vcc')]
        A += [dsw('ds_write_b32', t0, blk(3, tb)[0], 64*tb) for tb in range(4)]
        Pq = [v(T + 8*tb, 4) for tb in range(4)]; Pk = [v(T + 8*tb + 4, 4) for tb in range(4)]
        A += [salu('s_mul_i32', sT0, sC, 128*72), salu('s_mul_i32', sT1, sR, 64*72), salu('s_add_u32', sT0, sT0, sT1), salu('s_add_u32', sT0, sT0, VV),
              salu('s_lshl_b32', sT1, sC, 2), salu('s_sub_u32', sT1, sT0, sT1),
              valu('v_and_b32', t0, 15, vLane), valu('v_mul_u32_u24', t0, 72, t0), valu('v_lshrrev_b32', t1, 4, vLane), valu('v_lshl_add_u32', t1, t1, 3, t0),
              valu('v_add_u32', t1, sT1, t1), valu('v_add_u32', t0, sT0, t0), valu('v_add_u32', t2, 24, t1), valu('v_add_u32', vE[0], 48, t0),
              valu('v_cmp_gt_u32', 'vcc', 16, vLane), valu('v_cndmask_b32', t1, t1, vE[0], 'vcc'), valu('v_cndmask_b32', t2, t2, vE[0], 'vcc'),
              valu('v_cmp_le_u32', 'vcc', 48, vLane), valu('v_mov_b32', vE[1], '0x3f80'), valu('v_cndmask_b32', t2, t2, vE[0], 'vcc')]
        for tb in range(4):
            for b in range(4):
                d = (Pq if b < 2 else Pk)[tb]; q = blk(b, tb)
                A += [valu('v_cvt_pk_bf16_f32', d[2*(b & 1)], q[0], q[1]), valu('v_cvt_pk_bf16_f32', d[2*(b & 1) + 1], q[2], q[3])]
            if tb > 0: A += [valu('v_add_u32', t1, 1152, t1), valu('v_add_u32', t2, 1152, t2)]
            A += [dsw2(t1, Pq[tb][2], Pq[tb][3], 0, 1), dsw2(t2, Pk[tb][2], Pk[tb][3], 0, 1), dsw('ds_write_b32', t0, vE[1], 1152*tb + 44)]
            A += [mfma(blk(2, tb), vPhiA[0], Pk[tb], 0), mfma(blk(3, tb), vPhiA[1], Pk[tb], 0), mfma(blk(0, tb), vPhiA[0], Pq[tb], 0), mfma(blk(1, tb), vPhiA[1], Pq[tb], 0)]
        def transp(b, r):
            R_ = [blk(b, tb)[r] for tb in range(4)]
            return [perm('v_permlane32_swap_b32', R_[0], R_[2]), perm('v_permlane32_swap_b32', R_[1], R_[3]), perm('v_permlane16_swap_b32', R_[0], R_[1]), perm('v_permlane16_swap_b32', R_[2], R_[3])]
        segs = []
        for (b0, base, who) in ((2, PHIK, 'k'), (0, PHIQ, 'q')):
            Sg = []
            tr = [transp(b0, r) for r in range(4)] + [transp(b0 + 1, 0)]
            for i in range(4):
                for x in tr: Sg.append(x[i])
            x = [blk(b0, i >> 2)[i & 3] for i in range(16)] + [blk(b0 + 1, 0)[0], blk(b0 + 1, 1)[0]]
            tmp = [v(T + i) for i in range(18)]
            oq = [blk(b0 + 1, 2), blk(b0 + 1, 3), v(T + 20, 4), blk(b0 + 1, 0), blk(b0 + 1, 1)]
            outq = [oq[i >> 2][i & 3] for i in range(18)]
            Sg += g.softmax(x, tmp, outq, vE[0], vE[1], vE[2], vE[3])
            ta_ = vE[5]
            if who == 'q': Sg += [salu('s_mul_i32', sT3, sW, 5120), salu('s_add_u32', sT3, sT3, base)]
            else: Sg += [salu('s_lshl_b32', sT3, sC, 1), salu('s_add_u32', sT3, sT3, sR), salu('s_mul_i32', sT3, sT3, 5120), salu('s_add_u32', sT3, sT3, base)]
            Sg += [valu('v_mul_u32_u24', ta_, 80, vLane), valu('v_add_u32', ta_, sT3, ta_)]
            Sg += [dsw('ds_write_b64', ta_, oq[i >> 1].sub(2*(i & 1), 2), 8*i) for i in range(9)]
            segs.append(Sg)
        A += segs[0]; Q = segs[1]
        B = []
        ta, tb_, tv = vHf[0][0], vHf[0][1], vHf[0][2]
        B += [valu('v_lshrrev_b32', t0, 4, vLane), valu('v_bfe_u32', t1, vLane, 2, 2), valu('v_lshl_add_u32', t0, t0, 3, t1),
              valu('v_and_b32', t1, 3, vLane), salu('s_mul_i32', sT0, sC, 10240), salu('s_add_u32', sT0, sT0, PHIK), valu('v_mul_u32_u24', t2, 80, t0),
              valu('v_add_u32', tb_, sT0, t2), valu('v_lshl_add_u32', ta, t1, 4, tb_),
              salu('s_mul_i32', sT0, sC, 128*72), salu('s_add_u32', sT0, sT0, VV + 8), salu('s_lshl_b32', sT1, sR, 5), salu('s_add_u32', sT0, sT0, sT1),
              salu('s_sub_u32', sT1, 1, sR), valu('v_mul_u32_u24', t1, sT1, t1), valu('v_mul_u32_u24', t0, 72, t0), valu('v_lshl_add_u32', t0, t1, 3, t0), valu('v_add_u32', tv, sT0, t0)]
        D = [blk(2, 0), blk(2, 1), blk(2, 2)]
        fr = lambda ks, i: (v(ACC[0] + 48 + 4*i, 4) if ks % 2 == 0 else v(T + 24 + 4*(i & 1), 4) if i < 2 else v(ACC[0] + 44, 4) if i == 2 else vHf[1])
        def rd(ks):
            X = []
            for z in range(2):
                o = (32*ks + 4*z)
                X += [dsr('ds_read_b64_tr_b16', fr(ks, 3).sub(2*z, 2), tv, o*72), dsr('ds_read_b64_tr_b16', fr(ks, 0).sub(2*z, 2), ta, o*80),
                      dsr('ds_read_b64_tr_b16', fr(ks, 1).sub(2*z, 2), ta, o*80 + 8), dsr('ds_read_b64_tr_b16', fr(ks, 2).sub(2*z, 2), tb_, o*80 + 64)]
            return X
        mm = lambda ks: [mfma(D[i], fr(ks, i), fr(ks, 3), 0 if ks == 0 else None) for i in range(3)]
        B += rd(0) + rd(1) + mm(0) + rd(2) + mm(1) + rd(3) + mm(2) + mm(3)
        C = []
        q1, q2_ = vHf[1], v(ACC[0] + 44, 4)
        C += [salu('s_lshl_b32', sT0, sJ, 1), salu('s_add_u32', sT0, sT0, sC), salu('s_lshl_b32', sT0, sT0, 4), salu('s_add_u32', sT0, sT0, sM), salu('s_mul_i32', sT0, sT0, 1536),
              salu('s_mov_b32', sT2, OOB), glue(scmp('s_cmp_eq_u32', sR, 1), salu('s_cselect_b64', sMask, -1, 0)),
              valu('v_lshlrev_b32', t0, 4, vLane), valu('v_and_b32', t1, 15, vLane), valu('v_lshrrev_b32', t2, 4, vLane), valu('v_cmp_gt_u32', 'vcc', 3, t1),
              valu('v_mul_u32_u24', t2, 3, t2), valu('v_add_u32', t1, t1, t2), valu('v_lshlrev_b32', t1, 4, t1), valu('v_add_u32', t1, 1024 + 256, t1), valu('v_mov_b32', t2, sT2),
              valu('v_cndmask_b32', t1, t2, t1, 'vcc'), valu('v_cndmask_b32', ta, t0, t1, sMask),
              valu('v_add_u32', t0, 1024, t0), valu('v_add_u32', t1, 192, t1), valu('v_cndmask_b32', t0, t0, t1, sMask), valu('v_cmp_gt_u32', 'vcc', 16, vLane), valu('v_cndmask_b32', tb_, t2, t0, 'vcc')]
        cv = lambda d, x, y: valu('v_cvt_pk_bf16_f32', d, x, y)
        C += [cv(q1[0], D[0][0], D[0][1]), cv(q1[1], D[0][2], D[0][3]), cv(q1[2], D[1][0], D[1][1]), cv(q1[3], D[1][2], D[1][3]),
              cv(q2_[0], D[2][0], D[2][1]), cv(q2_[1], D[2][2], D[2][3]), cv(q2_[2], D[2][0], D[2][1]), cv(q2_[3], D[2][2], D[2][3]),
              vstore('buffer_store_dwordx4', q1, ta, sKV, sT0, mods='sc1', tag='kv'), vstore('buffer_store_dwordx4', q2_, tb_, sKV, sT0, mods='sc1', tag='kv')]
        return A, Q, B, C
    def flag(g, t0, t1):
        return [salu('s_lshl_b32', sT0, sJ, 4), salu('s_mov_b32', sT1, OOB), glue(scmp('s_cmp_eq_u32', sW, 0), salu('s_cselect_b32', sT0, sT0, sT1)),
                valu('v_mov_b32', t0, sT1), valu('v_cmp_eq_u32', 'vcc', 0, vLane), valu('v_mov_b32', t1, sT0), valu('v_cndmask_b32', t0, t0, t1, 'vcc'), valu('v_mov_b32', t1, 1),
                I(f"buffer_atomic_add {t1}, {t0}, {sDBG}, 0 offen", 'vst', [t0, t1, sDBG], [], tag='flag', dep=set())]
    def half_addrs(g):
        t0, t1, t2 = vJ
        g.dH0, g.dH1, g.rH, g.vHh = v(8), v(9), v(10), v(11)
        P = [salu('s_lshl_b32', sT0, sC, 4), valu('v_lshrrev_b32', t0, 2, vLane), valu('v_add_u32', t0, sT0, t0), valu('v_mul_u32_u24', t0, 9216, t0),
             valu('v_bfe_u32', t1, vLane, 1, 1), valu('v_lshrrev_b32', t2, 5, vLane), valu('v_xor_b32', t1, t1, t2), valu('v_lshl_add_u32', t0, t1, 5, t0),
             valu('v_and_b32', t1, 1, vLane), valu('v_lshl_add_u32', g.dH0, t1, 4, t0), valu('v_add_u32', g.dH1, 32*9216 - 1024, g.dH0),
             valu('v_lshrrev_b32', t0, 5, vLane), valu('v_lshlrev_b32', t0, 11, t0), valu('v_bfe_u32', t1, vLane, 4, 1), valu('v_lshl_add_u32', t0, t1, 9, t0),
             valu('v_xor_b32', t1, sC, t1), valu('v_lshl_add_u32', t0, t1, 5, t0), valu('v_bfe_u32', t1, vLane, 2, 2), valu('v_lshl_add_u32', t0, t1, 6, t0),
             valu('v_and_b32', t1, 3, vLane), valu('v_lshl_add_u32', t0, t1, 3, t0), valu('v_add_u32', g.rH, RING, t0),
             salu('s_lshl_b32', sT0, sR, 12), salu('s_lshl_b32', sT1, sC, 3), salu('s_add_u32', sT0, sT0, sT1), salu('s_add_u32', sT0, sT0, 65536),
             valu('v_lshlrev_b32', t0, 4, vLane), valu('v_add_u32', g.vHh, sT0, t0)]
        return P

    def check(g, name, res, addr, srd_, thr):
        g.tails.append("\n".join([f"L_{name}_spin:", "s_mov_b32 s4, 0x40000", f"L_{name}_s2:", f"buffer_load_dword {res}, {addr}, {srd_}, 0 offen sc1", "s_waitcnt vmcnt(0)",
                          f"v_cmp_le_u32 vcc, {thr}, {res}", "s_sub_u32 s4, s4, 1", "s_cmp_eq_u32 s4, 0", f"s_cbranch_scc1 L_{name}_ok", "s_nop 1",
                          f"s_cmp_eq_u32 vcc_lo, {sExp}", f"s_cbranch_scc0 L_{name}_s2", f"s_branch L_{name}_ok"]))
        return [valu('v_cmp_le_u32', 'vcc', thr, res),
                raw(f"s_cmp_eq_u32 vcc_lo, {sExp}\ns_cbranch_scc0 L_{name}_spin\nL_{name}_ok:", 'salu', [{('s', 'vcc')}, res, addr], [res], cost=2)]
    def kv_gather(g):
        t0, t1, t2 = vJ
        poll0 = [salu('s_mov_b32', sT1, OOB), glue(scmp('s_cmp_eq_u32', sW, 0), salu('s_cselect_b32', sT0, 0, sT1)), valu('v_lshlrev_b32', t0, 4, vLane), valu('v_max_u32', t0, sT0, t0),
                 vload('buffer_load_dword', t1, t0, sDBG, 0, mods='sc1', lat=30)]
        poll1 = g.check('kv', t1, t0, sDBG, 16)
        buf = [v(T + 4*i, 4) for i in range(6)] + [v(232 + 4*i, 4) for i in range(6)]
        g.rA = v(228, 4)
        e0, e1, e2 = v(224), v(225), v(226)
        sel = [valu('v_and_b32', e0, 1, vLane), valu('v_lshlrev_b32', e0, 4, e0), valu('v_mov_b32', e2, '0x3f80'), valu('v_lshlrev_b32', e0, e0, e2), valu('v_and_b32', e1, 14, vLane)]
        for d in range(4): sel += [valu('v_cmp_eq_u32', 'vcc', 4*d, e1), valu('v_cndmask_b32', g.rA[d], 0, e0, 'vcc')]
        L1 = [salu('s_lshl_b32', sT0, sJ, 1), salu('s_add_u32', sT0, sT0, sC), salu('s_mul_i32', sT0, sT0, 24576), salu('s_mul_i32', sT1, sR, 768), salu('s_add_u32', sT0, sT0, sT1),
              valu('v_lshrrev_b32', t0, 4, vLane), valu('v_mul_u32_u24', t0, 1536, t0), valu('v_and_b32', t1, 15, vLane), valu('v_lshl_add_u32', t0, t1, 4, t0)]
        for i in range(4):
            if i: L1 += [salu('s_add_u32', sT0, sT0, 6144)]
            L1 += [vload('buffer_load_dwordx4', buf[4*gr + i], t0, sKV, sT0, off=256*gr, mods='sc1', lat=g.kvlat) for gr in range(3)]
        D = [v(224, 4), buf[0], buf[1]]
        L2 = [salu('s_mul_i32', sT0, sC, 1536), salu('s_mul_i32', sT1, sR, 768), salu('s_add_u32', sT0, sT0, sT1), salu('s_add_u32', sT0, sT0, KVE),
              valu('v_lshrrev_b32', t2, 4, vLane), valu('v_lshlrev_b32', t2, 2, t2), valu('v_lshl_add_u32', t2, t1, 4, t2), valu('v_add_u32', t2, sT0, t2)]
        for gr in range(3): L2 += [mfma(D[gr], g.rA, buf[4*gr + i], 0 if i == 0 else None) for i in range(4)]
        for gr in range(3): L2 += [valu('v_cvt_pk_bf16_f32', D[gr][0], D[gr][0], D[gr][1]), dsw('ds_write_b32', t2, D[gr][0], 256*gr)]
        return poll0, poll1, sel, L1, L2
    def o_part(g):
        t0, t1, t2 = vJ; P = []
        R_ = v(104, 12); A01, A11, A00, A10 = R_.sub(0, 4), R_.sub(2, 4), R_.sub(4, 4), R_.sub(8, 4)
        q = [v(T + 4*i, 4) for i in range(6)] + [v(96, 4), v(100, 4)]
        P += [salu('s_mul_i32', sT0, sC, 1536), salu('s_add_u32', sT0, sT0, KVE), valu('v_lshlrev_b32', t0, 4, vLane), valu('v_add_u32', t0, sT0, t0), dsr('ds_read_b128', A00, t0, 0),
              valu('v_and_b32', t0, 3, vLane), valu('v_min_u32', t0, 2, t0), valu('v_lshrrev_b32', t1, 4, vLane), valu('v_mul_u32_u24', t1, 3, t1), valu('v_add_u32', t1, t1, t0),
              valu('v_lshlrev_b32', t1, 4, t1), valu('v_add_u32', t1, sT0, t1), valu('v_lshlrev_b32', t0, 4, t0), valu('v_add_u32', t0, sT0, t0),
              valu('v_and_b32', t2, 15, vLane), valu('v_lshlrev_b32', t2, 4, t2), valu('v_add_u32', t2, sT0, t2),
              dsr('ds_read_b128', A10, t1, 1024 + 256), dsr('ds_read_b64', A01.sub(0, 2), t2, 1024), dsr('ds_read_b64', A11.sub(0, 2), t0, 1024 + 448)]
        E = [v(236 + i) for i in range(4)]; Bq = [a(176 + 4*i, 4) for i in range(4)]; B1 = [v(240 + 4*i, 4) for i in range(4)]
        P += [salu('s_lshl_b32', sT0, sR, 8), salu('s_add_u32', sT0, sT0, LOGIT), valu('v_and_b32', t0, 15, vLane), valu('v_lshlrev_b32', t1, 2, t0), valu('v_add_u32', t1, sT0, t1)]
        P += [dsr('ds_read_b32', E[tb], t1, 64*tb) for tb in range(4)]
        P += [salu('s_mul_i32', sT0, sW, 5120), salu('s_add_u32', sT0, sT0, PHIQ), valu('v_mul_u32_u24', t0, 80, t0), valu('v_add_u32', t0, sT0, t0),
              valu('v_lshrrev_b32', t1, 4, vLane), valu('v_lshl_add_u32', t1, t1, 4, t0)]
        for tb in range(4): P += [dsr('ds_read_b128', Bq[tb], t1, 1280*tb), dsr('ds_read_b64', B1[tb].sub(0, 2), t0, 1280*tb + 64)]
        cv = lambda d, x: [valu('v_cvt_pk_bf16_f32', d[0], x[0], x[1]), valu('v_cvt_pk_bf16_f32', d[1], x[2], x[3])]
        P += [valu('v_cmp_gt_u32', 'vcc', 16, vLane), salu('s_mov_b32', sT2, '0x42700000')]
        for tb in range(4):
            P += [valu('v_cndmask_b32', B1[tb][0], 0, B1[tb][0], 'vcc'), valu('v_cndmask_b32', B1[tb][1], 0, B1[tb][1], 'vcc'), valu('v_mov_b32', B1[tb][2], 0), valu('v_mov_b32', B1[tb][3], 0),
                  valu('v_min_f32', E[tb], sT2, E[tb]), valu('v_mul_f32', E[tb], sL, E[tb]), valu('v_exp_f32', E[tb], E[tb])]
        o0 = [q[2*tb] for tb in range(4)]; o1 = [q[2*tb + 1] for tb in range(4)]
        for tb in range(4): P += [mfma(o0[tb], A00, Bq[tb], 0), mfma(o1[tb], A10, Bq[tb], 0)]
        for tb in range(4): P += [mfma(o0[tb], A01, B1[tb]), mfma(o1[tb], A11, B1[tb])]
        P += [salu('s_mul_i32', sT0, sW, 5120), salu('s_add_u32', sT0, sT0, PHIQ), valu('v_lshlrev_b32', t0, 3, vLane), valu('v_add_u32', t0, sT0, t0),
              valu('v_lshlrev_b32', t1, 2, vLane), valu('v_add_u32', t1, sT0, t1), salu('s_mov_b32', sT2, '0x358637bd')]
        for tb in range(4): P += [valu('v_add_f32', o1[tb][2], sT2, o1[tb][2])]
        for tb in range(4): P += [valu('v_rcp_f32', o1[tb][2], o1[tb][2])]
        for tb in range(4): P += [valu('v_mul_f32', E[tb], E[tb], o1[tb][2])]
        for tb in range(4):
            P += [valu('v_mul_f32', o0[tb][k], o0[tb][k], E[tb]) for k in range(4)] + [valu('v_mul_f32', o1[tb][k], o1[tb][k], E[tb]) for k in range(2)]
            P += cv(o0[tb], o0[tb]) + [valu('v_cvt_pk_bf16_f32', o1[tb][0], o1[tb][0], o1[tb][1]), dsw('ds_write_b64', t0, o0[tb].sub(0, 2), 512*tb),
                  *([] if g.k4 else [valu('v_cndmask_b32', o1[tb][0], 0, o1[tb][0], 'vcc')]), dsw('ds_write_b32', t1, o1[tb][0], 2048 + 256*tb)]
        return P
    def hf(g, ks, tb): return a((ks*4 + tb)*4, 4)
    def h_reads(g, kss, vH, vH8):
        return [dsr('ds_read_b128', g.hf(ks, tb), vH8 if ks == 8 else vH, (0 if ks == 8 else ks*8192) + tb*1024) for ks in kss for tb in range(4)]
    def o_reads(g):
        t0, t1, t2 = vJ
        P = [salu('s_mul_i32', sT0, sR, 10240), salu('s_add_u32', sT0, sT0, PHIQ), valu('v_lshlrev_b32', t0, 3, vLane), valu('v_add_u32', t0, sT0, t0),
             valu('v_lshlrev_b32', t1, 2, vLane), valu('v_add_u32', t1, sT0, t1)]
        Rd = []
        if g.k4:
            P[-2:] = [valu('v_lshrrev_b32', t1, 4, vLane), valu('v_lshlrev_b32', t1, 8, t1), valu('v_and_b32', t2, 15, vLane), valu('v_lshl_add_u32', t1, t2, 2, t1), valu('v_add_u32', t1, sT0, t1)]
            for tb in range(4): Rd += [dsr('ds_read_b64', g.hf(9, tb).sub(0, 2), t0, 512*tb), dsr('ds_read_b64', g.hf(9, tb).sub(2, 2), t0, 5120 + 512*tb)]
            return P, Rd + [dsr('ds_read_b32', a(160), t1, 2048), dsr('ds_read_b32', a(161), t1, 5120 + 2048)]
        for tb in range(4):
            Rd += [dsr('ds_read_b64', g.hf(9, tb).sub(0, 2), t0, 512*tb), dsr('ds_read_b64', g.hf(9, tb).sub(2, 2), t0, 5120 + 512*tb),
                   dsr('ds_read_b32', g.hf(10, tb)[0], t1, 2048 + 256*tb), dsr('ds_read_b32', g.hf(10, tb)[1], t1, 5120 + 2048 + 256*tb)]
            P += [valu('v_accvgpr_write_b32', g.hf(10, tb)[2], 0), valu('v_accvgpr_write_b32', g.hf(10, tb)[3], 0)]
        return P, Rd
    def g2_dma_addrs(g):
        t0, t1, t2 = vJ
        g.dW2 = [v(12 + i) for i in range(4)]; g.dO9 = v(1); g.dO10 = v(13)
        P = [valu('v_bfe_u32', t1, vLane, 1, 2), valu('v_lshrrev_b32', t2, 4, vLane), valu('v_xor_b32', t1, t1, t2), valu('v_lshlrev_b32', t1, 5, t1),
             valu('v_and_b32', t2, 1, vLane), valu('v_lshl_add_u32', t1, t2, 4, t1),
             salu('s_lshl_b32', sT0, sW, 3), valu('v_lshrrev_b32', t0, 3, vLane), valu('v_add_u32', t2, sT0, t0), valu('v_mul_u32_u24', t2, 1152, t2), valu('v_add_u32', g.dW2[0], t2, t1)]
        P += [salu('s_mul_i32', sT0, sR, 2304), salu('s_add_u32', sT0, sT0, 2048), valu('v_add_u32', g.dO9, sT0, g.dW2[0]),
              valu('v_and_b32', t0, 3, t0), valu('v_lshrrev_b32', t2, 1, t0), valu('v_lshl_add_u32', t0, t2, 4, t0), valu('v_add_u32', t0, 16, t0), valu('v_mul_u32_u24', t0, 1152, t0),
              valu('v_add_u32', t0, 2048, t0), valu('v_add_u32', g.dO10, t0, t1),
              salu('s_mul_i32', sColF, sRowF, 1152), salu('s_mul_i32', sRowH, sRowH, 1152), salu('s_mul_i32', sOffX, sJ, 41472), salu('s_lshl_b32', sMx, sW, 10)]
        return P
    RB = [RING, 0, 98304]
    BARS = [4, 10, 14, 20, 26] + [x for n in range(3, 9) for x in (11*n - 2, 11*n + 4)] + [97]
    def g2_dma(g, q):
        n, ks = g.SEQ[q]; tg = ('g2', q); P = [salu('s_add_u32', 'm0', sMx, g.SL[q])]
        if ks >= 9: return P + [salu('s_add_u32', sOff, sOffX, n*128), dma(g.dO9 if ks == 9 else g.dO10, sWO, sOff, tag=tg)]
        return P + [salu('s_add_u32', sOff, sColF if ks < 8 else sRowH, n*128 + (ks*36864 if ks < 8 else 0)), dma(g.dW2[0], sW2, sOff, tag=tg)]
    def plan_slots(g):
        A_ = [RING + 4096*i for i in range(16)]; free = A_[4:] + [4096*i for i in range(12)]; g.SL = {}; g.ISS = {}; q = 0; N = 99; used = []
        for b in [-2, -1] + g.BARS:
            if b == -1: free += A_[:4]
            if b == 14: free += [4096*i for i in range(12, 16)]
            if b == 26: free += [MISC + 4096*i for i in range(2 if g.own else 6)]
            if b >= 0:
                free += [sl for (p, sl) in used if p <= b - 1]; used = [(p, sl) for (p, sl) in used if p > b - 1]
            nx = next((x for x in g.BARS if x > b), N); lim = {-2: 12, -1: 6}.get(b, int((nx - b)*g.drate + 0.5))
            L = []
            while free and q < N and len(L) < lim: sl = free.pop(0); g.SL[q] = sl; used.append((q, sl)); L.append(q); q += 1
            g.ISS[b] = L
        assert q == N
    def g2_rd_addrs(g):
        t0, t1, t2 = vJ
        g.r2 = [[v(T + 24), v(T + 25)], [v(T + 26), v(T + 27)], [v(112), v(113)]]; g.r10 = [[v(T + 28), v(T + 29)], [v(T + 30), v(T + 31)], [v(114), v(115)]]
        g.vP = [v(116 + i) for i in range(4)]
        t3 = g.r2[0][0]
        P = [valu('v_lshrrev_b32', t0, 5, vLane), valu('v_lshlrev_b32', t0, 10, t0), valu('v_bfe_u32', t1, vLane, 2, 3), valu('v_lshl_add_u32', t0, t1, 7, t0),
             valu('v_and_b32', t2, 3, vLane), valu('v_lshl_add_u32', t0, t2, 3, t0), valu('v_lshrrev_b32', t1, 1, t1), salu('s_lshl_b32', sT1, sC, 1), valu('v_xor_b32', t1, sT1, t1),
             valu('v_lshlrev_b32', t1, 5, t1), valu('v_xor_b32', t3, 32, t1), valu('v_add_u32', g.r2[1][0], t0, t1), valu('v_add_u32', g.r2[1][1], t0, t3),
             valu('v_bfe_u32', t1, vLane, 2, 2), valu('v_lshlrev_b32', t0, 7, t1), valu('v_lshl_add_u32', t0, t2, 3, t0), valu('v_lshrrev_b32', t1, 1, t1), valu('v_xor_b32', t1, sT1, t1),
             valu('v_lshlrev_b32', t1, 5, t1), valu('v_xor_b32', t3, 32, t1), salu('s_lshl_b32', sT0, sW, 10),
             valu('v_add3_u32', g.r10[1][0], t0, t1, sT0), valu('v_add3_u32', g.r10[1][1], t0, t3, sT0)]
        for e in range(2): P += [valu('v_add_u32', g.r2[0][e], g.RB[0], g.r2[1][e]), valu('v_add_u32', g.r10[0][e], g.RB[0], g.r10[1][e])]
        Q = []
        for e in range(2): Q += [valu('v_add_u32', g.r2[2][e], g.RB[2], g.r2[1][e]), valu('v_add_u32', g.r10[2][e], g.RB[2], g.r10[1][e])]
        Q += [salu('s_mul_i32', sT0, sM, 144), salu('s_lshl_b32', sT1, sC, 3), salu('s_add_u32', sT0, sT0, sT1), salu('s_lshl_b32', sT1, sR, 2), salu('s_add_u32', sT0, sT0, sT1),
              salu('s_lshl_b32', sT0, sT0, 4), salu('s_add_u32', sT0, sT0, sJ), salu('s_lshl_b32', sT0, sT0, 10), valu('v_lshlrev_b32', t0, 4, vLane), valu('v_add_u32', g.vP[0], sT0, t0)]
        if g.tokm: Q[-2:] = [valu('v_and_b32', t0, 15, vLane), valu('v_lshlrev_b32', t0, 6, t0), valu('v_lshrrev_b32', t1, 4, vLane), valu('v_lshl_add_u32', t0, t1, 4, t0), valu('v_add_u32', g.vP[0], sT0, t0)]
        Q += [valu('v_add_u32', g.vP[i], 16384*i, g.vP[0]) for i in range(1, 4)]
        return P, Q
    def red_setup(g):
        t0, t1, t2 = vJ
        g.vLd, g.vOut, g.vS, g.vPA, g.vPR, g.vFA, g.vFV = [v(120 + i) for i in range(7)]
        g.rD = v(224, 4)
        P = []; srd(P, sOUT, 22, 2048*1152)
        P += [salu('s_lshr_b32', sT0, sJ, 1), salu('s_lshl_b32', sT0, sT0, 4), *([salu('s_lshl_b32', sT1, sW, 2), salu('s_add_u32', sT0, sT0, sT1), valu('v_bfe_u32', t0, vLane, 2, 2)] if g.tokm else [valu('v_and_b32', t0, 15, vLane)]),
              valu('v_add_u32', t0, sT0, t0), valu('v_lshlrev_b32', t1, 2, t0), valu('v_add_u32', t1, LOGIT, t1), dsr('ds_read_b32', g.vS, t1, 0),
              salu('s_lshl_b32', sT0, sM, 7), valu('v_add_u32', t0, sT0, t0), valu('v_mul_u32_u24', t0, 1152, t0), *([valu('v_and_b32', t1, 3, vLane), valu('v_lshl_add_u32', t0, t1, 3, t0)] if g.tokm else [salu('s_lshl_b32', sT0, sW, 3), valu('v_add_u32', t0, sT0, t0)]),
              valu('v_lshrrev_b32', t1, 5, vLane), valu('v_lshl_add_u32', t0, t1, 5, t0), valu('v_bfe_u32', t1, vLane, 4, 1), valu('v_lshl_add_u32', t0, t1, 2, t0),
              salu('s_and_b32', sT1, sJ, 1), salu('s_lshl_b32', sT0, sT1, 6), valu('v_add_u32', g.vOut, sT0, t0),
              salu('s_lshl_b32', sT1, sT1, 3), salu('s_mul_i32', sT0, sM, 144), salu('s_add_u32', sT0, sT0, sT1), salu('s_lshr_b32', sT1, sJ, 1), salu('s_add_u32', sT0, sT0, sT1),
              salu('s_lshl_b32', sT0, sT0, 14), salu('s_lshl_b32', sT1, sW, 8), salu('s_add_u32', sT0, sT0, sT1), valu('v_lshrrev_b32', t0, 4, vLane), valu('v_lshlrev_b32', t0, 10, t0),
              valu('v_and_b32', t1, 15, vLane), valu('v_lshl_add_u32', t0, t1, 4, t0), valu('v_add_u32', g.vLd, sT0, t0),
              salu('s_mov_b32', sT1, OOB), valu('v_mov_b32', t0, sT1), valu('v_mov_b32', t2, sFl), valu('v_cmp_eq_u32', 'vcc', 0, vLane), salu('s_andn2_b32', sT0, sFl, 255),
              valu('v_cndmask_b32', g.vFA, t0, t2, 'vcc'), valu('v_lshlrev_b32', t2, 2, vLane), valu('v_add_u32', t2, sT0, t2), valu('v_cmp_gt_u32', 'vcc', 16, vLane),
              salu('s_mov_b32', sT2, '0x42700000'), valu('v_cndmask_b32', g.vPA, t0, t2, 'vcc'),
              valu('v_min_f32', g.vS, sT2, g.vS), valu('v_mul_f32', g.vS, sL, g.vS), valu('v_exp_f32', g.vS, g.vS), valu('v_add_f32', g.vS, 1.0, g.vS), valu('v_rcp_f32', g.vS, g.vS),
              ]
        return P
    def rbuf(g, c, i): return v(T + 4*i, 4) if (c == 5 and c not in g.tailc) else a((176 + c*16 if c < 5 else (c - 5)*16) + 4*i, 4)
    def red_flag(g, val): return [valu('v_mov_b32', g.vFV, val), vstore('buffer_store_dword', g.vFV, g.vFA, sPART, 0, mods='sc1', tag='fl')]
    def red_poll(g): return [vload('buffer_load_dword', g.vPR, g.vPA, sPART, 0, mods='sc1', lat=30)]
    def red_ld(g, c):
        P = []
        if g.own: return [salu('s_mov_b32', sT2, c*262144)] + [vload('buffer_load_dwordx4', g.rbuf(c, i), g.vL4[i], sPART, sT2, mods='sc1', lat=36) for i in range(4)]
        for i in range(4): P += [salu('s_mov_b32', sT2, c*262144 + i*4096), vload('buffer_load_dwordx4', g.rbuf(c, i), g.vLd, sPART, sT2, mods='sc1', lat=36)]
        return P
    def red_m(g, c):
        D = g.rD
        o_ = [dsr('ds_read_b128', v(24, 4), v(29), c*1024), mfma(D, v(20, 4), v(24, 4), 0)] if g.own else []
        return o_ + [mfma(D, g.rA, g.rbuf(c, i), 0 if (i == 0 and not g.own) else None) for i in range(4)] + \
               [valu('v_mul_f32', D[0], D[0], g.vS), valu('v_mul_f32', D[1], D[1], g.vS), valu('v_cvt_pk_bf16_f32', D[0], D[0], D[1]), vstore('buffer_store_dword', D[0], g.vOut, sOUT, 0, off=c*128, mods=g.omods)]
    def own_setup(g):
        t0, t1, t2 = vJ; g.vL4 = [g.vLd, v(30), v(31), v(11)]; g.sOw = s(38)
        P = [salu('s_bfe_u32', sT0, sJ, '0x20001')]
        for tb in range(1, 4): P += [glue(scmp('s_cmp_eq_u32', sT0, tb), salu('s_cselect_b64', s(30 + 2*tb, 2), -1, 0))]
        P += [salu('s_lshr_b32', sT1, sJ, 3), salu('s_lshl_b32', sT1, sT1, 1), salu('s_and_b32', sT2, sJ, 1), salu('s_add_u32', sT1, sT1, sT2),
              glue(scmp('s_cmp_eq_u32', sT1, sW), salu('s_cselect_b32', g.sOw, 1024, 0), salu('s_cselect_b32', sT1, 0, 9216), salu('s_cselect_b32', sT0, sT0, 7)), salu('s_add_u32', sT1, sT1, OWN),
              valu('v_and_b32', t0, 15, vLane), valu('v_lshrrev_b32', t1, 1, t0), valu('v_lshrrev_b32', t2, 4, vLane), valu('v_add_u32', t2, t1, t2), valu('v_and_b32', t2, 3, t2),
              valu('v_lshlrev_b32', t1, 6, t0), valu('v_lshl_add_u32', t1, t2, 4, t1), valu('v_add_u32', v(28), sT1, t1),
              salu('s_lshl_b32', sT1, sW, 8), salu('s_add_u32', sT1, sT1, OWN), salu('s_lshl_b32', sT2, sW, 1), valu('v_lshrrev_b32', t1, 3, t0), valu('v_add3_u32', t1, t1, t0, sT2),
              valu('v_and_b32', t1, 3, t1), valu('v_and_b32', t0, 12, t0), valu('v_add_u32', t0, t0, t1), valu('v_lshlrev_b32', t0, 4, t0), valu('v_add_u32', v(29), sT1, t0), salu('s_mov_b32', sT1, OOB)]
        for tb in range(4): P += [glue(scmp('s_cmp_eq_u32', sT0, tb), salu('s_cselect_b32', sT2, sT1, 0)), valu('v_max_u32', g.vP[tb], sT2, g.vP[tb])]
        Q = [valu('v_lshrrev_b32', t2, 4, vLane), valu('v_mov_b32', t0, OOB)]
        for i in (3, 2, 1, 0):
            Q += [valu('v_add_u32', t1, 4*i, t2), valu('v_cmp_eq_u32', 'vcc', sJ, t1), valu('v_add_u32', g.vL4[i], 4096*i, g.vLd), valu('v_cndmask_b32', g.vL4[i], g.vL4[i], t0, 'vcc')]
        Q += [valu('v_cmp_gt_u32', 'vcc', 16, vLane)] + [valu('v_cndmask_b32', v(20 + d), 0, g.rA[d], 'vcc') for d in range(4)]
        return P, Q
    def own_put(g, n):
        d = lambda tb: v(192 + (n % 2)*16 + tb*4, 4); x = v(16, 4)
        P = [valu('v_cndmask_b32', x[k], d(0)[k], d(1)[k], s(32, 2)) for k in range(4)]
        for tb in (2, 3): P += [valu('v_cndmask_b32', x[k], x[k], d(tb)[k], s(30 + 2*tb, 2)) for k in range(4)]
        return P + [dsw('ds_write_b64', v(28), x.sub(0, 2), 0), dsw('ds_write_b64', v(28), x.sub(2, 2), 8), valu('v_add_u32', v(28), g.sOw, v(28))]
    def w2f(g, q, e): return v(WF + ((q + 2) % 4)*8 + e*4, 4)
    SEQ = [(0, k) for k in range(6)] + [(1, k) for k in range(6)] + [(0, 6), (0, 7), (1, 6), (1, 7), (0, 8), (0, 9), (0, 10), (1, 8), (1, 9), (1, 10)] + [(n, k) for n in range(2, 9) for k in range(11)]
    def g2_reads(g, q):
        n, ks = g.SEQ[q]; X = []; ad_ = g.SL[q]; b = 1 if ad_ < RING else 0 if ad_ < MISC else 2; o = ad_ - g.RB[b]
        for e in range(2):
            f = g.w2f(q, e)
            if ks == 10: X.append([dsr('ds_read_b64_tr_b16', f.sub(0, 2), g.r10[b][e], o)])
            else: X.append([dsr('ds_read_b64_tr_b16', f.sub(2*z, 2), g.r2[b][e], o + z*2048) for z in range(2)])
        return X
    def acc2(g, n, e, tb): return v(128 + (n % 2)*32 + (e*4 + tb)*4, 4)
    def g2_epi(g, n):
        P = [salu('s_mov_b32', sT3, n*262144)]; St = []
        for tb in range(4):
            d = v(192 + (n % 2)*16 + tb*4, 4)
            for e in range(2):
                x = g.acc2(n, e, tb)
                P += [valu('v_cvt_pk_bf16_f32', d[2*e], x[0], x[1]), valu('v_cvt_pk_bf16_f32', d[2*e + 1], x[2], x[3])]
            P += [vstore('buffer_store_dwordx4', d, g.vP[tb], sPART, sT3, tag=('part', n), mods=g.pmods)]
        return P
    def fstamp(g):
        prs = list(range(6, 22, 2)) + list(range(40, 48, 2)) + [28, 30, 72, 74] + [64, 66, 68, 70]
        r = prs[g.nf]; g.nf += 1; g.fregs.append(r)
        return raw(f"s_memrealtime s[{r}:{r+1}]", 'label')
    def f0dump(g, at):
        if g.fine0 != at: return []
        P = [valu('v_lshlrev_b32', v(5), 3, vLane), valu('v_add_u32', v(5), sT4, v(5)), valu('v_mov_b32', v(6), g.vF0), valu('v_mov_b32', v(7), g.vF0), valu('v_cmp_gt_u32', 'vcc', 18, vLane),
             valu('v_mov_b32', g.vF0, OOB), valu('v_cndmask_b32', v(5), g.vF0, v(5), 'vcc'), vstore('buffer_store_dwordx2', v(6, 2), v(5), sPART, 0, off=8*14)]
        return P
    def fdump(g):
        if not g.fine: return []
        P = [raw("s_waitcnt lgkmcnt(0)", 'wait'), valu('v_mov_b32', v(5), sT4)]
        for i, r in enumerate(g.fregs): P += [valu('v_mov_b32', v(6), s(r)), valu('v_mov_b32', v(7), s(r)), vstore('buffer_store_dwordx2', v(6, 2), v(5), sPART, 0, off=8*(g.ns + i)), raw('s_nop 1', 'wait')]
        return P
    def gemm2(g, X1, X2, X3, X4, X5):
        mf = []; F = {}; st = []
        ad = lambda i, x: F.setdefault(i, []).extend(x)
        for q, (n, ks) in enumerate(g.SEQ):
            for e in range(2):
                if ks == 10 and g.k4:
                    mf += [mfma4b(v(g.acc2(n, e, 0).a, 16), g.w2f(q, e).sub(0, 2), a(160, 2)), None, None, None]; continue
                for i in range(4):
                    tb = i if e == 0 else 3 - i
                    mf.append(mfma(g.acc2(n, e, tb), g.w2f(q, e), g.hf(ks, tb), 0 if ks == 0 else None))
            if q + 2 < 99:
                X = g.g2_reads(q + 2)
                for e in range(2):
                    for z, x in enumerate(X[e]): ad(8*q + 4*e + 2*z + 1, [x])
        flg, chk, mm = g.plan; bl = g.BARS
        oP, oQ = g.own_setup() if g.own else ([], [])
        for bi, p in enumerate(bl):
            nx = bl[bi + 1] if bi + 1 < len(bl) else 99
            if p == 14: ad(8*p - 1, [wait_ds()])
            tags = [('g2', q) for q in range(p + 2, min(nx + 2, 99))] + ([('part', flg[p])] if p in flg else [])
            if tags: ad(8*p - 1, [wait_vm(*tags)])
            ad(8*p, [barrier()])
            if g.fine: ad(8*p - 2, [g.fstamp()])
            if g.ISS[p]: st.append((sum([g.g2_dma(q) for q in g.ISS[p]], []), 8*p + 1, 8*nx - 1))
            if p in flg: st.append((g.red_flag(flg[p] + 1), 8*p + 1, 8*p + 10))
            if p in chk:
                pp, cs = chk[p]
                ck = g.check(f"r{p}", g.vPR, g.vPA, sPART, cs[-1] + 1)
                st.append((g.red_poll(), 8*pp + 12, 8*pp + 24)); st.append((ck, 8*p - 8, 8*p - 1))
                R_ = sum([g.red_ld(c) for c in cs], [])
                st.append((spaced(R_, 'ld', g.lsp), 8*p + 4, min(8*p + 14 + g.lsp*4*len(cs), 791)))
        for p, cs in mm.items(): st.append((sum([g.red_m(c) for c in cs], []), 8*p + 4, 8*p + 38))
        ends = {0: 18, 1: 21}
        for n in range(8):
            e = ends.get(n, 11*n + 10); b = 8*(e + 1)
            st.append((spaced(g.g2_epi(n), 'st', 5 if n == 0 else g.esp), b + 2, b + (23 if n == 0 else 14 + 3*g.esp)))
            if g.own: st.append((g.own_put(n), b + (24 if n == 0 else 40), b + (48 if n == 0 else 64)))
        st = [(X2, 0, 31)] + st + [(X1, 0, 8*14 - 2), (g.X1b, 2, 8*14 - 8), (X3, 8*14 + 1, 8*16 - 2), (X4 + oP, 8*16, 8*19), (X5 + oQ, 8*19, 8*26 - 2)]
        g.rep.append("G2")
        P = pack(mf, F, st, rep=g.rep)
        P += g.stamp()
        dl = [c for p in chk for c in chk[p][1]]; dm = [c for p in mm for c in mm[p]]
        f7 = 7 in flg.values()
        rest = [c for c in range(7) if c not in dl]; a_, b_ = rest[:g.tpre], rest[g.tpre:]
        LD = lambda cs: sum([g.red_ld(c) for c in cs], []); M = lambda cs: sum([g.red_m(c) for c in cs], [])
        fs = lambda: [g.fstamp()] if g.fine else []
        pend = [c for c in dl if c not in dm]
        if max(flg.values()) < 6:
            P += g.g2_epi(8) + (g.own_put(8) if g.own else []) + M(pend[:2]) + [wait_ds(), wait_vm(('part', 8)), barrier()] + g.red_flag(9) + g.red_poll() + M(pend[2:])
            return P + g.check("t2", g.vPR, g.vPA, sPART, 9) + [barrier()] + LD(rest + [7, 8]) + M(rest + [7, 8])
        P += g.red_poll() + g.g2_epi(8) + (g.own_put(8) if g.own else []) + M(pend) + [wait_ds()] + g.check("t0", g.vPR, g.vPA, sPART, 7) + [barrier()] + LD(a_) + fs()
        if f7:
            P += g.red_poll() + [wait_vm(('part', 8))] + g.check("t1", g.vPR, g.vPA, sPART, 8) + [barrier()] + g.red_flag(9) + LD(b_[:g.tmid]) + g.red_poll() + LD(b_[g.tmid:] + [7]) + fs()
            P += g.check("t2", g.vPR, g.vPA, sPART, 9) + [barrier()] + fs() + LD([8]) + M(rest + [7, 8])
        else:
            P += [wait_vm(('part', 8)), barrier()] + g.red_flag(9) + LD(b_[:g.tmid]) + g.red_poll() + LD(b_[g.tmid:]) + fs()
            P += g.check("t2", g.vPR, g.vPA, sPART, 9) + [barrier()] + fs() + LD([7, 8]) + M(rest + [7, 8])
        return P
    def main(g):
        P = g.prologue()
        hA = g.half_addrs(); g.fixed1()
        if g.stamps:
            for r in ((96, 97, 95) if 'f' in g.dbg else (97, 95)):
                P += [valu('v_mov_b32', v(6), s(r)), valu('v_mov_b32', v(7), s(r)), valu('v_mov_b32', v(5), sT4), vstore('buffer_store_dwordx2', v(6, 2), v(5), sPART, 0, off=8*g.ns), raw('s_nop 1', 'wait')]; g.ns += 1
        P += g.stamp()
        P += [wait_vm(('w', 0), ('w', 1), ('x', 0)), barrier()] + g.pre_reads + ([] if g.early else (g.dmaX(2) if g.ord < 3 else []) + g.dmaW(4) + g.dmaW(5)) + g.dmaX(3) + g.dmaW(6) if not g.lazy else [wait_vm(('w', 0), ('w', 1), ('x', 0)), barrier()] + g.pre_reads
        P += g.stamp()
        phL, phP = g.phiA_loads()
        pf = g.pf
        e0 = 16*(g.U[17] + 1)
        P += g.phase1(0, [(g.late + g.gate_late + [wait_ds()] + (g.prefetchQ() if g.split else []), 2, 350), ((g.prefetch13(2) if pf else []) + (g.prefetchQ() if pf and g.qlate and not g.split else []) + phL, max(16*g.U[17] - 6, 350), 570),
                          (g.silu(0, 0), e0 + 4, 576)]) + g.stamp() + g.f0dump(0)
        P += g.phase1(2, [(phP + (g.prefetch13(3) if pf and not g.pfp else []), 60, 280), (g.silu(1, 1), 4, 288)]) + g.stamp()
        A, Q, B, C = g.attn_post()
        P += g.phase1(3, [((g.prefetch13(3, vHf[0][0], vHf[0][1]) + g.prefetch13(4, vHf[0][0], vHf[0][1])[6:] + (g.prefetch2(vHf[0][0], vHf[0][2], vHf[0][1]) if g.pfp == 1 else []) if pf and g.pfp else []) + A + [wait_ds()], 1, g.p3b - 1), (g.prefetch2(vHf[1][0], vHf[1][1], vHf[1][2]) if pf and g.pfp == 4 else [], 80, 110), (B + C, g.p3b + 1, 280), (Q, g.p3b + 1, 288)]) + g.stamp()
        rA, rB = g.g2_rd_addrs(); g2a = g.g2_dma_addrs()
        P += g.phase1(4, [(g.flag(vJ[0], vJ[1]) + (g.prefetch13(4) + g.prefetch2(v(T), v(T+1), v(T+2)) if pf and not g.pfp else []) + hA + (g.prefetch2(v(T), v(T + 1), v(T + 2)) if g.split else []), 43, 230 if g.split else 170), (rA + g2a + (g.prefetch2(v(T), v(T + 1), v(T + 2)) if pf and g.pfp == 3 and not g.split else []), 230 if g.split else 180, 288), (g.silu(1, 2), 4, 288)],
                      extra={41: [wait_vm('kv')]}) + g.stamp() + g.f0dump(54)
        poll0, poll1, sel, L1, L2 = g.kv_gather()
        vH, vH8 = v(2), v(3)
        hr = [valu('v_lshlrev_b32', vH8, 4, vLane), salu('s_lshl_b32', sT3, sR, 12), valu('v_add_u32', vH, sT3, vH8), valu('v_add_u32', vH8, 65536, vH)]
        H = lambda ks: g.h_reads(ks, vH, vH8)
        for i in (16*98 + 9, 16*98 + 10): g.F1.pop(i)
        g.plan_slots()
        X = {135: [wait_vm(*[('g2', q) for q in range(6)]), wait_ds()], 136: [barrier()]}
        rr = [x for q in range(2) for y in g.g2_reads(q) for x in y]
        for i, x in enumerate(rr): X.setdefault(137 + min(i, 6), []).append(x)
        P += g.phase1(5, [(sum([g.g2_dma(q) for q in g.ISS[-2]], []), 107, 135), (poll0 + (g.prefetch2(v(T), v(T + 1), v(T + 2)) if pf and g.pfp == 2 else []) + sel + poll1, 0, 41), (hr + H([0, 1]), 16, 40), (H([2, 3]), 40, 60), (H([4, 5]), 60, 90),
                          (L1 + (g.prefetch2(v(224), v(225), v(226)) if pf and g.pfp == 5 else []) + L2, 43, 132), (g.silu(0, 3), 4, 132)], extra=X) + g.stamp() + g.f0dump(64)
        oa, orr = g.o_reads()
        X1 = H([6, 7]) + g.o_part() + ([] if g.xsep else g.silu(1, 4)) + oa + [wait_ds()]; g.X1b = g.silu(1, 4) if g.xsep else []
        P += g.gemm2(X1, sum([g.g2_dma(q) for q in g.ISS[-1]], []), H([8]) + orr, rB, g.red_setup()) + g.stamp() + g.fdump()
        import asmlib; asmlib.LOOSE = bool(g.dbg)
        if 'w' in g.dbg: P = [x for x in P if not (x.k == 'wvm')]
        if 'b' in g.dbg: P = [x for x in P if not (x.k == 'bar')]
        if 'v' in g.dbg: P = [x for x in P if not (x.k in ('trans',) or x.t.startswith('v_mul_f32') or x.t.startswith('v_add_f32') or x.t.startswith('v_cvt'))]
        if 'd' in g.dbg: P = [x for x in P if not (x.k == 'dma')]
        if 'r' in g.dbg: P = [x for x in P if not (x.t.startswith('ds_read_b64_tr'))]
        if 'c' in g.dbg: P = [x if '_spin' not in x.t else label(x.t.split('\n')[-1][:-1]) for x in P]
        if 'L' in g.dbg: P = [x for x in P if not (x.k == 'vld' and 'dwordx4 a' in x.t)]
        if 'k' in g.dbg: P = [x for x in P if x.tag != 'kv']
        if 'W' in g.dbg: P = [x for x in P if x.k != 'dsw']
        if 'P' in g.dbg: P = [x for x in P if x.k != 'perm']
        if 'p' in g.dbg: P = [x for x in P if not (isinstance(x.tag, tuple) and x.tag[0] == 'part')]
        rep = {}
        F = finalize(P, report=rep)
        print(rep, g.rep, file=sys.stderr)
        return text(F) + "\ns_endpgm\n" + "\n".join(g.tails) + "\nL_end:"

def build(**kw):
    g = G(**kw)
    body = g.main()
    hdr = "; gated mix: hedgehog linear attention + SwiGLU FFN fused in one launch (text emitted by my own generator script)\n"
    hdr += "; @launch grid=(256,1,1) block=(256,1,1) lds=163840\n"
    hdr += '.amdgcn_target "amdgcn-amd-amdhsa--gfx950"\n'
    return hdr + kernel_text(KN + "_kernel", body, vgpr=256, agpr=256)
if __name__ == "__main__":
    kw = {}
    out = sys.argv[1]
    for x in sys.argv[2:]:
        k, val = x.split("="); kw[k] = eval(val)
    t = build(**kw)
    open(out, "w").write(t)
```

```python
import sys
from asmlib import *
KN = "gated_mix__linear_kernel_hedgehog__glu_gated_swiglu__prompt"
H0 = 0; RING = 73728; MISC = 139264; PHIQ = MISC; LOGIT = MISC + 20480; DUMMY = MISC + 20992; KVE = MISC + 21248; KVM = 135168; OWN = MISC + 8192; GA = MISC
PHIK = 32768; VV = PHIK + 20480
S0 = 90112; ST = [S0, 0, 45056]; WST = 11264
WS_PART = 0; WS_SC = 37748736; WS_KV = WS_SC + 8192; WS_KV_BYTES = 16*2*16*1536; WS_STAMP = 48 << 20; WS_FL = 40 << 20
LOG2E = 0x3fb8aa3b; NLOG2E = 0xbfb8aa3b
OOB = 0x7ff00000
sX, sQ, sQ2, sW1, sW3, sWH, sW2, sWO, sPART, sKV, sDBG, sMI = [s(28 + 4*i, 4) for i in range(12)]
sJ, sM, sW, sR, sC = s(76), s(77), s(78), s(79), s(80)
sOff, sColF, sColH, sMb, sT0, sT1, sNL, sL, sOffX, sMx, sT2, sRowF, sRowH = [s(81 + i) for i in range(13)]
sExp = s(3); sOUT = sWH; sMask = s(94, 2); sStamp = s(96, 2); sT3 = s(98); sT4 = s(99); sFl = s(27); sXA, sXB, sFA, sFB, sQA, sQB, sHA, sHB = s(0), s(1), s(12), s(13), s(6), s(7), s(10), s(11); sPar = s(100); sSp = s(14); sIdx = s(101)
vLane, vDmaF, vRdF0, vRdF1, vHw = v(0), v(1), v(2), v(3), v(4)
vJ = [v(5), v(6), v(7)]
vPhiA = [v(8, 4), v(12, 4)]
vE = [v(16 + i) for i in range(8)]
vHf = [v(24, 4), v(28, 4)]
T = 32; WF = 64; ACC = [128, 192]
def xf(ks, tb):
    i = ks*4 + tb
    return a(4*i, 4) if i < 64 else v(96 + 4*(i - 64), 4)
def slot(G): return ((G + 7) % 8) * 8192
def srd(P, d, lo, nbytes, add=0):
    if add >= 0: P += [glue(salu('s_add_u32', d[0], s(lo), add), salu('s_addc_u32', d[1], s(lo+1), 0))]
    else: P += [glue(salu('s_sub_u32', d[0], s(lo), -add), salu('s_subb_u32', d[1], s(lo+1), 0))]
    P += [salu('s_mov_b32', d[2], nbytes), salu('s_mov_b32', d[3], '0x20000')]

class G:
    def __init__(g, stamps=False, dump=None, pf=True, dbg='', cpf=True, pmods='sc1', fine=False, plan=12, esp=8, lsp=6, tpre=1, tmid=2, xpf=False, early=0, nsh=16, lead=12, fine0=None, rot=True, tlb=False, pfp=3, qlate=True, kvlat=50, p3b=170, drate=1.4, ord=0, split=40, tokm=True, omods='nt', own=True, lazy=True, k4=True, xsep=True, cp0=True, cpn=4, p2lo=40):
        g.p2lo = p2lo
        g.cp0 = cp0; g.cpn = cpn
        g.xsep = xsep
        g.k4 = k4
        g.lazy = lazy
        g.own = own
        g.tokm = tokm; g.omods = omods
        g.split = split
        g.ord = ord
        g.drate = drate
        g.kvlat = kvlat; g.p3b = p3b
        g.qlate = qlate
        g.rot = rot; g.tlb = tlb; g.pfp = pfp
        g.fine0 = fine0; g.vF0 = v(15) if fine0 == 0 else v(4)
        g.lead = lead; g.mkSA()
        g.nsh = nsh
        g.xpf = xpf; g.early = early
        g.tpre = tpre; g.tmid = tmid
        g.esp = esp; g.lsp = lsp
        F2 = {37: 1, 48: 2, 59: 3, 70: 4, 81: 5, 92: 6}
        PL = {0: ((F2, {}, {}), (7, 7)),
              1: ((F2, {75: (64, [0, 1, 2])}, {}), (7, 7)),
              2: ((F2, {75: (64, [0, 1, 2, 3])}, {}), (7, 7)),
              3: ((F2, {70: (59, [0, 1, 2]), 92: (81, [3, 4])}, {}), (7, 7)),
              4: (({**F2, 97: 7}, {75: (64, [0, 1, 2])}, {}), (7, 7)),
              5: (({**F2, 97: 7}, {75: (64, [0, 1, 2]), 92: (81, [3, 4])}, {}), (7, 7)),
              7: ((F2, {64: (53, [0, 1, 2]), 81: (70, [3]), 92: (81, [4])}, {}), (7, 7)),
              8: ((F2, {64: (53, [0, 1, 2]), 81: (75, [3, 4]), 92: (86, [5])}, {}), (7, 7)),
              9: ((F2, {64: (53, [0, 1]), 75: (64, [2, 3])}, {}), (7, 7)),
              10: (({37: 1, 48: 2, 59: 3, 92: 6}, {70: (64, [0, 1, 2, 3])}, {}), (7, 7)),
              11: (({37: 1, 48: 2, 59: 3, 70: 4, 92: 6}, {70: (64, [0, 1, 2, 3]), 86: (81, [4])}, {}), (7, 7)),
              12: (({48: 2, 92: 6}, {64: (59, [0, 1, 2])}, {}), (7, 7)),
              13: (({48: 2, 70: 4, 92: 6}, {64: (59, [0, 1, 2]), 81: (75, [3, 4])}, {}), (7, 7)),
              14: ((F2, {59: (53, [0, 1]), 70: (64, [2]), 81: (75, [3]), 92: (86, [4])}, {}), (7, 7)),
              15: ((F2, {70: (64, [0, 1]), 81: (75, [2, 3]), 92: (86, [4])}, {}), (7, 7)),
              16: ((F2, {70: (64, [0]), 81: (75, [1]), 92: (86, [2])}, {}), (7, 7)),
              17: ((F2, {70: (64, [0, 1]), 81: (75, [2, 3]), 92: (86, [4, 5])}, {}), (7, 7)),
              18: (({59: 3, 92: 6}, {70: (64, [0, 1, 2, 3])}, {}), (7, 7)),
              19: (({48: 2, 97: 7}, {64: (59, [0, 1, 2])}, {}), (7, 7)),
              20: (({48: 2, 81: 5}, {64: (59, [0, 1, 2]), 92: (86, [3, 4, 5])}, {}), (7, 7)),
              21: (({48: 2, 92: 6}, {70: (59, [0, 1, 2])}, {}), (7, 7)),
              22: (({37: 1, 92: 6}, {59: (48, [0, 1])}, {}), (7, 7)),
              6: (({**F2, 97: 7}, {75: (64, [0, 1]), 86: (75, [2, 3]), 97: (86, [4])}, {}), (7, 7))}
        g.plan, g.tthr = PL[plan]; g.tailc = [c for c in range(5, 9) if c not in [x for p in g.plan[1] for x in g.plan[1][p][1]]]
        g.fine = fine; g.nf = 0; g.fregs = []
        g.pmods = pmods
        g.cpf = cpf; g.tails = []; g.rep = []
        g.dbg = dbg
        g.stamps = stamps; g.dump = dump; g.ns = 0; g.pf = pf
    def stamp(g):
        if not g.stamps: return []
        i = g.ns; g.ns += 1
        return [raw(f"s_memtime {sStamp}", 'salu', [], [sStamp]), raw(f"s_memrealtime s[4:5]", 'salu'), raw("s_waitcnt lgkmcnt(0)", 'wait'),
                valu('v_mov_b32', v(6), sStamp[0]), valu('v_mov_b32', v(7), s(4)), valu('v_mov_b32', v(5), sT4),
                vstore('buffer_store_dwordx2', v(6, 2), v(5), sPART, 0, off=8*i)]
    def prologue(g):
        P = []
        P += [scmp('s_cmp_ge_u32', s(2), 256), raw('s_cbranch_scc1 L_end')]
        if g.stamps: P += [raw('s_memrealtime s[70:71]', 'label')]
        P += [raw('s_load_dwordx16 s[4:19], s[0:1], 0'), raw('s_load_dwordx8 s[20:27], s[0:1], 64')]
        t0, t1, t2, t3, t4 = [v(T + 16 + i) for i in range(5)]
        P += [valu('v_lshrrev_b32', t0, 6, v(0)), valu('v_and_b32', vLane, 63, v(0))]
        P += [valu('v_readfirstlane_b32', sW, t0)]
        if g.cpf and g.cp0: P += g.code_touch()
        lj = {16: 1, 8: 2, 4: 3}[g.nsh]
        P += [salu('s_bfe_u32', sJ, s(2), hex(((4 - lj) << 16) | 0)), salu('s_lshl_b32', sJ, sJ, lj), salu('s_bfe_u32', sT0, s(2), hex((lj << 16) | 3)), salu('s_add_u32', sJ, sJ, sT0),
              salu('s_lshr_b32', sIdx, s(2), 3 + lj)]
        if lj > 1: P += [salu('s_bfe_u32', sM, s(2), hex(((lj - 1) << 16) | (4 - lj))), salu('s_lshl_b32', sM, sM, 5 - lj), salu('s_add_u32', sM, sM, sIdx)]
        else: P += [salu('s_mov_b32', sM, sIdx)]
        P += [salu('s_lshr_b32', sR, sW, 1), salu('s_and_b32', sC, sW, 1)]
        P += [salu('s_mov_b32', sNL, hex(NLOG2E)), salu('s_mov_b32', sL, hex(LOG2E))]
        P += [salu('s_mul_i32', sT0, sJ, 288), salu('s_and_b32', sT1, sJ, 1), salu('s_lshl_b32', sT2, sT1, 5), salu('s_add_u32', sRowF, sT0, sT2),
              salu('s_lshl_b32', sT2, sT1, 8), salu('s_add_u32', sRowH, sT0, 256), salu('s_sub_u32', sRowH, sRowH, sT2),
              salu('s_lshl_b32', sColF, sRowF, 1), salu('s_lshl_b32', sColH, sRowH, 1)]
        P += [salu('s_lshl_b32', sMb, sW, 11), salu('s_add_u32', sMb, sMb, RING), salu('s_lshl_b32', sMx, sW, 12)]
        if g.stamps: g.early_part = True; P += [salu('s_lshl_b32', sT4, s(2), 10), salu('s_lshl_b32', sT0, sW, 8), salu('s_add_u32', sT4, sT4, sT0), salu('s_add_u32', sT4, sT4, WS_STAMP)]
        P += [valu('v_lshrrev_b32', t0, 3, vLane), salu('s_lshl_b32', sT0, sW, 3), valu('v_add_u32', t0, sT0, t0), valu('v_mul_u32_u24', t0, 9216, t0),
              valu('v_bfe_u32', t1, vLane, 4, 1), salu('s_lshl_b32', sT1, sC, 1), valu('v_or_b32', t1, sT1, t1), valu('v_bfe_u32', t2, vLane, 1, 2),
              valu('v_xor_b32', t1, t1, t2) if 's' not in g.dbg else valu('v_mov_b32', t1, t2), valu('v_lshlrev_b32', t1, 5, t1), valu('v_and_b32', t2, 1, vLane), valu('v_lshlrev_b32', t2, 4, t2),
              valu('v_add3_u32', vDmaF, t0, t1, t2)]
        dX0, dX1, rX0, rX1 = [v(T + i) for i in range(4)]
        P += [salu('s_lshl_b32', sT0, sM, 7), salu('s_lshl_b32', sT1, sW, 5), salu('s_add_u32', sT0, sT0, sT1), valu('v_lshrrev_b32', t0, 3, vLane),
              valu('v_add_u32', t0, sT0, t0), valu('v_mul_u32_u24', t0, 1152, t0), valu('v_lshrrev_b32', t1, 4, vLane), valu('v_and_b32', t2, 7, vLane),
              valu('v_xor_b32', t1, t1, t2), valu('v_lshlrev_b32', t1, 4, t1), valu('v_add_u32', dX0, t0, t1), valu('v_xor_b32', t1, 64, t1), valu('v_add_u32', dX1, t0, t1)]
        P += [raw('s_waitcnt lgkmcnt(0)', 'wait')]
        if g.stamps: P += [raw('s_mov_b32 s97, s70\ns_mov_b32 s96, s70', 'label'), raw('s_memrealtime s[74:75]\ns_waitcnt lgkmcnt(0)\ns_mov_b32 s95, s74', 'label')]
        if g.stamps: srd(P, sPART, 26, 64 << 20)
        P += [salu('s_and_b32', sPar, sJ, 1 if g.rot else 0), salu('s_mul_i32', sXA, sPar, 512), salu('s_mul_i32', sXB, sPar, -640), salu('s_mul_i32', sT0, sPar, 8*294912),
              salu('s_add_u32', sFA, sColF, sT0), salu('s_mul_i32', sT1, sPar, -10*294912), salu('s_add_u32', sFB, sColF, sT1)]
        srd(P, sX, 4, 2048*1152); srd(P, sW1, 14, 576*9216); srd(P, sW3, 16, 576*9216 + 1024, -1024)
        if g.ord: P += g.prefetch13(0) + g.prefetch13(1)[6:] + g.dmaX(0) + (g.dmaX(1) if g.ord > 1 else []) + (g.dmaX(2) if g.ord > 2 else [])
        else: P += g.dmaX(0) + g.dmaW(0) + g.dmaW(1)
        if 'f' in g.dbg: P += [raw('s_memrealtime s[74:75]\ns_waitcnt lgkmcnt(0)\ns_mov_b32 s97, s74\ns_waitcnt vmcnt(0)\ns_memrealtime s[74:75]\ns_waitcnt lgkmcnt(0)\ns_mov_b32 s95, s74', 'label')]
        if g.pf and not g.xpf and not g.ord: P += g.prefetch13(0) + g.prefetch13(1)[6:]
        if g.pf and g.xpf:
            P += [salu('s_and_b32', sT1, sJ, 1), salu('s_lshl_b32', sT1, sT1, 6), salu('s_lshl_b32', sT0, sM, 7), salu('s_add_u32', sT0, sT0, sT1), salu('s_lshl_b32', sT1, sW, 4),
                  salu('s_add_u32', sT0, sT0, sT1), valu('v_and_b32', t0, 15, vLane), valu('v_add_u32', t0, sT0, t0), valu('v_mul_u32_u24', t0, 1152, t0), valu('v_lshrrev_b32', t1, 4, vLane),
                  valu('v_lshl_add_u32', t0, t1, 7, t0), vload('buffer_load_dword', v(T + 22), t0, sX, 0, off=128, tag='pf')]
            g.xpf2 = vload('buffer_load_dword', v(T + 22), t0, sX, 0, off=640, tag='pf')
            P += g.prefetch13(0) + [g.xpf2]
        if g.cpf and not g.cp0: P += g.code_touch()
        t0 = v(T + 16)
        srd(P, sQ, 6, 576*3456); srd(P, sQ2, 6, 576*3456 - 12800, 12800); srd(P, sW2, 18, 4608*1152); srd(P, sWO, 10, 576*1152 + 2048, -2048)
        srd(P, sKV, 26, WS_KV_BYTES, WS_KV); srd(P, sPART, 26, 64 << 20); srd(P, sDBG, 24, 256); srd(P, sMI, 20, 1152)
        P += [glue(scmp('s_cmp_ge_u32', sW, 2), salu('s_cselect_b32', sWH[0], s(16), s(14)), salu('s_cselect_b32', sWH[1], s(17), s(15))),
              salu('s_mov_b32', sWH[2], 576*9216), salu('s_mov_b32', sWH[3], '0x20000')]
        P += [salu('s_mul_i32', sQA, sPar, 8*110592), salu('s_mul_i32', sQB, sPar, -10*110592), salu('s_mul_i32', sT0, sPar, 8*294912), salu('s_add_u32', sHA, sColH, sT0),
              salu('s_mul_i32', sT0, sPar, -10*294912), salu('s_add_u32', sHB, sColH, sT0)]
        P += [salu('s_lshl_b32', sT0, sM, 8), salu('s_lshl_b32', sT1, sJ, 2), salu('s_add_u32', sT0, sT0, sT1), salu('s_add_u32', sT0, sT0, WS_FL), salu('s_mov_b32', sT1, OOB),
              glue(scmp('s_cmp_eq_u32', sW, 0), salu('s_cselect_b32', sFl, sT0, sT1), salu('s_cselect_b32', sExp, '0xffff', 0)),
              valu('v_mov_b32', t0, sT1), valu('v_mov_b32', t1, sFl), valu('v_cmp_eq_u32', 'vcc', 0, vLane), valu('v_mov_b32', t2, 0), valu('v_cndmask_b32', t0, t0, t1, 'vcc'),
              vstore('buffer_store_dword', t2, t0, sPART, 0, mods='sc1', tag='arm')]
        gv = [v(T + 8 + i) for i in range(3)]
        P += [salu('s_lshl_b32', sT0, sW, 7), valu('v_lshlrev_b32', t0, 1, vLane), valu('v_add_u32', t0, sT0, t0), salu('s_lshl_b32', sT1, sPar, 9)]
        for i in range(3):
            P += [valu('v_add_u32', t1, 512*i, t0), valu('v_add_u32', t2, sT1, t1), valu('v_subrev_u32', t3, 1152, t2), valu('v_min_u32', t2, t2, t3)]
            if i == 2: P += [valu('v_cmp_gt_u32', 'vcc', 1152, t1), valu('v_cndmask_b32', t2, t1, t2, 'vcc')]
            P += [vload('buffer_load_ushort', gv[i], t2, sMI, 0)]
        if g.pf and not g.qlate: P += g.prefetchQ()
        if g.tlb:
            P += [valu('v_mov_b32', t1, 0), salu('s_mul_i32', sT0, sJ, 331776), vload('buffer_load_dword', v(T + 22), t1, sW2, sT0, tag='pf'), salu('s_mul_i32', sT0, sJ, 41472),
                  vload('buffer_load_dword', v(T + 22), t1, sWO, sT0, off=2048, tag='pf'), salu('s_mul_i32', sT0, sJ, 49152), vload('buffer_load_dword', v(T + 22), t1, sKV, sT0, tag='pf'),
                  vload('buffer_load_dword', v(T + 22), t1, sDBG, 0, tag='pf'), salu('s_mul_i32', sT0, sM, 144*16384), valu('v_and_b32', t1, 3, vLane), valu('v_mul_u32_u24', t1, 786432 - 256, t1),
                  vload('buffer_load_dword', v(T + 22), t1, sPART, sT0, tag='pf')]
        if g.ord: P += g.dmaW(0) + g.dmaW(1)
        P += (g.dmaX(1) if g.ord < 2 else []) + g.dmaW(2) + g.dmaW(3)
        if g.early: P += g.dmaX(2) + g.dmaW(4) + g.dmaW(5)
        P += [valu('v_lshrrev_b32', t0, 4, vLane), valu('v_bfe_u32', t1, vLane, 2, 2), valu('v_lshlrev_b32', t2, 11, t0), valu('v_lshl_add_u32', t2, t1, 7, t2),
              valu('v_and_b32', t3, 3, vLane), valu('v_lshl_add_u32', t2, t3, 3, t2), valu('v_lshrrev_b32', t1, 1, t1), valu('v_and_b32', t0, 1, t0),
              valu('v_lshl_or_b32', t1, t0, 1, t1), salu('s_lshl_b32', sT1, sC, 1), valu('v_xor_b32', t1, sT1, t1), valu('v_lshlrev_b32', t1, 5, t1),
              valu('v_add_u32', t2, RING, t2), valu('v_add_u32', vRdF0, t2, t1), valu('v_xor_b32', t1, 32, t1), valu('v_add_u32', vRdF1, t2, t1)]
        P += [valu('v_and_b32', t0, 15, vLane), valu('v_lshrrev_b32', t1, 1, t0), valu('v_lshrrev_b32', t2, 4, vLane), valu('v_xor_b32', t1, t1, t2),
              valu('v_lshlrev_b32', t1, 4, t1), salu('s_lshl_b32', sT0, sR, 13), valu('v_lshlrev_b32', t0, 7, t0), valu('v_add_u32', t0, sT0, t0),
              valu('v_add_u32', rX0, t0, t1), valu('v_xor_b32', t1, 64, t1), valu('v_add_u32', rX1, t0, t1)]
        P += [salu('s_lshl_b32', sT0, sR, 12), salu('s_lshl_b32', sT1, sC, 13), salu('s_add_u32', sT0, sT0, sT1), valu('v_lshlrev_b32', t0, 4, vLane), valu('v_add_u32', vHw, sT0, t0)]
        main = P; P = []
        P += g.qkv_addrs()
        P += [salu('s_lshl_b32', sT0, sW, 8), valu('v_lshrrev_b32', t0, 5, vLane), valu('v_lshlrev_b32', t0, 7, t0), valu('v_bfe_u32', t1, vLane, 3, 2),
              valu('v_lshl_add_u32', t0, t1, 5, t0), valu('v_bfe_u32', t1, vLane, 2, 1), valu('v_lshl_add_u32', t0, t1, 10, t0), valu('v_and_b32', t1, 3, vLane),
              valu('v_lshl_add_u32', t0, t1, 3, t0), salu('s_add_u32', sT0, sT0, GA), valu('v_add_u32', t0, sT0, t0)]
        g.late = P; P = main
        g.gate_late = []
        for i in range(3):
            d = v(T + 12, 2)
            g.gate_late += [valu('v_lshl_or_b32', d[0], gv[i], 16, gv[i]), valu('v_mov_b32', d[1], d[0]), dsw('ds_write_b64', t0, d, off=2048*i)]
        return P
    def code_touch(g):
        ca = v(T + 14, 2); t0 = v(T + 23); t1 = v(T + 19)
        return [raw('s_getpc_b64 s[72:73]\nL_pc:', 'salu', [], [s(72, 2)]), salu('s_lshr_b32', sT0, s(2), 3), salu('s_lshl_b32', sT0, sT0, 2), salu('s_add_u32', sT0, sT0, sW),
                salu('s_mul_i32', sT0, sT0, g.cpn), valu('v_min_u32', t0, g.cpn - 1, vLane), valu('v_add_u32', t0, sT0, t0)] + \
               ([salu('s_lshl_b32', sT1, sW, 3), valu('v_and_b32', t1, 7, vLane), valu('v_add_u32', t1, sT1, t1), valu('v_cmp_gt_u32', 'vcc', 32, vLane), valu('v_add_u32', t0, 32, t0),
                 valu('v_cndmask_b32', t0, t1, t0, 'vcc')] if g.cp0 else []) + \
               [valu('v_lshlrev_b32', t0, 7, t0), raw(f'v_min_u32 {t0}, L_end-L_pc-4, {t0}', 'valu', [t0], [t0]), valu('v_and_b32', t0, -4, t0), valu('v_mov_b32', ca[1], s(73)),
                I(f'v_add_co_u32 {ca[0]}, vcc, s72, {t0}', 'valu', [t0, s(72)], [ca[0], {('s', 'vcc')}]),
                I(f'v_addc_co_u32 {ca[1]}, vcc, 0, {ca[1]}, vcc', 'valu', [ca[1], {('s', 'vcc')}], [ca[1], {('s', 'vcc')}]),
                I(f'global_load_dword {v(T + 22)}, {ca}, off', 'vld', [ca], [v(T + 22)], tag='pf', dep=40)]
    def prefetch13(g, ch, t0=v(T + 21), d=v(T + 22)):
        rw = 144//g.nsh
        P = [salu('s_mul_i32', sT0, sIdx, 4*rw), salu('s_mul_i32', sT1, sW, rw), salu('s_add_u32', sT0, sT0, sT1), valu('v_min_u32', t0, rw - 1, vLane),
             valu('v_add_u32', t0, sT0, t0), valu('v_mul_u32_u24', t0, 9216, t0)]
        if ch < 4: P += [salu('s_add_u32', sT0, sColF, 128*ch)]
        else: P += [salu('s_mov_b32', sT0, sColH)]
        P += [vload('buffer_load_dword', d, t0, sW1, sT0, tag='pf'), vload('buffer_load_dword', d, t0, sW3, sT0, off=1024, tag='pf')]
        return P
    def prefetchQ(g):
        t0 = v(T + 21); t1 = v(T + 23); d = v(T + 22); d2 = v(T + 20); rw = 144//g.nsh
        P = [salu('s_mul_i32', sT0, sIdx, 4*rw), salu('s_mul_i32', sT1, sW, rw), salu('s_add_u32', sT0, sT0, sT1), valu('v_min_u32', t0, 17 if g.split else 53, vLane),
             valu('v_mul_u32_u24', t1, 43, t0), valu('v_lshrrev_b32', t1, 8, t1), valu('v_mul_u32_u24', d2, 6, t1), valu('v_sub_u32', t0, t0, d2),
             valu('v_add_u32', t1, sT0, t1), valu('v_mul_u32_u24', t1, 3456, t1), valu('v_lshrrev_b32', d2, 1, t0), valu('v_mul_u32_u24', d2, 1152, d2), valu('v_add_u32', t1, t1, d2),
             valu('v_and_b32', t0, 1, t0), valu('v_mul_u32_u24', t0, 68, t0), valu('v_add_u32', t1, t1, t0), salu('s_mul_i32', sT0, sJ, 72)]
        if g.split:
            P[-1] = salu('s_mul_i32', sSp, sJ, 72)
            for i in range(3): P += ([salu('s_add_u32', sSp, sSp, 3*3456)] if i else []) + [vload('buffer_load_dword', d, t1, sQ, sSp, tag='pf')]
            return spaced(P, 'pf', g.split)
        for i in range(rw//9): P += ([salu('s_add_u32', sT0, sT0, 9*3456)] if i else []) + [vload('buffer_load_dword', d, t1, sQ, sT0, tag='pf')]
        return P
    def prefetch2(g, t0, t1, d):
        k = 16//g.nsh
        P = [salu('s_mul_i32', sT0, sIdx, 162*k), salu('s_mul_i32', sT1, sW, 41*k), salu('s_add_u32', sT0, sT0, sT1), valu('v_min_u32', t0, 13 if g.split else 40, vLane),
             valu('v_add_u32', t0, sT0, t0), valu('v_lshlrev_b32', t0, 7, t0), salu('s_mul_i32', sT0, sJ, 331776)]
        for i in range(3 if g.split else k): P += ([salu('s_add_u32', sT0, sT0, (14 if g.split else 41)*128)] if i else []) + [vload('buffer_load_dword', d, t0, sW2, sT0, tag='pf')]
        P += [salu('s_mul_i32', sT0, sIdx, 21*k), salu('s_mul_i32', sT1, sW, 6*k), salu('s_add_u32', sT0, sT0, sT1), valu('v_min_u32', t1, 6*k - 1, vLane),
              valu('v_add_u32', t1, sT0, t1), valu('v_lshlrev_b32', t1, 7, t1), salu('s_mul_i32', sT0, sJ, 41472),
              vload('buffer_load_dword', d, t1, sWO, sT0, off=2048, tag='pf')]
        return spaced(P, 'pf', g.split) if g.split else P
    def qkv_addrs(g):
        t0, t1, t2, t3, t4 = [v(T + 16 + i) for i in range(5)]
        g.dQ = v(T + 24); g.rQ = [v(T + 25), v(T + 26), v(T + 27), v(T + 30)]; g.rQ3b = v(T + 28); g.isG = v(T + 29)
        P = []
        P += [valu('v_lshrrev_b32', t0, 4, vLane), salu('s_lshl_b32', sT1, sC, 2), valu('v_or_b32', t1, sT1, t0), valu('v_lshlrev_b32', t1, 1, t1),
              valu('v_and_b32', t2, 15, vLane), valu('v_xor_b32', t1, t1, t2),
              salu('s_lshl_b32', sT0, sW, 3), valu('v_add_u32', t0, sT0, t0), valu('v_mul_u32_u24', t0, 3456, t0),
              valu('v_cmp_le_u32', 'vcc', 6, t1), valu('v_cndmask_b32', t2, 0, v(T+31), 'vcc') ]
        P.insert(0, valu('v_mov_b32', v(T+31), 1))
        P += [valu('v_cmp_le_u32', 'vcc', 11, t1), valu('v_cndmask_b32', t3, 0, v(T+31), 'vcc'),
              valu('v_mul_u32_u24', t4, 6, t2), valu('v_sub_u32', t1, t1, t4), valu('v_mul_u32_u24', t4, 5, t3), valu('v_sub_u32', t1, t1, t4),
              valu('v_min_u32', t1, 4, t1), valu('v_add_u32', t2, t2, t3), valu('v_mul_u32_u24', t2, 1152, t2), valu('v_add_u32', t0, t0, t2),
              valu('v_lshrrev_b32', t3, 2, t1), valu('v_lshlrev_b32', t1, 4, t1), valu('v_lshlrev_b32', t3, 3, t3), valu('v_sub_u32', t1, t1, t3),
              salu('s_mul_i32', sT0, sJ, 72), valu('v_add3_u32', g.dQ, t0, t1, sT0)]
        def B(seg, n, c):
            b = 32*c + 8*n
            if b >= 64: b += 8
            return [0, 96, 176][seg] + b
        tabs = [[(0, i) for i in range(4)], [(0, 4), (2, 0), (2, 1), (2, 2)], [(1, i) for i in range(4)], [(1, 4), (2, 3), (2, 4), (2, 4)]]
        P += [valu('v_lshrrev_b32', t0, 4, vLane), valu('v_bfe_u32', t1, vLane, 2, 2), valu('v_lshlrev_b32', t2, 11, t0), valu('v_lshl_add_u32', t2, t1, 8, t2),
              valu('v_add_u32', t2, RING, t2), valu('v_and_b32', t0, 1, t0), valu('v_lshl_or_b32', t0, t0, 2, t1), valu('v_lshlrev_b32', t0, 5, t0),
              valu('v_and_b32', t1, 3, vLane), valu('v_lshlrev_b32', t1, 3, t1)]
        for b in range(4):
            pk = [sum(B(sg, n, c) << (8*i) for i, (sg, n) in enumerate(tabs[b])) for c in range(2)]
            dst = g.rQ[b] if b < 3 else g.rQ3b
            P += [salu('s_mov_b32', sT0, hex(pk[1])), glue(scmp('s_cmp_eq_u32', sC, 0), salu('s_cselect_b32', sT0, hex(pk[0]), sT0))]
            P += [valu('v_lshrrev_b32', t3, t1, sT0) if False else valu('v_bfe_u32', t3, sT0, t1, 8), valu('v_xor_b32', t3, t3, t0), valu('v_add_u32', dst, t2, t3)]
        P += [valu('v_and_b32', t1, 3, vLane), valu('v_cmp_eq_u32', 'vcc', 3, t1), valu('v_lshrrev_b32', t3, 2, vLane), valu('v_lshlrev_b32', t3, 3, t3),
              valu('v_add_u32', t3, GA, t3), valu('v_cndmask_b32', g.rQ3b, g.rQ3b, t3, 'vcc'), valu('v_cndmask_b32', g.isG, 0, v(T+31), 'vcc')]
        return P
    def dmaX(g, d):
        dX = [v(T), v(T + 1)]
        P = [salu('s_add_u32', 'm0', sMx, (d % 4)*16384)]
        for aa in range(4):
            P += [salu('s_add_u32', sOffX, sXA if d < 5 else sXB, d*128 + aa*8192), dma(dX[aa & 1], sX, sOffX, off=aa*1024, tag=('x', d))]
        return P
    def mkSA(g):
        n = 36 - g.lead; SA = []; a_ = b_ = 0
        for p in range(36):
            if a_ < 18 and (p >= n - 1 or a_*n <= p*18 or b_ >= a_): SA.append((0, a_)); a_ += 1
            else: SA.append((1, b_)); b_ += 1
        g.SA = SA; g.U = {ks: p for p, (ch, ks) in enumerate(SA) if ch == 0}
    def dmaW(g, Gk):
        ph, ks = divmod(Gk, 18)
        m0 = salu('s_add_u32', 'm0', sMb, slot(Gk))
        if Gk >= 90:
            i = Gk - 90
            return [m0, salu('s_add_u32', sOff, sHA if i < 5 else sHB, 2*i*32*9216), dma(g.dH0, sWH, sOff, tag=('w', Gk)), dma(g.dH1, sWH, sOff, off=1024, tag=('w', Gk))]
        if ph == 2:
            return [m0, salu('s_add_u32', sOff, sQA if ks < 10 else sQB, ks*32*3456), dma(g.dQ, sQ, sOff, tag=('w', Gk)), dma(g.dQ, sQ2, sOff, off=1024, tag=('w', Gk))]
        ch = [0, 1, None, 2, 3][ph]
        if Gk < 36: ch, ks = g.SA[Gk]
        return [m0, salu('s_add_u32', sOff, sFA if ks < 10 else sFB, ks*32*9216 + ch*128), dma(vDmaF, sW1, sOff, tag=('w', Gk)), dma(vDmaF, sW3, sOff, off=1024, tag=('w', Gk))]
    def wfrag(g, Gk, fi): return v(WF + (Gk % 2)*16 + fi*4, 4)
    def readsW(g, Gk):
        ph = Gk // 18; R_ = []
        for fi in range(4):
            f = g.wfrag(Gk, fi); pre = []
            if Gk >= 90: ad = g.rH; o = slot(Gk) + (fi >> 1)*1024 + (fi & 1)*4096; zo = 256
            elif ph == 2:
                ad = g.rQ[fi]; o = slot(Gk); zo = 1024
                if fi == 3:
                    ks = Gk - 36; c = (ks >> 3)*2048 + (ks & 7)*128 - slot(Gk)
                    pre = [salu('s_mov_b32', sT3, c), valu('v_mad_i32_i24', ad, g.isG, sT3, g.rQ3b)]
            else: ad = [vRdF0, vRdF1][fi >> 1]; o = slot(Gk) + (fi & 1)*1024; zo = 512
            R_.append((pre, dsr('ds_read_b64_tr_b16', f.sub(0, 2), ad, o), dsr('ds_read_b64_tr_b16', f.sub(2, 2), ad, o + zo)))
        return R_
    def readsX(g, ks):
        return [dsr('ds_read_b128', xf(ks, tb), v(T + 2 + (ks & 1)), ((ks >> 1) % 4)*16384 + tb*2048, tag=('x', ks)) for tb in range(4)]
    def accq(g, st, fi, tb): return v(ACC[st] + (fi*4 + tb)*4, 4)
    def fixed1(g):
        F = {}; ad = lambda i, x: F.setdefault(i, []).extend(x)
        g.pre_reads = []
        g.xiss = {}; g.xbusy = set()
        if g.lazy:
            g.xiss = {1: 2, 3: 3}; g.xbusy = {0, 2, 4}
            for i, Gk in enumerate((4, 5, 6)):
                m0, so, d0, d1 = g.dmaW(Gk)
                if i == 0: g.pre_reads += [m0, so]
                else: ad(3*i - 1, [m0, so])
                ad(3*i, [d0]); ad(3*i + 1 + (i < 2), [d1]) if False else ad(3*i + 1, [d1])
        for d in range(4, 9):
            last = g.U[2*(d - 4) + 1] - 1; Gb = last + (last % 2)
            while Gb + 1 in g.xiss: Gb += 2
            g.xiss[Gb + 1] = d; g.xbusy.add(Gb + 2)
            assert Gb + 2 < g.U[2*d] - 3, (d, Gb, g.U)
        for Gk in range(99):
            b = 16*Gk
            for fi, (pre, r0, r1) in enumerate(g.readsW(Gk)):
                for z, r in enumerate((r0, r1)):
                    p = b - 16 + 4*fi - 5 + 2*z
                    if p < 0: g.pre_reads.append(r)
                    else: ad(p, [r])
                if pre: ad(b - 16 + 5, pre)
            xd = Gk in g.xbusy
            if Gk % 2 == 0:
                tags = [('w', Gk + 2), ('w', Gk + 3)] + [('x', ks//2) for ks, u in g.U.items() if u in (Gk + 2, Gk + 3)]
                wx = [wait_rd(('x', ks)) for ks, u in g.U.items() if u == Gk + 1]
                ad(b + 9, [wait_vm(*tags)] + wx); ad(b + 10, [barrier()])
                if g.fine0 is not None and g.fine0 <= Gk < g.fine0 + 36:
                    ad(b + 8, [raw(f"s_memrealtime s[96:97]\ns_waitcnt lgkmcnt(0)\nv_writelane_b32 v4, s96, {(Gk - g.fine0)//2}" if False else f"s_memrealtime s[96:97]\ns_waitcnt lgkmcnt(0)\nv_mov_b32 v6, s96\nv_mov_b32 v7, s96\nv_mov_b32 v5, s99\nds_write_b64 v5, v[6:7] offset:{8*((Gk - g.fine0)//2)}", 'label')]) if False else None
                    ad(b + 8, [raw(f"s_memrealtime s[96:97]\ns_waitcnt lgkmcnt(0)\nv_writelane_b32 {g.vF0}, s96, {(Gk - g.fine0)//2}", 'label')])
                if Gk + 7 <= 98:
                    m0, so, d0, d1 = g.dmaW(Gk + 7)
                    if xd: ad(b + 11, [m0, so])
                    else: ad(b + 7, [m0]); ad(b + 11, [so])
                    ad(b + 12, [d0]); ad(b + 14, [d1])
            elif Gk + 7 <= 98:
                xr = Gk < 36
                m0, so, d0, d1 = g.dmaW(Gk + 7)
                ad(b + 1, [m0]); ad(b + 3, [so]); ad(b + (8 if xr else 4), [d0]); ad(b + (10 if xr else 8), [d1])
            if Gk in g.xiss:
                D = g.dmaX(g.xiss[Gk])
                ad(b + 11, D[0:2]); ad(b + 12, D[2:3]); ad(b + 13, D[3:4]); ad(b + 14, D[4:5]); ad(b + 15, D[5:6]); ad(b + 16, D[6:7]); ad(b + 16 + 7, D[7:8]); ad(b + 16 + 8, D[8:9])
        for ks, u in g.U.items():
            for tb, x in enumerate(g.readsX(ks)):
                if u == 0: g.pre_reads.append(x)
                else: ad(16*(u - 1) + 2*tb, [x])
        g.F1 = F
    def phase1(g, ph, streams, extra={}):
        G0 = ph*18; nk = {0: 36, 5: 9}.get(ph, 18); st = ph % 2; mf = []
        for k in range(nk):
            for fi in range(4):
                for q in range(4):
                    tb = q if fi % 2 == 0 else 3 - q
                    if ph == 5: ks = 2*k + (fi >> 1); d = g.accq(st, fi & 1, tb); first = (k == 0 and fi < 2)
                    elif ph == 0: st, ks = g.SA[k]; d = g.accq(st, fi, tb); first = (ks == 0)
                    else: ks = k; d = g.accq(st, fi, tb); first = (k == 0)
                    mf.append(mfma(d, g.wfrag(G0 + k, fi), xf(ks, tb), 0 if first else None))
        fx = {i - 16*G0: list(x) for i, x in g.F1.items() if 16*G0 <= i < 16*(G0 + nk)}
        for i, x in extra.items(): fx[i] = x + fx.get(i, [])
        g.rep.append(f"P{ph}")
        return pack(mf, fx, streams, rep=g.rep)
    def silu(g, st, ch):
        P = []; n = 0
        half = (ch == 4)
        for tb in range(4):
            hf = vHf[tb % 2]
            for e in range(1 if half else 2):
                gq = g.accq(st, 2*e, tb); uq = g.accq(st, 2*e + 1, tb); t = vE[4*(n % 2):4*(n % 2) + 4]; n += 1
                P += [valu('v_mul_f32', t[i], sNL, gq[i]) for i in range(4)]
                P += [valu('v_exp_f32', t[0], t[0]), valu('v_mul_f32', gq[0], gq[0], uq[0]), valu('v_exp_f32', t[1], t[1]), valu('v_mul_f32', gq[1], gq[1], uq[1]),
                      valu('v_exp_f32', t[2], t[2]), valu('v_mul_f32', gq[2], gq[2], uq[2]), valu('v_exp_f32', t[3], t[3]), valu('v_mul_f32', gq[3], gq[3], uq[3])]
                P += [valu('v_add_f32', t[i], 1.0, t[i]) for i in range(4)]
                P += [valu('v_rcp_f32', t[i], t[i]) for i in range(4)]
                P += [valu('v_mul_f32', gq[i], gq[i], t[i]) for i in range(4)]
                P += [valu('v_cvt_pk_bf16_f32', hf[2*e], gq[0], gq[1]), valu('v_cvt_pk_bf16_f32', hf[2*e + 1], gq[2], gq[3])]
                if not half: P += [dsw('ds_write_b64', vHw, hf.sub(2*e, 2), ch*16384 + tb*1024 + 8*e)]
            if half: P += [dsw('ds_write_b64', g.vHh, hf.sub(0, 2), tb*1024)]
            for e in range(0 if half else 2): pass
        return P
    def phiA_loads(g):
        t0, t1, t2 = vJ
        P = []; srd(P, sMI, 8, 32*648)
        P += [salu('s_lshl_b32', sT0, sJ, 1), salu('s_add_u32', sT0, sT0, sC), salu('s_mul_i32', sT0, sT0, 648), salu('s_mul_i32', sT1, sC, 72), salu('s_sub_u32', sT0, sT0, sT1),
              salu('s_mov_b32', sT2, OOB)]
        for ob in range(2):
            F = vPhiA[ob]
            P += [valu('v_and_b32', t2, 15, vLane)]
            if ob == 1: P += [valu('v_and_b32', t0, 11, t2), valu('v_cmp_eq_u32', 'vcc', 0, t0), valu('v_lshrrev_b32', t2, 2, t2), valu('v_add_u32', t2, 16, t2),
                              valu('v_mov_b32', t0, sT2), valu('v_lshlrev_b32', t2, 1, t2), valu('v_cndmask_b32', t2, t0, t2, 'vcc')]
            else: P += [valu('v_lshlrev_b32', t2, 1, t2)]
            P += [valu('v_add_u32', t2, sT0, t2), valu('v_lshrrev_b32', t0, 4, vLane), valu('v_cmp_eq_u32', 'vcc', 0, t0), valu('v_mul_u32_u24', t0, 144, t0),
                  valu('v_add_u32', t0, t0, t2), valu('v_mov_b32', t1, sT2), valu('v_add_u32', t2, 576, t2), valu('v_cndmask_b32', t1, t1, t2, 'vcc')]
            gl = glue(scmp('s_cmp_eq_u32', sC, 1), salu('s_cselect_b64', sMask, 'vcc', 0)); gl.rd |= {('s', 'vcc')}
            P += [gl, valu('v_mov_b32', t2, sT2), valu('v_cndmask_b32', t2, t0, t2, sMask)]
            for e in range(4): P += [vload('buffer_load_ushort', v(T + 8*ob + e), t2 if e < 2 else t0, sMI, 0, off=36*e)]
            P += [glue(scmp('s_cmp_eq_u32', sC, 0), salu('s_cselect_b32', sT1, sT2, 0)), valu('v_max_u32', t0, sT1, t1)]
            for e in range(4): P += [vload('buffer_load_ushort', v(T + 8*ob + 4 + e), t1 if e < 2 else t0, sMI, 0, off=36*e)]
        pk = [valu('v_lshl_or_b32', vPhiA[i >> 2][i & 3], v(T + 2*i + 1), 16, v(T + 2*i)) for i in range(8)]
        return P, pk
    def softmax(g, x, tmp, outq, mx, mn, s0, s1):
        P = []
        P += [valu('v_max3_f32', mx, x[0], x[1], x[2]), valu('v_min3_f32', mn, x[0], x[1], x[2])]
        for i in range(3, 17, 2): P += [valu('v_max3_f32', mx, mx, x[i], x[i+1]), valu('v_min3_f32', mn, mn, x[i], x[i+1])]
        P += [valu('v_max_f32', mx, mx, x[17]), valu('v_min_f32', mn, mn, x[17]), valu('v_mul_f32', mx, sNL, mx), valu('v_mul_f32', mn, sL, mn)]
        for i in range(18): P += [valu('v_fma_f32', tmp[i], x[i], sNL, mn), valu('v_fma_f32', x[i], x[i], sL, mx)]
        for i in range(18):
            P += [valu('v_exp_f32', x[i], x[i]), valu('v_exp_f32', tmp[i], tmp[i])]
            if i == 2: P += [valu('v_add_f32', s0, x[0], x[1]), valu('v_add_f32', s1, tmp[0], tmp[1])]
            if i > 2: P += [valu('v_add_f32', s0, s0, x[i-1]), valu('v_add_f32', s1, s1, tmp[i-1])]
        P += [valu('v_add_f32', s0, s0, x[17]), valu('v_add_f32', s1, s1, tmp[17]), valu('v_rcp_f32', s0, s0), valu('v_rcp_f32', s1, s1)]
        for i in range(18): P += [valu('v_mul_f32', x[i], x[i], s0), valu('v_mul_f32', tmp[i], tmp[i], s1)]
        P += [valu('v_cvt_pk_bf16_f32', outq[8], x[16], x[17])]
        for i in range(8): P += [valu('v_cvt_pk_bf16_f32', outq[i], x[2*i], x[2*i+1])]
        for i in range(9): P += [valu('v_cvt_pk_bf16_f32', outq[9 + i], tmp[2*i], tmp[2*i+1])]
        return P
    def attn_post(g):
        t0, t1, t2 = vJ; A = []
        blk = lambda b, tb: g.accq(0, b, tb)
        A += [salu('s_lshl_b32', sT0, sR, 8), salu('s_add_u32', sT0, sT0, LOGIT - 192), valu('v_lshlrev_b32', t1, 2, vLane), valu('v_add_u32', t0, sT0, t1),
              valu('v_add_u32', t1, DUMMY, t1), valu('v_cmp_le_u32', 'vcc', 48, vLane), valu('v_cndmask_b32', t0, t1, t0, 'vcc')]
        A += [dsw('ds_write_b32', t0, blk(3, tb)[0], 64*tb) for tb in range(4)]
        Pq = [v(T + 8*tb, 4) for tb in range(4)]; Pk = [v(T + 8*tb + 4, 4) for tb in range(4)]
        A += [salu('s_mul_i32', sT0, sC, 128*72), salu('s_mul_i32', sT1, sR, 64*72), salu('s_add_u32', sT0, sT0, sT1), salu('s_add_u32', sT0, sT0, VV),
              salu('s_lshl_b32', sT1, sC, 2), salu('s_sub_u32', sT1, sT0, sT1),
              valu('v_and_b32', t0, 15, vLane), valu('v_mul_u32_u24', t0, 72, t0), valu('v_lshrrev_b32', t1, 4, vLane), valu('v_lshl_add_u32', t1, t1, 3, t0),
              valu('v_add_u32', t1, sT1, t1), valu('v_add_u32', t0, sT0, t0), valu('v_add_u32', t2, 24, t1), valu('v_add_u32', vE[0], 48, t0),
              valu('v_cmp_gt_u32', 'vcc', 16, vLane), valu('v_cndmask_b32', t1, t1, vE[0], 'vcc'), valu('v_cndmask_b32', t2, t2, vE[0], 'vcc'),
              valu('v_cmp_le_u32', 'vcc', 48, vLane), valu('v_mov_b32', vE[1], '0x3f80'), valu('v_cndmask_b32', t2, t2, vE[0], 'vcc')]
        for tb in range(4):
            for b in range(4):
                d = (Pq if b < 2 else Pk)[tb]; q = blk(b, tb)
                A += [valu('v_cvt_pk_bf16_f32', d[2*(b & 1)], q[0], q[1]), valu('v_cvt_pk_bf16_f32', d[2*(b & 1) + 1], q[2], q[3])]
            if tb > 0: A += [valu('v_add_u32', t1, 1152, t1), valu('v_add_u32', t2, 1152, t2)]
            A += [dsw2(t1, Pq[tb][2], Pq[tb][3], 0, 1), dsw2(t2, Pk[tb][2], Pk[tb][3], 0, 1), dsw('ds_write_b32', t0, vE[1], 1152*tb + 44)]
            A += [mfma(blk(2, tb), vPhiA[0], Pk[tb], 0), mfma(blk(3, tb), vPhiA[1], Pk[tb], 0), mfma(blk(0, tb), vPhiA[0], Pq[tb], 0), mfma(blk(1, tb), vPhiA[1], Pq[tb], 0)]
        def transp(b, r):
            R_ = [blk(b, tb)[r] for tb in range(4)]
            return [perm('v_permlane32_swap_b32', R_[0], R_[2]), perm('v_permlane32_swap_b32', R_[1], R_[3]), perm('v_permlane16_swap_b32', R_[0], R_[1]), perm('v_permlane16_swap_b32', R_[2], R_[3])]
        segs = []
        for (b0, base, who) in ((2, PHIK, 'k'), (0, PHIQ, 'q')):
            Sg = []
            tr = [transp(b0, r) for r in range(4)] + [transp(b0 + 1, 0)]
            for i in range(4):
                for x in tr: Sg.append(x[i])
            x = [blk(b0, i >> 2)[i & 3] for i in range(16)] + [blk(b0 + 1, 0)[0], blk(b0 + 1, 1)[0]]
            tmp = [v(T + i) for i in range(18)]
            oq = [blk(b0 + 1, 2), blk(b0 + 1, 3), v(T + 20, 4), blk(b0 + 1, 0), blk(b0 + 1, 1)]
            outq = [oq[i >> 2][i & 3] for i in range(18)]
            Sg += g.softmax(x, tmp, outq, vE[0], vE[1], vE[2], vE[3])
            ta_ = vE[5]
            if who == 'q': Sg += [salu('s_mul_i32', sT3, sW, 5120), salu('s_add_u32', sT3, sT3, base)]
            else: Sg += [salu('s_lshl_b32', sT3, sC, 1), salu('s_add_u32', sT3, sT3, sR), salu('s_mul_i32', sT3, sT3, 5120), salu('s_add_u32', sT3, sT3, base)]
            Sg += [valu('v_mul_u32_u24', ta_, 80, vLane), valu('v_add_u32', ta_, sT3, ta_)]
            Sg += [dsw('ds_write_b64', ta_, oq[i >> 1].sub(2*(i & 1), 2), 8*i) for i in range(9)]
            segs.append(Sg)
        A += segs[0]; Q = segs[1]
        B = []
        ta, tb_, tv = vHf[0][0], vHf[0][1], vHf[0][2]
        B += [valu('v_lshrrev_b32', t0, 4, vLane), valu('v_bfe_u32', t1, vLane, 2, 2), valu('v_lshl_add_u32', t0, t0, 3, t1),
              valu('v_and_b32', t1, 3, vLane), salu('s_mul_i32', sT0, sC, 10240), salu('s_add_u32', sT0, sT0, PHIK), valu('v_mul_u32_u24', t2, 80, t0),
              valu('v_add_u32', tb_, sT0, t2), valu('v_lshl_add_u32', ta, t1, 4, tb_),
              salu('s_mul_i32', sT0, sC, 128*72), salu('s_add_u32', sT0, sT0, VV + 8), salu('s_lshl_b32', sT1, sR, 5), salu('s_add_u32', sT0, sT0, sT1),
              salu('s_sub_u32', sT1, 1, sR), valu('v_mul_u32_u24', t1, sT1, t1), valu('v_mul_u32_u24', t0, 72, t0), valu('v_lshl_add_u32', t0, t1, 3, t0), valu('v_add_u32', tv, sT0, t0)]
        D = [blk(2, 0), blk(2, 1), blk(2, 2)]
        fr = lambda ks, i: (v(ACC[0] + 48 + 4*i, 4) if ks % 2 == 0 else v(T + 24 + 4*(i & 1), 4) if i < 2 else v(ACC[0] + 44, 4) if i == 2 else vHf[1])
        def rd(ks):
            X = []
            for z in range(2):
                o = (32*ks + 4*z)
                X += [dsr('ds_read_b64_tr_b16', fr(ks, 3).sub(2*z, 2), tv, o*72), dsr('ds_read_b64_tr_b16', fr(ks, 0).sub(2*z, 2), ta, o*80),
                      dsr('ds_read_b64_tr_b16', fr(ks, 1).sub(2*z, 2), ta, o*80 + 8), dsr('ds_read_b64_tr_b16', fr(ks, 2).sub(2*z, 2), tb_, o*80 + 64)]
            return X
        mm = lambda ks: [mfma(D[i], fr(ks, i), fr(ks, 3), 0 if ks == 0 else None) for i in range(3)]
        B += rd(0) + rd(1) + mm(0) + rd(2) + mm(1) + rd(3) + mm(2) + mm(3)
        C = []
        q1, q2_ = vHf[1], v(ACC[0] + 44, 4)
        C += [salu('s_lshl_b32', sT0, sJ, 1), salu('s_add_u32', sT0, sT0, sC), salu('s_lshl_b32', sT0, sT0, 4), salu('s_add_u32', sT0, sT0, sM), salu('s_mul_i32', sT0, sT0, 1536),
              salu('s_mov_b32', sT2, OOB), glue(scmp('s_cmp_eq_u32', sR, 1), salu('s_cselect_b64', sMask, -1, 0)),
              valu('v_lshlrev_b32', t0, 4, vLane), valu('v_and_b32', t1, 15, vLane), valu('v_lshrrev_b32', t2, 4, vLane), valu('v_cmp_gt_u32', 'vcc', 3, t1),
              valu('v_mul_u32_u24', t2, 3, t2), valu('v_add_u32', t1, t1, t2), valu('v_lshlrev_b32', t1, 4, t1), valu('v_add_u32', t1, 1024 + 256, t1), valu('v_mov_b32', t2, sT2),
              valu('v_cndmask_b32', t1, t2, t1, 'vcc'), valu('v_cndmask_b32', ta, t0, t1, sMask),
              valu('v_add_u32', t0, 1024, t0), valu('v_add_u32', t1, 192, t1), valu('v_cndmask_b32', t0, t0, t1, sMask), valu('v_cmp_gt_u32', 'vcc', 16, vLane), valu('v_cndmask_b32', tb_, t2, t0, 'vcc')]
        cv = lambda d, x, y: valu('v_cvt_pk_bf16_f32', d, x, y)
        C += [cv(q1[0], D[0][0], D[0][1]), cv(q1[1], D[0][2], D[0][3]), cv(q1[2], D[1][0], D[1][1]), cv(q1[3], D[1][2], D[1][3]),
              cv(q2_[0], D[2][0], D[2][1]), cv(q2_[1], D[2][2], D[2][3]), cv(q2_[2], D[2][0], D[2][1]), cv(q2_[3], D[2][2], D[2][3]),
              vstore('buffer_store_dwordx4', q1, ta, sKV, sT0, mods='sc1', tag='kv'), vstore('buffer_store_dwordx4', q2_, tb_, sKV, sT0, mods='sc1', tag='kv')]
        return A, Q, B, C
    def flag(g, t0, t1):
        return [salu('s_lshl_b32', sT0, sJ, 4), salu('s_mov_b32', sT1, OOB), glue(scmp('s_cmp_eq_u32', sW, 0), salu('s_cselect_b32', sT0, sT0, sT1)),
                valu('v_mov_b32', t0, sT1), valu('v_cmp_eq_u32', 'vcc', 0, vLane), valu('v_mov_b32', t1, sT0), valu('v_cndmask_b32', t0, t0, t1, 'vcc'), valu('v_mov_b32', t1, 1),
                I(f"buffer_atomic_add {t1}, {t0}, {sDBG}, 0 offen", 'vst', [t0, t1, sDBG], [], tag='flag', dep=set())]
    def half_addrs(g):
        t0, t1, t2 = vJ
        g.dH0, g.dH1, g.rH, g.vHh = v(8), v(9), v(10), v(11)
        P = [salu('s_lshl_b32', sT0, sC, 4), valu('v_lshrrev_b32', t0, 2, vLane), valu('v_add_u32', t0, sT0, t0), valu('v_mul_u32_u24', t0, 9216, t0),
             valu('v_bfe_u32', t1, vLane, 1, 1), valu('v_lshrrev_b32', t2, 5, vLane), valu('v_xor_b32', t1, t1, t2), valu('v_lshl_add_u32', t0, t1, 5, t0),
             valu('v_and_b32', t1, 1, vLane), valu('v_lshl_add_u32', g.dH0, t1, 4, t0), valu('v_add_u32', g.dH1, 32*9216 - 1024, g.dH0),
             valu('v_lshrrev_b32', t0, 5, vLane), valu('v_lshlrev_b32', t0, 11, t0), valu('v_bfe_u32', t1, vLane, 4, 1), valu('v_lshl_add_u32', t0, t1, 9, t0),
             valu('v_xor_b32', t1, sC, t1), valu('v_lshl_add_u32', t0, t1, 5, t0), valu('v_bfe_u32', t1, vLane, 2, 2), valu('v_lshl_add_u32', t0, t1, 6, t0),
             valu('v_and_b32', t1, 3, vLane), valu('v_lshl_add_u32', t0, t1, 3, t0), valu('v_add_u32', g.rH, RING, t0),
             salu('s_lshl_b32', sT0, sR, 12), salu('s_lshl_b32', sT1, sC, 3), salu('s_add_u32', sT0, sT0, sT1), salu('s_add_u32', sT0, sT0, 65536),
             valu('v_lshlrev_b32', t0, 4, vLane), valu('v_add_u32', g.vHh, sT0, t0)]
        return P

    def check(g, name, res, addr, srd_, thr):
        g.tails.append("\n".join([f"L_{name}_spin:", "s_mov_b32 s4, 0x40000", f"L_{name}_s2:", f"buffer_load_dword {res}, {addr}, {srd_}, 0 offen sc1", "s_waitcnt vmcnt(0)",
                          f"v_cmp_le_u32 vcc, {thr}, {res}", "s_sub_u32 s4, s4, 1", "s_cmp_eq_u32 s4, 0", f"s_cbranch_scc1 L_{name}_ok", "s_nop 1",
                          f"s_cmp_eq_u32 vcc_lo, {sExp}", f"s_cbranch_scc0 L_{name}_s2", f"s_branch L_{name}_ok"]))
        return [valu('v_cmp_le_u32', 'vcc', thr, res),
                raw(f"s_cmp_eq_u32 vcc_lo, {sExp}\ns_cbranch_scc0 L_{name}_spin\nL_{name}_ok:", 'salu', [{('s', 'vcc')}, res, addr], [res], cost=2)]
    def kv_gather(g):
        t0, t1, t2 = vJ
        poll0 = [salu('s_mov_b32', sT1, OOB), glue(scmp('s_cmp_eq_u32', sW, 0), salu('s_cselect_b32', sT0, 0, sT1)), valu('v_lshlrev_b32', t0, 4, vLane), valu('v_max_u32', t0, sT0, t0),
                 vload('buffer_load_dword', t1, t0, sDBG, 0, mods='sc1', lat=30)]
        poll1 = g.check('kv', t1, t0, sDBG, 16)
        buf = [v(T + 4*i, 4) for i in range(6)] + [v(232 + 4*i, 4) for i in range(6)]
        g.rA = v(228, 4)
        e0, e1, e2 = v(224), v(225), v(226)
        sel = [valu('v_and_b32', e0, 1, vLane), valu('v_lshlrev_b32', e0, 4, e0), valu('v_mov_b32', e2, '0x3f80'), valu('v_lshlrev_b32', e0, e0, e2), valu('v_and_b32', e1, 14, vLane)]
        for d in range(4): sel += [valu('v_cmp_eq_u32', 'vcc', 4*d, e1), valu('v_cndmask_b32', g.rA[d], 0, e0, 'vcc')]
        L1 = [salu('s_lshl_b32', sT0, sJ, 1), salu('s_add_u32', sT0, sT0, sC), salu('s_mul_i32', sT0, sT0, 24576), salu('s_mul_i32', sT1, sR, 768), salu('s_add_u32', sT0, sT0, sT1),
              valu('v_lshrrev_b32', t0, 4, vLane), valu('v_mul_u32_u24', t0, 1536, t0), valu('v_and_b32', t1, 15, vLane), valu('v_lshl_add_u32', t0, t1, 4, t0)]
        for i in range(4):
            if i: L1 += [salu('s_add_u32', sT0, sT0, 6144)]
            L1 += [vload('buffer_load_dwordx4', buf[4*gr + i], t0, sKV, sT0, off=256*gr, mods='sc1', lat=g.kvlat) for gr in range(3)]
        D = [v(224, 4), buf[0], buf[1]]
        L2 = [salu('s_mul_i32', sT0, sC, 1536), salu('s_mul_i32', sT1, sR, 768), salu('s_add_u32', sT0, sT0, sT1), salu('s_add_u32', sT0, sT0, KVE),
              valu('v_lshrrev_b32', t2, 4, vLane), valu('v_lshlrev_b32', t2, 2, t2), valu('v_lshl_add_u32', t2, t1, 4, t2), valu('v_add_u32', t2, sT0, t2)]
        for gr in range(3): L2 += [mfma(D[gr], g.rA, buf[4*gr + i], 0 if i == 0 else None) for i in range(4)]
        for gr in range(3): L2 += [valu('v_cvt_pk_bf16_f32', D[gr][0], D[gr][0], D[gr][1]), dsw('ds_write_b32', t2, D[gr][0], 256*gr)]
        return poll0, poll1, sel, L1, L2
    def o_part(g):
        t0, t1, t2 = vJ; P = []
        R_ = v(104, 12); A01, A11, A00, A10 = R_.sub(0, 4), R_.sub(2, 4), R_.sub(4, 4), R_.sub(8, 4)
        q = [v(T + 4*i, 4) for i in range(6)] + [v(96, 4), v(100, 4)]
        P += [salu('s_mul_i32', sT0, sC, 1536), salu('s_add_u32', sT0, sT0, KVE), valu('v_lshlrev_b32', t0, 4, vLane), valu('v_add_u32', t0, sT0, t0), dsr('ds_read_b128', A00, t0, 0),
              valu('v_and_b32', t0, 3, vLane), valu('v_min_u32', t0, 2, t0), valu('v_lshrrev_b32', t1, 4, vLane), valu('v_mul_u32_u24', t1, 3, t1), valu('v_add_u32', t1, t1, t0),
              valu('v_lshlrev_b32', t1, 4, t1), valu('v_add_u32', t1, sT0, t1), valu('v_lshlrev_b32', t0, 4, t0), valu('v_add_u32', t0, sT0, t0),
              valu('v_and_b32', t2, 15, vLane), valu('v_lshlrev_b32', t2, 4, t2), valu('v_add_u32', t2, sT0, t2),
              dsr('ds_read_b128', A10, t1, 1024 + 256), dsr('ds_read_b64', A01.sub(0, 2), t2, 1024), dsr('ds_read_b64', A11.sub(0, 2), t0, 1024 + 448)]
        E = [v(236 + i) for i in range(4)]; Bq = [a(176 + 4*i, 4) for i in range(4)]; B1 = [v(240 + 4*i, 4) for i in range(4)]
        P += [salu('s_lshl_b32', sT0, sR, 8), salu('s_add_u32', sT0, sT0, LOGIT), valu('v_and_b32', t0, 15, vLane), valu('v_lshlrev_b32', t1, 2, t0), valu('v_add_u32', t1, sT0, t1)]
        P += [dsr('ds_read_b32', E[tb], t1, 64*tb) for tb in range(4)]
        P += [salu('s_mul_i32', sT0, sW, 5120), salu('s_add_u32', sT0, sT0, PHIQ), valu('v_mul_u32_u24', t0, 80, t0), valu('v_add_u32', t0, sT0, t0),
              valu('v_lshrrev_b32', t1, 4, vLane), valu('v_lshl_add_u32', t1, t1, 4, t0)]
        for tb in range(4): P += [dsr('ds_read_b128', Bq[tb], t1, 1280*tb), dsr('ds_read_b64', B1[tb].sub(0, 2), t0, 1280*tb + 64)]
        cv = lambda d, x: [valu('v_cvt_pk_bf16_f32', d[0], x[0], x[1]), valu('v_cvt_pk_bf16_f32', d[1], x[2], x[3])]
        P += [valu('v_cmp_gt_u32', 'vcc', 16, vLane), salu('s_mov_b32', sT2, '0x42700000')]
        for tb in range(4):
            P += [valu('v_cndmask_b32', B1[tb][0], 0, B1[tb][0], 'vcc'), valu('v_cndmask_b32', B1[tb][1], 0, B1[tb][1], 'vcc'), valu('v_mov_b32', B1[tb][2], 0), valu('v_mov_b32', B1[tb][3], 0),
                  valu('v_min_f32', E[tb], sT2, E[tb]), valu('v_mul_f32', E[tb], sL, E[tb]), valu('v_exp_f32', E[tb], E[tb])]
        o0 = [q[2*tb] for tb in range(4)]; o1 = [q[2*tb + 1] for tb in range(4)]
        for tb in range(4): P += [mfma(o0[tb], A00, Bq[tb], 0), mfma(o1[tb], A10, Bq[tb], 0)]
        for tb in range(4): P += [mfma(o0[tb], A01, B1[tb]), mfma(o1[tb], A11, B1[tb])]
        P += [salu('s_mul_i32', sT0, sW, 5120), salu('s_add_u32', sT0, sT0, PHIQ), valu('v_lshlrev_b32', t0, 3, vLane), valu('v_add_u32', t0, sT0, t0),
              valu('v_lshlrev_b32', t1, 2, vLane), valu('v_add_u32', t1, sT0, t1), salu('s_mov_b32', sT2, '0x358637bd')]
        for tb in range(4): P += [valu('v_add_f32', o1[tb][2], sT2, o1[tb][2])]
        for tb in range(4): P += [valu('v_rcp_f32', o1[tb][2], o1[tb][2])]
        for tb in range(4): P += [valu('v_mul_f32', E[tb], E[tb], o1[tb][2])]
        for tb in range(4):
            P += [valu('v_mul_f32', o0[tb][k], o0[tb][k], E[tb]) for k in range(4)] + [valu('v_mul_f32', o1[tb][k], o1[tb][k], E[tb]) for k in range(2)]
            P += cv(o0[tb], o0[tb]) + [valu('v_cvt_pk_bf16_f32', o1[tb][0], o1[tb][0], o1[tb][1]), dsw('ds_write_b64', t0, o0[tb].sub(0, 2), 512*tb),
                  *([] if g.k4 else [valu('v_cndmask_b32', o1[tb][0], 0, o1[tb][0], 'vcc')]), dsw('ds_write_b32', t1, o1[tb][0], 2048 + 256*tb)]
        return P
    def hf(g, ks, tb): return a((ks*4 + tb)*4, 4)
    def h_reads(g, kss, vH, vH8):
        return [dsr('ds_read_b128', g.hf(ks, tb), vH8 if ks == 8 else vH, (0 if ks == 8 else ks*8192) + tb*1024) for ks in kss for tb in range(4)]
    def o_reads(g):
        t0, t1, t2 = vJ
        P = [salu('s_mul_i32', sT0, sR, 10240), salu('s_add_u32', sT0, sT0, PHIQ), valu('v_lshlrev_b32', t0, 3, vLane), valu('v_add_u32', t0, sT0, t0),
             valu('v_lshlrev_b32', t1, 2, vLane), valu('v_add_u32', t1, sT0, t1)]
        Rd = []
        if g.k4:
            P[-2:] = [valu('v_lshrrev_b32', t1, 4, vLane), valu('v_lshlrev_b32', t1, 8, t1), valu('v_and_b32', t2, 15, vLane), valu('v_lshl_add_u32', t1, t2, 2, t1), valu('v_add_u32', t1, sT0, t1)]
            for tb in range(4): Rd += [dsr('ds_read_b64', g.hf(9, tb).sub(0, 2), t0, 512*tb), dsr('ds_read_b64', g.hf(9, tb).sub(2, 2), t0, 5120 + 512*tb)]
            return P, Rd + [dsr('ds_read_b32', a(160), t1, 2048), dsr('ds_read_b32', a(161), t1, 5120 + 2048)]
        for tb in range(4):
            Rd += [dsr('ds_read_b64', g.hf(9, tb).sub(0, 2), t0, 512*tb), dsr('ds_read_b64', g.hf(9, tb).sub(2, 2), t0, 5120 + 512*tb),
                   dsr('ds_read_b32', g.hf(10, tb)[0], t1, 2048 + 256*tb), dsr('ds_read_b32', g.hf(10, tb)[1], t1, 5120 + 2048 + 256*tb)]
            P += [valu('v_accvgpr_write_b32', g.hf(10, tb)[2], 0), valu('v_accvgpr_write_b32', g.hf(10, tb)[3], 0)]
        return P, Rd
    def g2_dma_addrs(g):
        t0, t1, t2 = vJ
        g.dW2 = [v(12 + i) for i in range(4)]; g.dO9 = v(1); g.dO10 = v(13)
        P = [valu('v_bfe_u32', t1, vLane, 1, 2), valu('v_lshrrev_b32', t2, 4, vLane), valu('v_xor_b32', t1, t1, t2), valu('v_lshlrev_b32', t1, 5, t1),
             valu('v_and_b32', t2, 1, vLane), valu('v_lshl_add_u32', t1, t2, 4, t1),
             salu('s_lshl_b32', sT0, sW, 3), valu('v_lshrrev_b32', t0, 3, vLane), valu('v_add_u32', t2, sT0, t0), valu('v_mul_u32_u24', t2, 1152, t2), valu('v_add_u32', g.dW2[0], t2, t1)]
        P += [salu('s_mul_i32', sT0, sR, 2304), salu('s_add_u32', sT0, sT0, 2048), valu('v_add_u32', g.dO9, sT0, g.dW2[0]),
              valu('v_and_b32', t0, 3, t0), valu('v_lshrrev_b32', t2, 1, t0), valu('v_lshl_add_u32', t0, t2, 4, t0), valu('v_add_u32', t0, 16, t0), valu('v_mul_u32_u24', t0, 1152, t0),
              valu('v_add_u32', t0, 2048, t0), valu('v_add_u32', g.dO10, t0, t1),
              salu('s_mul_i32', sColF, sRowF, 1152), salu('s_mul_i32', sRowH, sRowH, 1152), salu('s_mul_i32', sOffX, sJ, 41472), salu('s_lshl_b32', sMx, sW, 10)]
        return P
    RB = [RING, 0, 98304]
    BARS = [4, 10, 14, 20, 26] + [x for n in range(3, 9) for x in (11*n - 2, 11*n + 4)] + [97]
    def g2_dma(g, q):
        n, ks = g.SEQ[q]; tg = ('g2', q); P = [salu('s_add_u32', 'm0', sMx, g.SL[q])]
        if ks >= 9: return P + [salu('s_add_u32', sOff, sOffX, n*128), dma(g.dO9 if ks == 9 else g.dO10, sWO, sOff, tag=tg)]
        return P + [salu('s_add_u32', sOff, sColF if ks < 8 else sRowH, n*128 + (ks*36864 if ks < 8 else 0)), dma(g.dW2[0], sW2, sOff, tag=tg)]
    def plan_slots(g):
        A_ = [RING + 4096*i for i in range(16)]; free = A_[4:] + [4096*i for i in range(12)]; g.SL = {}; g.ISS = {}; q = 0; N = 99; used = []
        for b in [-2, -1] + g.BARS:
            if b == -1: free += A_[:4]
            if b == 14: free += [4096*i for i in range(12, 16)]
            if b == 26: free += [MISC + 4096*i for i in range(2 if g.own else 6)]
            if b >= 0:
                free += [sl for (p, sl) in used if p <= b - 1]; used = [(p, sl) for (p, sl) in used if p > b - 1]
            nx = next((x for x in g.BARS if x > b), N); lim = {-2: 12, -1: 6}.get(b, int((nx - b)*g.drate + 0.5))
            L = []
            while free and q < N and len(L) < lim: sl = free.pop(0); g.SL[q] = sl; used.append((q, sl)); L.append(q); q += 1
            g.ISS[b] = L
        assert q == N
    def g2_rd_addrs(g):
        t0, t1, t2 = vJ
        g.r2 = [[v(T + 24), v(T + 25)], [v(T + 26), v(T + 27)], [v(112), v(113)]]; g.r10 = [[v(T + 28), v(T + 29)], [v(T + 30), v(T + 31)], [v(114), v(115)]]
        g.vP = [v(116 + i) for i in range(4)]
        t3 = g.r2[0][0]
        P = [valu('v_lshrrev_b32', t0, 5, vLane), valu('v_lshlrev_b32', t0, 10, t0), valu('v_bfe_u32', t1, vLane, 2, 3), valu('v_lshl_add_u32', t0, t1, 7, t0),
             valu('v_and_b32', t2, 3, vLane), valu('v_lshl_add_u32', t0, t2, 3, t0), valu('v_lshrrev_b32', t1, 1, t1), salu('s_lshl_b32', sT1, sC, 1), valu('v_xor_b32', t1, sT1, t1),
             valu('v_lshlrev_b32', t1, 5, t1), valu('v_xor_b32', t3, 32, t1), valu('v_add_u32', g.r2[1][0], t0, t1), valu('v_add_u32', g.r2[1][1], t0, t3),
             valu('v_bfe_u32', t1, vLane, 2, 2), valu('v_lshlrev_b32', t0, 7, t1), valu('v_lshl_add_u32', t0, t2, 3, t0), valu('v_lshrrev_b32', t1, 1, t1), valu('v_xor_b32', t1, sT1, t1),
             valu('v_lshlrev_b32', t1, 5, t1), valu('v_xor_b32', t3, 32, t1), salu('s_lshl_b32', sT0, sW, 10),
             valu('v_add3_u32', g.r10[1][0], t0, t1, sT0), valu('v_add3_u32', g.r10[1][1], t0, t3, sT0)]
        for e in range(2): P += [valu('v_add_u32', g.r2[0][e], g.RB[0], g.r2[1][e]), valu('v_add_u32', g.r10[0][e], g.RB[0], g.r10[1][e])]
        Q = []
        for e in range(2): Q += [valu('v_add_u32', g.r2[2][e], g.RB[2], g.r2[1][e]), valu('v_add_u32', g.r10[2][e], g.RB[2], g.r10[1][e])]
        Q += [salu('s_mul_i32', sT0, sM, 144), salu('s_lshl_b32', sT1, sC, 3), salu('s_add_u32', sT0, sT0, sT1), salu('s_lshl_b32', sT1, sR, 2), salu('s_add_u32', sT0, sT0, sT1),
              salu('s_lshl_b32', sT0, sT0, 4), salu('s_add_u32', sT0, sT0, sJ), salu('s_lshl_b32', sT0, sT0, 10), valu('v_lshlrev_b32', t0, 4, vLane), valu('v_add_u32', g.vP[0], sT0, t0)]
        if g.tokm: Q[-2:] = [valu('v_and_b32', t0, 15, vLane), valu('v_lshlrev_b32', t0, 6, t0), valu('v_lshrrev_b32', t1, 4, vLane), valu('v_lshl_add_u32', t0, t1, 4, t0), valu('v_add_u32', g.vP[0], sT0, t0)]
        Q += [valu('v_add_u32', g.vP[i], 16384*i, g.vP[0]) for i in range(1, 4)]
        return P, Q
    def red_setup(g):
        t0, t1, t2 = vJ
        g.vLd, g.vOut, g.vS, g.vPA, g.vPR, g.vFA, g.vFV = [v(120 + i) for i in range(7)]
        g.rD = v(224, 4)
        P = []; srd(P, sOUT, 22, 2048*1152)
        P += [salu('s_lshr_b32', sT0, sJ, 1), salu('s_lshl_b32', sT0, sT0, 4), *([salu('s_lshl_b32', sT1, sW, 2), salu('s_add_u32', sT0, sT0, sT1), valu('v_bfe_u32', t0, vLane, 2, 2)] if g.tokm else [valu('v_and_b32', t0, 15, vLane)]),
              valu('v_add_u32', t0, sT0, t0), valu('v_lshlrev_b32', t1, 2, t0), valu('v_add_u32', t1, LOGIT, t1), dsr('ds_read_b32', g.vS, t1, 0),
              salu('s_lshl_b32', sT0, sM, 7), valu('v_add_u32', t0, sT0, t0), valu('v_mul_u32_u24', t0, 1152, t0), *([valu('v_and_b32', t1, 3, vLane), valu('v_lshl_add_u32', t0, t1, 3, t0)] if g.tokm else [salu('s_lshl_b32', sT0, sW, 3), valu('v_add_u32', t0, sT0, t0)]),
              valu('v_lshrrev_b32', t1, 5, vLane), valu('v_lshl_add_u32', t0, t1, 5, t0), valu('v_bfe_u32', t1, vLane, 4, 1), valu('v_lshl_add_u32', t0, t1, 2, t0),
              salu('s_and_b32', sT1, sJ, 1), salu('s_lshl_b32', sT0, sT1, 6), valu('v_add_u32', g.vOut, sT0, t0),
              salu('s_lshl_b32', sT1, sT1, 3), salu('s_mul_i32', sT0, sM, 144), salu('s_add_u32', sT0, sT0, sT1), salu('s_lshr_b32', sT1, sJ, 1), salu('s_add_u32', sT0, sT0, sT1),
              salu('s_lshl_b32', sT0, sT0, 14), salu('s_lshl_b32', sT1, sW, 8), salu('s_add_u32', sT0, sT0, sT1), valu('v_lshrrev_b32', t0, 4, vLane), valu('v_lshlrev_b32', t0, 10, t0),
              valu('v_and_b32', t1, 15, vLane), valu('v_lshl_add_u32', t0, t1, 4, t0), valu('v_add_u32', g.vLd, sT0, t0),
              salu('s_mov_b32', sT1, OOB), valu('v_mov_b32', t0, sT1), valu('v_mov_b32', t2, sFl), valu('v_cmp_eq_u32', 'vcc', 0, vLane), salu('s_andn2_b32', sT0, sFl, 255),
              valu('v_cndmask_b32', g.vFA, t0, t2, 'vcc'), valu('v_lshlrev_b32', t2, 2, vLane), valu('v_add_u32', t2, sT0, t2), valu('v_cmp_gt_u32', 'vcc', 16, vLane),
              salu('s_mov_b32', sT2, '0x42700000'), valu('v_cndmask_b32', g.vPA, t0, t2, 'vcc'),
              valu('v_min_f32', g.vS, sT2, g.vS), valu('v_mul_f32', g.vS, sL, g.vS), valu('v_exp_f32', g.vS, g.vS), valu('v_add_f32', g.vS, 1.0, g.vS), valu('v_rcp_f32', g.vS, g.vS),
              ]
        return P
    def rbuf(g, c, i): return v(T + 4*i, 4) if (c == 5 and c not in g.tailc) else a((176 + c*16 if c < 5 else (c - 5)*16) + 4*i, 4)
    def red_flag(g, val): return [valu('v_mov_b32', g.vFV, val), vstore('buffer_store_dword', g.vFV, g.vFA, sPART, 0, mods='sc1', tag='fl')]
    def red_poll(g): return [vload('buffer_load_dword', g.vPR, g.vPA, sPART, 0, mods='sc1', lat=30)]
    def red_ld(g, c):
        P = []
        if g.own: return [salu('s_mov_b32', sT2, c*262144)] + [vload('buffer_load_dwordx4', g.rbuf(c, i), g.vL4[i], sPART, sT2, mods='sc1', lat=36) for i in range(4)]
        for i in range(4): P += [salu('s_mov_b32', sT2, c*262144 + i*4096), vload('buffer_load_dwordx4', g.rbuf(c, i), g.vLd, sPART, sT2, mods='sc1', lat=36)]
        return P
    def red_m(g, c):
        D = g.rD
        o_ = [dsr('ds_read_b128', v(24, 4), v(29), c*1024), mfma(D, v(20, 4), v(24, 4), 0)] if g.own else []
        return o_ + [mfma(D, g.rA, g.rbuf(c, i), 0 if (i == 0 and not g.own) else None) for i in range(4)] + \
               [valu('v_mul_f32', D[0], D[0], g.vS), valu('v_mul_f32', D[1], D[1], g.vS), valu('v_cvt_pk_bf16_f32', D[0], D[0], D[1]), vstore('buffer_store_dword', D[0], g.vOut, sOUT, 0, off=c*128, mods=g.omods)]
    def own_setup(g):
        t0, t1, t2 = vJ; g.vL4 = [g.vLd, v(30), v(31), v(11)]; g.sOw = s(38)
        P = [salu('s_bfe_u32', sT0, sJ, '0x20001')]
        for tb in range(1, 4): P += [glue(scmp('s_cmp_eq_u32', sT0, tb), salu('s_cselect_b64', s(30 + 2*tb, 2), -1, 0))]
        P += [salu('s_lshr_b32', sT1, sJ, 3), salu('s_lshl_b32', sT1, sT1, 1), salu('s_and_b32', sT2, sJ, 1), salu('s_add_u32', sT1, sT1, sT2),
              glue(scmp('s_cmp_eq_u32', sT1, sW), salu('s_cselect_b32', g.sOw, 1024, 0), salu('s_cselect_b32', sT1, 0, 9216), salu('s_cselect_b32', sT0, sT0, 7)), salu('s_add_u32', sT1, sT1, OWN),
              valu('v_and_b32', t0, 15, vLane), valu('v_lshrrev_b32', t1, 1, t0), valu('v_lshrrev_b32', t2, 4, vLane), valu('v_add_u32', t2, t1, t2), valu('v_and_b32', t2, 3, t2),
              valu('v_lshlrev_b32', t1, 6, t0), valu('v_lshl_add_u32', t1, t2, 4, t1), valu('v_add_u32', v(28), sT1, t1),
              salu('s_lshl_b32', sT1, sW, 8), salu('s_add_u32', sT1, sT1, OWN), salu('s_lshl_b32', sT2, sW, 1), valu('v_lshrrev_b32', t1, 3, t0), valu('v_add3_u32', t1, t1, t0, sT2),
              valu('v_and_b32', t1, 3, t1), valu('v_and_b32', t0, 12, t0), valu('v_add_u32', t0, t0, t1), valu('v_lshlrev_b32', t0, 4, t0), valu('v_add_u32', v(29), sT1, t0), salu('s_mov_b32', sT1, OOB)]
        for tb in range(4): P += [glue(scmp('s_cmp_eq_u32', sT0, tb), salu('s_cselect_b32', sT2, sT1, 0)), valu('v_max_u32', g.vP[tb], sT2, g.vP[tb])]
        Q = [valu('v_lshrrev_b32', t2, 4, vLane), valu('v_mov_b32', t0, OOB)]
        for i in (3, 2, 1, 0):
            Q += [valu('v_add_u32', t1, 4*i, t2), valu('v_cmp_eq_u32', 'vcc', sJ, t1), valu('v_add_u32', g.vL4[i], 4096*i, g.vLd), valu('v_cndmask_b32', g.vL4[i], g.vL4[i], t0, 'vcc')]
        Q += [valu('v_cmp_gt_u32', 'vcc', 16, vLane)] + [valu('v_cndmask_b32', v(20 + d), 0, g.rA[d], 'vcc') for d in range(4)]
        return P, Q
    def own_put(g, n):
        d = lambda tb: v(192 + (n % 2)*16 + tb*4, 4); x = v(16, 4)
        P = [valu('v_cndmask_b32', x[k], d(0)[k], d(1)[k], s(32, 2)) for k in range(4)]
        for tb in (2, 3): P += [valu('v_cndmask_b32', x[k], x[k], d(tb)[k], s(30 + 2*tb, 2)) for k in range(4)]
        return P + [dsw('ds_write_b64', v(28), x.sub(0, 2), 0), dsw('ds_write_b64', v(28), x.sub(2, 2), 8), valu('v_add_u32', v(28), g.sOw, v(28))]
    def w2f(g, q, e): return v(WF + ((q + 2) % 4)*8 + e*4, 4)
    SEQ = [(0, k) for k in range(6)] + [(1, k) for k in range(6)] + [(0, 6), (0, 7), (1, 6), (1, 7), (0, 8), (0, 9), (0, 10), (1, 8), (1, 9), (1, 10)] + [(n, k) for n in range(2, 9) for k in range(11)]
    def g2_reads(g, q):
        n, ks = g.SEQ[q]; X = []; ad_ = g.SL[q]; b = 1 if ad_ < RING else 0 if ad_ < MISC else 2; o = ad_ - g.RB[b]
        for e in range(2):
            f = g.w2f(q, e)
            if ks == 10: X.append([dsr('ds_read_b64_tr_b16', f.sub(0, 2), g.r10[b][e], o)])
            else: X.append([dsr('ds_read_b64_tr_b16', f.sub(2*z, 2), g.r2[b][e], o + z*2048) for z in range(2)])
        return X
    def acc2(g, n, e, tb): return v(128 + (n % 2)*32 + (e*4 + tb)*4, 4)
    def g2_epi(g, n):
        P = [salu('s_mov_b32', sT3, n*262144)]; St = []
        for tb in range(4):
            d = v(192 + (n % 2)*16 + tb*4, 4)
            for e in range(2):
                x = g.acc2(n, e, tb)
                P += [valu('v_cvt_pk_bf16_f32', d[2*e], x[0], x[1]), valu('v_cvt_pk_bf16_f32', d[2*e + 1], x[2], x[3])]
            P += [vstore('buffer_store_dwordx4', d, g.vP[tb], sPART, sT3, tag=('part', n), mods=g.pmods)]
        return P
    def fstamp(g):
        prs = list(range(6, 22, 2)) + list(range(40, 48, 2)) + [28, 30, 72, 74] + [64, 66, 68, 70]
        r = prs[g.nf]; g.nf += 1; g.fregs.append(r)
        return raw(f"s_memrealtime s[{r}:{r+1}]", 'label')
    def f0dump(g, at):
        if g.fine0 != at: return []
        P = [valu('v_lshlrev_b32', v(5), 3, vLane), valu('v_add_u32', v(5), sT4, v(5)), valu('v_mov_b32', v(6), g.vF0), valu('v_mov_b32', v(7), g.vF0), valu('v_cmp_gt_u32', 'vcc', 18, vLane),
             valu('v_mov_b32', g.vF0, OOB), valu('v_cndmask_b32', v(5), g.vF0, v(5), 'vcc'), vstore('buffer_store_dwordx2', v(6, 2), v(5), sPART, 0, off=8*14)]
        return P
    def fdump(g):
        if not g.fine: return []
        P = [raw("s_waitcnt lgkmcnt(0)", 'wait'), valu('v_mov_b32', v(5), sT4)]
        for i, r in enumerate(g.fregs): P += [valu('v_mov_b32', v(6), s(r)), valu('v_mov_b32', v(7), s(r)), vstore('buffer_store_dwordx2', v(6, 2), v(5), sPART, 0, off=8*(g.ns + i)), raw('s_nop 1', 'wait')]
        return P
    def gemm2(g, X1, X2, X3, X4, X5):
        mf = []; F = {}; st = []
        ad = lambda i, x: F.setdefault(i, []).extend(x)
        for q, (n, ks) in enumerate(g.SEQ):
            for e in range(2):
                if ks == 10 and g.k4:
                    mf += [mfma4b(v(g.acc2(n, e, 0).a, 16), g.w2f(q, e).sub(0, 2), a(160, 2)), None, None, None]; continue
                for i in range(4):
                    tb = i if e == 0 else 3 - i
                    mf.append(mfma(g.acc2(n, e, tb), g.w2f(q, e), g.hf(ks, tb), 0 if ks == 0 else None))
            if q + 2 < 99:
                X = g.g2_reads(q + 2)
                for e in range(2):
                    for z, x in enumerate(X[e]): ad(8*q + 4*e + 2*z + 1, [x])
        flg, chk, mm = g.plan; bl = g.BARS
        oP, oQ = g.own_setup() if g.own else ([], [])
        for bi, p in enumerate(bl):
            nx = bl[bi + 1] if bi + 1 < len(bl) else 99
            if p == 14: ad(8*p - 1, [wait_ds()])
            tags = [('g2', q) for q in range(p + 2, min(nx + 2, 99))] + ([('part', flg[p])] if p in flg else [])
            if tags: ad(8*p - 1, [wait_vm(*tags)])
            ad(8*p, [barrier()])
            if g.fine: ad(8*p - 2, [g.fstamp()])
            if g.ISS[p]: st.append((sum([g.g2_dma(q) for q in g.ISS[p]], []), 8*p + 1, 8*nx - 1))
            if p in flg: st.append((g.red_flag(flg[p] + 1), 8*p + 1, 8*p + 10))
            if p in chk:
                pp, cs = chk[p]
                ck = g.check(f"r{p}", g.vPR, g.vPA, sPART, cs[-1] + 1)
                st.append((g.red_poll(), 8*pp + 12, 8*pp + 24)); st.append((ck, 8*p - 8, 8*p - 1))
                R_ = sum([g.red_ld(c) for c in cs], [])
                st.append((spaced(R_, 'ld', g.lsp), 8*p + 4, min(8*p + 14 + g.lsp*4*len(cs), 791)))
        for p, cs in mm.items(): st.append((sum([g.red_m(c) for c in cs], []), 8*p + 4, 8*p + 38))
        ends = {0: 18, 1: 21}
        for n in range(8):
            e = ends.get(n, 11*n + 10); b = 8*(e + 1)
            st.append((spaced(g.g2_epi(n), 'st', 5 if n == 0 else g.esp), b + 2, b + (23 if n == 0 else 14 + 3*g.esp)))
            if g.own: st.append((g.own_put(n), b + (24 if n == 0 else 40), b + (48 if n == 0 else 64)))
        st = [(X2, 0, 31)] + st + [(X1, 0, 8*14 - 2), (g.X1b, 2, 8*14 - 8), (X3, 8*14 + 1, 8*16 - 2), (X4 + oP, 8*16, 8*19), (X5 + oQ, 8*19, 8*26 - 2)]
        g.rep.append("G2")
        P = pack(mf, F, st, rep=g.rep)
        P += g.stamp()
        dl = [c for p in chk for c in chk[p][1]]; dm = [c for p in mm for c in mm[p]]
        f7 = 7 in flg.values()
        rest = [c for c in range(7) if c not in dl]; a_, b_ = rest[:g.tpre], rest[g.tpre:]
        LD = lambda cs: sum([g.red_ld(c) for c in cs], []); M = lambda cs: sum([g.red_m(c) for c in cs], [])
        fs = lambda: [g.fstamp()] if g.fine else []
        pend = [c for c in dl if c not in dm]
        if max(flg.values()) < 6:
            P += g.g2_epi(8) + (g.own_put(8) if g.own else []) + M(pend[:2]) + [wait_ds(), wait_vm(('part', 8)), barrier()] + g.red_flag(9) + g.red_poll() + M(pend[2:])
            return P + g.check("t2", g.vPR, g.vPA, sPART, 9) + [barrier()] + LD(rest + [7, 8]) + M(rest + [7, 8])
        P += g.red_poll() + g.g2_epi(8) + (g.own_put(8) if g.own else []) + M(pend) + [wait_ds()] + g.check("t0", g.vPR, g.vPA, sPART, 7) + [barrier()] + LD(a_) + fs()
        if f7:
            P += g.red_poll() + [wait_vm(('part', 8))] + g.check("t1", g.vPR, g.vPA, sPART, 8) + [barrier()] + g.red_flag(9) + LD(b_[:g.tmid]) + g.red_poll() + LD(b_[g.tmid:] + [7]) + fs()
            P += g.check("t2", g.vPR, g.vPA, sPART, 9) + [barrier()] + fs() + LD([8]) + M(rest + [7, 8])
        else:
            P += [wait_vm(('part', 8)), barrier()] + g.red_flag(9) + LD(b_[:g.tmid]) + g.red_poll() + LD(b_[g.tmid:]) + fs()
            P += g.check("t2", g.vPR, g.vPA, sPART, 9) + [barrier()] + fs() + LD([7, 8]) + M(rest + [7, 8])
        return P
    def main(g):
        P = g.prologue()
        hA = g.half_addrs(); g.fixed1()
        if g.stamps:
            for r in ((96, 97, 95) if 'f' in g.dbg else (97, 95)):
                P += [valu('v_mov_b32', v(6), s(r)), valu('v_mov_b32', v(7), s(r)), valu('v_mov_b32', v(5), sT4), vstore('buffer_store_dwordx2', v(6, 2), v(5), sPART, 0, off=8*g.ns), raw('s_nop 1', 'wait')]; g.ns += 1
        P += g.stamp()
        P += [wait_vm(('w', 0), ('w', 1), ('x', 0)), barrier()] + g.pre_reads + ([] if g.early else (g.dmaX(2) if g.ord < 3 else []) + g.dmaW(4) + g.dmaW(5)) + g.dmaX(3) + g.dmaW(6) if not g.lazy else [wait_vm(('w', 0), ('w', 1), ('x', 0)), barrier()] + g.pre_reads
        P += g.stamp()
        phL, phP = g.phiA_loads()
        pf = g.pf
        e0 = 16*(g.U[17] + 1)
        P += g.phase1(0, [(g.late + g.gate_late + [wait_ds()] + (g.prefetchQ() if g.split else []), 2, 350), ((g.prefetch13(2) if pf else []) + (g.prefetchQ() if pf and g.qlate and not g.split else []) + phL, max(16*g.U[17] - 6, 350), 570),
                          (g.silu(0, 0), e0 + 4, 576)]) + g.stamp() + g.f0dump(0)
        P += g.phase1(2, [(phP + (g.prefetch13(3) if pf and not g.pfp else []), 60, 280), (g.silu(1, 1), 4, 288)]) + g.stamp()
        A, Q, B, C = g.attn_post()
        P += g.phase1(3, [(g.prefetch2(vHf[1][0], vHf[1][1], vHf[1][2]) if pf and g.pfp == 4 else [], g.p2lo, 168), ((g.prefetch13(3, vHf[0][0], vHf[0][1]) + g.prefetch13(4, vHf[0][0], vHf[0][1])[6:] + (g.prefetch2(vHf[0][0], vHf[0][2], vHf[0][1]) if g.pfp == 1 else []) if pf and g.pfp else []) + A + [wait_ds()], 1, g.p3b - 1), (B + C, g.p3b + 1, 280), (Q, g.p3b + 1, 288)]) + g.stamp()
        rA, rB = g.g2_rd_addrs(); g2a = g.g2_dma_addrs()
        P += g.phase1(4, [(g.flag(vJ[0], vJ[1]) + (g.prefetch13(4) + g.prefetch2(v(T), v(T+1), v(T+2)) if pf and not g.pfp else []) + hA + (g.prefetch2(v(T), v(T + 1), v(T + 2)) if g.split and g.pfp != 4 else []), 43, 230 if g.split else 170), (rA + g2a + (g.prefetch2(v(T), v(T + 1), v(T + 2)) if pf and g.pfp == 3 and not g.split else []), 230 if g.split else 180, 288), (g.silu(1, 2), 4, 288)],
                      extra={41: [wait_vm('kv')]}) + g.stamp() + g.f0dump(54)
        poll0, poll1, sel, L1, L2 = g.kv_gather()
        vH, vH8 = v(2), v(3)
        hr = [valu('v_lshlrev_b32', vH8, 4, vLane), salu('s_lshl_b32', sT3, sR, 12), valu('v_add_u32', vH, sT3, vH8), valu('v_add_u32', vH8, 65536, vH)]
        H = lambda ks: g.h_reads(ks, vH, vH8)
        for i in (16*98 + 9, 16*98 + 10): g.F1.pop(i)
        g.plan_slots()
        X = {135: [wait_vm(*[('g2', q) for q in range(6)]), wait_ds()], 136: [barrier()]}
        rr = [x for q in range(2) for y in g.g2_reads(q) for x in y]
        for i, x in enumerate(rr): X.setdefault(137 + min(i, 6), []).append(x)
        P += g.phase1(5, [(sum([g.g2_dma(q) for q in g.ISS[-2]], []), 107, 135), (poll0 + (g.prefetch2(v(T), v(T + 1), v(T + 2)) if pf and g.pfp == 2 else []) + sel + poll1, 0, 41), (hr + H([0, 1]), 16, 40), (H([2, 3]), 40, 60), (H([4, 5]), 60, 90),
                          (L1 + (g.prefetch2(v(224), v(225), v(226)) if pf and g.pfp == 5 else []) + L2, 43, 132), (g.silu(0, 3), 4, 132)], extra=X) + g.stamp() + g.f0dump(64)
        oa, orr = g.o_reads()
        X1 = H([6, 7]) + g.o_part() + ([] if g.xsep else g.silu(1, 4)) + oa + [wait_ds()]; g.X1b = g.silu(1, 4) if g.xsep else []
        P += g.gemm2(X1, sum([g.g2_dma(q) for q in g.ISS[-1]], []), H([8]) + orr, rB, g.red_setup()) + g.stamp() + g.fdump()
        import asmlib; asmlib.LOOSE = bool(g.dbg)
        if 'w' in g.dbg: P = [x for x in P if not (x.k == 'wvm')]
        if 'b' in g.dbg: P = [x for x in P if not (x.k == 'bar')]
        if 'v' in g.dbg: P = [x for x in P if not (x.k in ('trans',) or x.t.startswith('v_mul_f32') or x.t.startswith('v_add_f32') or x.t.startswith('v_cvt'))]
        if 'd' in g.dbg: P = [x for x in P if not (x.k == 'dma')]
        if 'r' in g.dbg: P = [x for x in P if not (x.t.startswith('ds_read_b64_tr'))]
        if 'c' in g.dbg: P = [x if '_spin' not in x.t else label(x.t.split('\n')[-1][:-1]) for x in P]
        if 'L' in g.dbg: P = [x for x in P if not (x.k == 'vld' and 'dwordx4 a' in x.t)]
        if 'k' in g.dbg: P = [x for x in P if x.tag != 'kv']
        if 'W' in g.dbg: P = [x for x in P if x.k != 'dsw']
        if 'P' in g.dbg: P = [x for x in P if x.k != 'perm']
        if 'p' in g.dbg: P = [x for x in P if not (isinstance(x.tag, tuple) and x.tag[0] == 'part')]
        rep = {}
        F = finalize(P, report=rep)
        print(rep, g.rep, file=sys.stderr)
        return text(F) + "\ns_endpgm\n" + "\n".join(g.tails) + "\nL_end:"

def build(**kw):
    g = G(**kw)
    body = g.main()
    hdr = "; gated mix: hedgehog linear attention + SwiGLU FFN fused in one launch (text emitted by my own generator script)\n"
    hdr += "; @launch grid=(256,1,1) block=(256,1,1) lds=163840\n"
    hdr += '.amdgcn_target "amdgcn-amd-amdhsa--gfx950"\n'
    return hdr + kernel_text(KN + "_kernel", body, vgpr=256, agpr=256)
if __name__ == "__main__":
    kw = {}
    out = sys.argv[1]
    for x in sys.argv[2:]:
        k, val = x.split("="); kw[k] = eval(val)
    t = build(**kw)
    open(out, "w").write(t)
```
